```python
import torch

def _softmax(x, axis=-1):
    return torch.softmax(x, dim=axis)
def _gelu(x):
    return torch.nn.functional.gelu(x, approximate="tanh")
def _silu(x):
    return torch.nn.functional.silu(x)
def _sigmoid(x):
    return torch.sigmoid(x)
def _layernorm(x, axis=-1, eps=1e-5):
    m = x.mean(dim=axis, keepdim=True)
    v = x.var(dim=axis, keepdim=True, unbiased=False)
    return (x - m) / torch.sqrt(v + eps)
def _scatter_add(tgt, idx, src, axis=0):
    return tgt.clone().index_add_(axis, idx, src)
def _segment_sum(src, seg, n):
    out = torch.zeros((n,) + src.shape[1:], dtype=src.dtype)
    return out.index_add_(0, seg, src)
def _pad(x, pw):
    flat = tuple(v for pair in reversed(pw) for v in pair)
    return torch.nn.functional.pad(x, flat)

kernel_name = 'parallel_sum__ssm_conv_s4d__moe_arch_mod__prompt'

def setup_inputs():

    _w = (lambda a: (lambda t: t.to(torch.bfloat16) if t.is_floating_point() else t)(torch.as_tensor(a)))
    def _A_setup():
        Bsz, L, D, N = 1, 2048, 1024, 128
        return {
            "u": _w((lambda *s: torch.randn(*s, dtype=torch.bfloat16) * 0.05)(Bsz, L, D)),
            "log_A_real": _w((lambda *s: torch.randn(*s, dtype=torch.bfloat16) * 3.2)(D, N) * 0.5),
            "A_imag": _w((lambda *s: torch.randn(*s, dtype=torch.bfloat16) * 0.2)(D, N) * 3.14),
            "C_real": _w((lambda *s: torch.randn(*s, dtype=torch.bfloat16) * 3.2)(D, N) / N ** 0.5),
            "C_imag": _w((lambda *s: torch.randn(*s, dtype=torch.bfloat16) * 3.2)(D, N) / N ** 0.5),
            "log_dt": _w((lambda *s: torch.randn(*s, dtype=torch.bfloat16) * 0.2)(D) * 0.5 - 4.0),
            "D_skip": _w((lambda *s: torch.randn(*s, dtype=torch.bfloat16) * 0.4)(D)),
        }
    _A_in = _A_setup()

    def _B_setup():
        B, S, D, F, C = 1, 2048, 1024, 3584, 8
        return {
            "x": _w((lambda *s: torch.randn(*s, dtype=torch.bfloat16) * 0.05)(B, S, D)),
            "w_r": _w((lambda *s: torch.randn(*s, dtype=torch.bfloat16) * 0.05)(D)),
            "w_gate": _w((lambda *s: torch.randn(*s, dtype=torch.bfloat16) * 0.05)(D, F)),
            "w_up": _w((lambda *s: torch.randn(*s, dtype=torch.bfloat16) * 0.05)(D, F)),
            "w_down": _w((lambda *s: torch.randn(*s, dtype=torch.bfloat16) * 0.05)(F, D)),
        }
    _B_in = _B_setup()

    return {
        "A_u": _A_in["u"],
        "A_log_A_real": _A_in["log_A_real"],
        "A_A_imag": _A_in["A_imag"],
        "A_C_real": _A_in["C_real"],
        "A_C_imag": _A_in["C_imag"],
        "A_log_dt": _A_in["log_dt"],
        "A_D_skip": _A_in["D_skip"],
        "B_x": _B_in["x"],
        "B_w_r": _B_in["w_r"],
        "B_w_gate": _B_in["w_gate"],
        "B_w_up": _B_in["w_up"],
        "B_w_down": _B_in["w_down"],
    }

def reference(A_u, A_log_A_real, A_A_imag, A_C_real, A_C_imag, A_log_dt, A_D_skip, B_x, B_w_r, B_w_gate, B_w_up, B_w_down):
    def _A_ref(u, log_A_real, A_imag, C_real, C_imag, log_dt, D_skip):
        L = u.shape[1]
        dt = torch.exp(log_dt)
        A = -torch.exp(log_A_real) + 1j * A_imag
        C = (C_real + 1j * C_imag) * dt[:, None]
        pos = (lambda x, dt: x.to(dt))(torch.arange(L), log_dt.dtype)
        P = torch.exp((A * dt[:, None])[:, :, None] * pos[None, None, :])
        K = 2.0 * torch.einsum("dn,dnl->dl", C, P).real
        L2 = 2 * L
        u_t = (lambda x, *d: x.permute(*d))(u, 0, 2, 1)
        Kf = (lambda x, *a, **k: torch.fft.rfft(x.float(), *a, **k))(K, L2)
        Uf = (lambda x, *a, **k: torch.fft.rfft(x.float(), *a, **k))(u_t, L2)
        y = (lambda x, *a, **k: torch.fft.irfft(x, *a, **k).to(torch.bfloat16))(Uf * Kf[None, :, :], L2)[:, :, :L]
        y = (lambda x, *d: x.permute(*d))(y, 0, 2, 1)
        return y + u * D_skip[None, None, :]

    def _B_ref(x, w_r, w_gate, w_up, w_down):
        B, S, D = x.shape
        C = 8
        r = x @ w_r
        idx = torch.argsort(-r, axis=-1)[:, :C]
        idx_e = (lambda x, n, axis: torch.repeat_interleave(x, n, dim=axis))(idx.reshape(B, C, 1), D, axis=2)
        x_sel = (lambda x, i, axis: torch.take_along_dim(x, i, dim=axis))(x, idx_e, axis=1)
        g = _silu(x_sel @ w_gate)
        u = x_sel @ w_up
        y = (g * u) @ w_down
        r_sel = _sigmoid((lambda x, i, axis: torch.take_along_dim(x, i, dim=axis))(r, idx, axis=1))
        y = y * r_sel.reshape(B, C, 1)
        b_off = (torch.arange(B) * S).reshape(B, 1)
        flat_idx = (idx + b_off).reshape(B * C)
        zero = (x * 0.0).reshape(B * S, D)
        upd = _scatter_add(zero, flat_idx, y.reshape(B * C, D), axis=0)
        return x + upd.reshape(B, S, D)

    x = A_u
    xn = _layernorm(x, axis=-1)
    return x + _A_ref(xn, A_log_A_real, A_A_imag, A_C_real, A_C_imag, A_log_dt, A_D_skip) + _B_ref(xn, B_w_r, B_w_gate, B_w_up, B_w_down)
```

```python
import re

def v(n, c=1):
    return f"v{n}" if c == 1 else f"v[{n}:{n+c-1}]"
def s(n, c=1):
    return f"s{n}" if c == 1 else f"s[{n}:{n+c-1}]"
def a(n, c=1):
    return f"a{n}" if c == 1 else f"a[{n}:{n+c-1}]"

_REG = re.compile(r"^-?(?:abs\()?\|?([vsa])(?:(\d+)|\[(\d+):(\d+)\])\|?\)?$")
TRANS = ("v_exp_f32", "v_log_f32", "v_rcp_f32", "v_rsq_f32", "v_sqrt_f32", "v_sin_f32", "v_cos_f32",
         "v_rcp_iflag_f32", "v_exp_f16", "v_rcp_f16")

def regs_of(op):
    op = op.strip()
    if op in ("vcc",): return {("s", "vcc")}
    if op in ("vcc_lo", "vcc_hi"): return {("s", "vcc")}
    if op in ("exec", "exec_lo", "exec_hi"): return {("s", "exec")}
    if op == "m0": return {("s", "m0")}
    m = _REG.match(op)
    if not m: return set()
    k = m.group(1)
    if m.group(2) is not None:
        lo = hi = int(m.group(2))
    else:
        lo, hi = int(m.group(3)), int(m.group(4))
    return {(k, i) for i in range(lo, hi + 1)}

class Ins:
    def __init__(self, text):
        self.text = text
        t = text.split(";")[0].strip()
        self.is_label = t.endswith(":")
        self.is_dir = t.startswith(".") and not self.is_label
        self.mn = "" if (self.is_label or self.is_dir or not t) else t.split()[0]
        self.rd = set(); self.wr = set()
        self.mA = self.mB = self.mC = set()
        self.passes = 0
        if not self.mn: return
        rest = t[len(self.mn):].strip()
        ops = []; depth = 0; cur = ""
        for ch in rest:
            if ch == "[": depth += 1
            if ch == "]": depth -= 1
            if ch == "," and depth == 0:
                ops.append(cur.strip()); cur = ""
            else: cur += ch
        if cur.strip(): ops.append(cur.strip())
        mods = ""
        if ops:
            parts = ops[-1].split()
            ops[-1] = parts[0]; mods = " ".join(parts[1:])
        self.ops = ops; self.mods = mods
        mn = self.mn
        R = [regs_of(o) for o in ops]
        self.valu = mn.startswith("v_") and not mn.startswith("v_mfma")
        self.mfma = mn.startswith("v_mfma")
        self.trans = any(mn.startswith(x) for x in TRANS)
        self.dpp = ("dpp" in mn) or any(x in mods for x in ("row_", "quad_perm", "wave_", "row_bcast"))
        self.vmem = mn.startswith(("buffer_", "global_", "flat_"))
        self.ds = mn.startswith("ds_")
        self.salu = mn.startswith("s_")
        U = lambda l: set().union(*l) if l else set()
        if self.mfma:
            self.wr = R[0]; self.mA, self.mB, self.mC = R[1], R[2], R[3]
            self.rd = R[1] | R[2] | R[3]
            self.passes = 8 if "32x32" in mn else 4
        elif self.valu:
            if mn.startswith("v_cmp"):
                self.wr = set(R[0]); self.rd = U(R[1:])
                if mn.startswith("v_cmpx"): self.wr |= {("s", "exec")}
            elif mn.startswith(("v_add_co", "v_sub_co", "v_subrev_co", "v_addc_co", "v_subb_co")):
                self.wr = R[0] | R[1]; self.rd = U(R[2:])
            elif mn.startswith("v_permlane") and "swap" in mn:
                self.wr = R[0] | R[1]; self.rd = R[0] | R[1]
            elif mn.startswith("v_nop"):
                pass
            else:
                self.wr = set(R[0]); self.rd = U(R[1:])
                if mn.startswith(("v_fmac", "v_pk_fmac", "v_writelane", "v_dot2c")) or self.dpp or "sdwa" in mn:
                    self.rd |= R[0]
                if mn.startswith("v_cndmask") and len(ops) == 3: self.rd |= {("s", "vcc")}
        elif self.ds:
            if mn.startswith(("ds_read", "ds_bpermute", "ds_permute", "ds_swizzle")) or "_rtn" in mn:
                self.wr = set(R[0]); self.rd = U(R[1:])
                if "d16" in mn: self.rd |= R[0]
            else:
                self.rd = U(R)
            if "addtid" in mn: self.rd |= {("s", "m0")}
        elif self.vmem:
            self.lds_dma = (" lds" in " " + mods) or ("load_lds" in mn)
            if "load" in mn and not self.lds_dma:
                self.wr = set(R[0]); self.rd = U(R[1:])
                if "d16" in mn: self.rd |= R[0]
            elif "atomic" in mn and "sc0" in mods:
                self.wr = set(R[0]); self.rd = U(R)
            else:
                self.rd = U(R)
            if self.lds_dma: self.rd |= {("s", "m0")}
            self.wide_store = ("store" in mn) and ("x4" in mn or "x3" in mn)
            if self.wide_store:
                self.sdata = R[0] if mn.startswith("buffer_") else R[1]
        elif self.salu:
            if mn.startswith(("s_cmp", "s_cbranch", "s_branch", "s_waitcnt", "s_nop", "s_barrier", "s_endpgm", "s_sleep", "s_setprio", "s_bitcmp")):
                self.rd = U(R)
            else:
                self.wr = set(R[0]) if R else set(); self.rd = U(R[1:])
                if "saveexec" in mn: self.wr |= {("s", "exec")}

    def states(self):
        if not self.mn: return 0
        if self.mn == "s_nop": return int(self.ops[0], 0) + 1
        return 1

def _vonly(S): return {r for r in S if r[0] in "va"}
def _sonly(S): return {r for r in S if r[0] == "s"}

def need(p, c):
    n = 0
    if p.mfma:
        big = 12 if p.passes == 8 else 8
        if c.mfma:
            if p.wr & (c.mA | c.mB): n = max(n, big)
            if p.wr & c.mC and not (p.wr == c.mC and p.passes == c.passes): n = max(n, 10 if p.passes == 8 else 6)
            if p.wr & c.wr and not (p.wr == c.mC): n = max(n, big)
        elif c.valu or c.vmem or c.ds:
            if p.wr & (c.rd | c.wr): n = max(n, big)
            if c.valu and (p.mC & c.wr): n = max(n, 7 if p.passes == 8 else 3)
        return n
    if p.valu:
        pv = _vonly(p.wr); ps = _sonly(p.wr)
        if c.mfma:
            if pv & c.rd: n = max(n, 2)
            if ("s", "exec") in ps: n = max(n, 4)
        if c.valu:
            if p.trans and pv & c.rd: n = max(n, 1)
            if c.dpp and pv & c.rd: n = max(n, 2)
            if c.mn.startswith(("v_readlane", "v_readfirstlane")) and pv & c.rd: n = max(n, 1)
            if c.mn.startswith("v_permlane") and pv & c.rd: n = max(n, 2)
            if ps & c.rd:
                n = max(n, 4 if c.mn.startswith(("v_readlane", "v_writelane")) else 2)
            if ("sdwa" in p.mn or "op_sel" in p.mods and not p.mn.startswith("v_pk_")) and pv & (c.rd | c.wr): n = max(n, 1)
            if ("s", "exec") in ps: n = max(n, 5)
        if p.mn.startswith("v_dot") and c.mn != p.mn and pv & (c.rd | c.wr): n = max(n, 3)
        if c.vmem and ps & c.rd: n = max(n, 5)
        if (c.vmem or c.ds) and p.trans and pv & c.rd: n = max(n, 1)
        return n
    if p.vmem and getattr(p, "wide_store", False):
        if (c.valu or c.mfma) and p.sdata & c.wr: n = max(n, 2)
        elif (c.vmem or c.ds) and p.sdata & c.wr: n = max(n, 1)
    if p.salu and ("s", "m0") in p.wr and ("s", "m0") in c.rd and (c.vmem or c.ds): n = max(n, 1)
    return n

class Asm:
    def __init__(self):
        self.lines = []
    def __call__(self, text):
        for ln in text.split("\n"):
            ln = ln.strip()
            if ln: self.lines.append(ln)
    def raw(self, text):
        self.lines.append(text)
    def ext(self, lst):
        for x in lst: self(x)
    def pad(self):
        out = []; hist = []
        nins = 0
        for ln in self.lines:
            ins = Ins(ln)
            if not ins.mn:
                out.append(ln); continue
            dist = 0; req = 0
            for p in ([] if "nohaz" in ln else reversed(hist)):
                if dist >= 20: break
                r = need(p, ins)
                if r > dist: req = max(req, r - dist)
                dist += p.states()
            while req > 0:
                k = min(req, 16)
                nop = Ins(f"s_nop {k-1}")
                out.append(f"s_nop {k-1} ; auto"); hist.append(nop); req -= k; nins += 1
            out.append(ln); hist.append(ins)
            if len(hist) > 40: hist = hist[-40:]
        self.nauto = nins
        return out
    def text(self):
        res = []
        for ln in self.pad():
            t = ln.split(";")[0].strip()
            if t.endswith(":") or t.startswith("."): res.append(ln)
            else: res.append("    " + ln)
        return "\n".join(res) + "\n"

def interleave(main, fill, ratio=None):
    out = []; n = len(main); m = len(fill); j = 0
    for i, x in enumerate(main):
        out.append(x)
        tgt = (i + 1) * m // n
        while j < tgt:
            out.append(fill[j]); j += 1
    out.extend(fill[j:])
    return out

def f32bits(x):
    import struct
    return "0x%08x" % struct.unpack("<I", struct.pack("<f", x))[0]

KD = """.section .rodata,"a"
.p2align 6
.amdhsa_kernel {name}
  .amdhsa_next_free_vgpr {vgpr}
  .amdhsa_next_free_sgpr {sgpr}
  .amdhsa_accum_offset {acc}
  .amdhsa_group_segment_fixed_size 0
  .amdhsa_kernarg_size 120
  .amdhsa_user_sgpr_count 2
  .amdhsa_user_sgpr_kernarg_segment_ptr 1
  .amdhsa_system_sgpr_workgroup_id_x 1
.end_amdhsa_kernel
"""

class Lgkm:
    def __init__(self, A):
        self.A = A; self.q = []
    def issue(self, text, tag=None):
        self.A(text); self.q.append(tag)
    def need(self, *tags):
        idx = -1
        for t in tags:
            if t in self.q: idx = max(idx, len(self.q) - 1 - self.q[::-1].index(t))
        if idx < 0: return
        n = len(self.q) - 1 - idx
        n = min(n, 15)
        self.A(f"s_waitcnt lgkmcnt({n})")
        self.q = self.q[len(self.q) - n:] if n else []
    def drain(self):
        if self.q:
            self.A("s_waitcnt lgkmcnt(0)"); self.q = []

def schedule(A, L, main, fillers, per_gap=2):
    pend = list(fillers)
    for i, f in enumerate(pend): f["seq"] = i
    def emit(f):
        if f.get("needs"): L.need(*f["needs"])
        if f.get("lds"): L.issue(f["text"], f.get("tag"))
        else: A(f["text"])
    def ready(f, g):
        if f["after"] > g: return False
        ch = f.get("chain")
        if ch is not None:
            for o in pend:
                if o is f: break
                if o.get("chain") == ch: return False
        return True
    for g in range(-1, len(main)):
        if g >= 0:
            text, needs = main[g]
            if needs: L.need(*needs)
            A(text)
        placed = 0
        while True:
            cand = [f for f in pend if ready(f, g)]
            if not cand: break
            cand.sort(key=lambda f: (f["before"], f["seq"]))
            f = cand[0]
            if placed >= per_gap and f["before"] > g + 1: break
            pend.remove(f); emit(f); placed += 1
    assert not pend, pend
```

```python
from asmgen import *
import math
NAME = "parallel_sum__ssm_conv_s4d__moe_arch_mod__prompt"
OFF = dict(x=0, lar=8, aim=16, cre=24, cim=32, ldt=40, dsk=48, bx=56, wr=64, wg=72, wu=80, wd=88, out=96, dbg=104, ws=112)
SIZE = dict(x=4194304, lar=262144, aim=262144, cre=262144, cim=262144, ldt=2048, dsk=2048, wr=2048,
            wg=7340032, wu=7340032, wd=7340032, out=4194304, dbg=256, ws=268435456)
LOG2E = 1.4426950408889634
import struct
def f32(x): return struct.unpack("<f", struct.pack("<f", x))[0]
L_HI = f32(LOG2E); L_LO = LOG2E - L_HI
MASKHI = "0xffff0000"

def srd_load(A, d, key):
    A(f"s_load_dwordx2 {s(d,2)}, s[0:1], {OFF[key]}")
def srd_fin(A, d, key, add=0, size=None):
    if add:
        A(f"s_add_u32 {s(d)}, {s(d)}, {add}")
        A(f"s_addc_u32 {s(d+1)}, {s(d+1)}, 0")
    A(f"s_mov_b32 {s(d+2)}, {size if size is not None else SIZE[key]}")
    A(f"s_mov_b32 {s(d+3)}, 0x00020000")

def head(A, name):
    A.raw(".text"); A.raw(f".globl {name}"); A.raw(".p2align 8"); A.raw(f".type {name},@function"); A.raw(f"{name}:")

def exp_acc(A, dst, x, t, r, sL, sLlo):
    A(f"v_mul_f32 {v(t)}, {s(sL)}, {v(x)}")
    A(f"v_fma_f32 {v(r)}, {v(x)}, {s(sL)}, -{v(t)}")
    A(f"v_fma_f32 {v(r)}, {v(x)}, {s(sLlo)}, {v(r)}")
    A(f"v_exp_f32 {v(dst)}, {v(t)}")
    A(f"v_mul_f32 {v(r)}, {f32bits(math.log(2.0))}, {v(r)}")
    A(f"v_fma_f32 {v(dst)}, {v(dst)}, {v(r)}, {v(dst)}")

def cmul(dst, x, w, t):
    return [f"v_pk_mul_f32 {v(t,2)}, {v(x,2)}, {v(w,2)} op_sel:[1,1] op_sel_hi:[1,0] neg_lo:[1,0]",
            f"v_pk_fma_f32 {v(dst,2)}, {v(x,2)}, {v(w,2)}, {v(t,2)} op_sel:[0,0,0] op_sel_hi:[0,1,1]"]

def dpp(op, dst, src0, src1, ctrl):
    return f"{op}_dpp {v(dst)}, {v(src0)}, {v(src1)} {ctrl} row_mask:0xf bank_mask:0xf"

A0 = list(range(8)) + [128 + i for i in range(8)]
A1 = [256, 258, 260, 262, 384, 386, 388, 390, 512, 516, 640, 644, 768, 772, 896, 900]
A2 = [1024 + 128 * r for r in range(9)]

def band(A, dst, vsh, lo, hi, val, t0, t1, t2, sW):
    W = ((1 << (hi - lo + 1)) - 1) << (lo + 15)
    A(f"s_mov_b32 {s(sW)}, {hex(W)}")
    A(f"v_lshrrev_b32 {v(t0)}, {v(vsh)}, {s(sW)}")
    for dd in range(4):
        A(f"v_bfe_i32 {v(t1)}, {v(t0)}, {2*dd}, 1")
        A(f"v_bfe_i32 {v(t2)}, {v(t0)}, {2*dd+1}, 1")
        A(f"v_and_b32 {v(t1)}, {hex(val)}, {v(t1)}")
        A(f"v_and_b32 {v(t2)}, {hex(val << 16)}, {v(t2)}")
        A(f"v_or_b32 {v(dst+dd)}, {v(t1)}, {v(t2)}")
```

```python
import sys
from parts import *

WS_STATS = 0
WS_SEL = 32768
WS_PART = 1 << 20

def gen_ln(A, name):
    head(A, name)
    A("s_cmp_ge_u32 s2, 256"); A(f"s_cbranch_scc1 {name}_end")
    srd_load(A, 4, "x"); srd_load(A, 8, "wr"); srd_load(A, 12, "ws")
    A("v_and_b32 v1, 63, v0"); A("v_lshrrev_b32 v2, 6, v0")
    A("s_lshl_b32 s3, s2, 14")
    A("v_lshlrev_b32 v3, 12, v2")
    A("v_lshlrev_b32 v28, 4, v1")
    A("v_add3_u32 v3, v3, v28, s3")
    A("s_waitcnt lgkmcnt(0)")
    srd_fin(A, 4, "x"); srd_fin(A, 8, "wr"); srd_fin(A, 12, "ws", size=16384)
    for k in range(4): A(f"buffer_load_dwordx4 {v(4+4*k,4)}, v3, s[4:7], 0 offen offset:{1024*k}")
    for k in range(2): A(f"buffer_load_dwordx4 {v(20+4*k,4)}, v28, s[8:11], 0 offen offset:{1024*k}")
    W, XA, XB = 32, 48, 64
    def unpack(dst, src, n):
        for k in range(n):
            A(f"v_lshlrev_b32 {v(dst+2*k)}, 16, {v(src+k)}")
            A(f"v_and_b32 {v(dst+2*k+1)}, {MASKHI}, {v(src+k)}")
    A("s_waitcnt vmcnt(4)"); unpack(XA, 4, 8)
    A("s_waitcnt vmcnt(2)"); unpack(XB, 12, 8)
    A(f"v_readfirstlane_b32 s16, {v(XA)}"); A(f"v_readfirstlane_b32 s17, {v(XB)}")
    A("s_waitcnt vmcnt(0)"); unpack(W, 20, 8)
    for k in range(8):
        A(f"v_pk_add_f32 {v(XA+2*k,2)}, {v(XA+2*k,2)}, s[16:17] op_sel:[0,0] op_sel_hi:[1,0] neg_lo:[0,1] neg_hi:[0,1]")
        A(f"v_pk_add_f32 {v(XB+2*k,2)}, {v(XB+2*k,2)}, s[16:17] op_sel:[0,1] op_sel_hi:[1,1] neg_lo:[0,1] neg_hi:[0,1]")
    S1A, S1B, S2A, S2B, S3A, S3B, SW = 80, 82, 84, 86, 88, 90, 92
    A(f"v_pk_add_f32 {v(S1A,2)}, {v(XA,2)}, {v(XA+2,2)}"); A(f"v_pk_add_f32 {v(S1B,2)}, {v(XB,2)}, {v(XB+2,2)}")
    A(f"v_pk_add_f32 {v(SW,2)}, {v(W,2)}, {v(W+2,2)}")
    A(f"v_pk_mul_f32 {v(S2A,2)}, {v(XA,2)}, {v(XA,2)}"); A(f"v_pk_mul_f32 {v(S2B,2)}, {v(XB,2)}, {v(XB,2)}")
    A(f"v_pk_mul_f32 {v(S3A,2)}, {v(XA,2)}, {v(W,2)}"); A(f"v_pk_mul_f32 {v(S3B,2)}, {v(XB,2)}, {v(W,2)}")
    for k in range(1, 8):
        if k >= 2:
            A(f"v_pk_add_f32 {v(S1A,2)}, {v(S1A,2)}, {v(XA+2*k,2)}"); A(f"v_pk_add_f32 {v(S1B,2)}, {v(S1B,2)}, {v(XB+2*k,2)}")
            A(f"v_pk_add_f32 {v(SW,2)}, {v(SW,2)}, {v(W+2*k,2)}")
        A(f"v_pk_fma_f32 {v(S2A,2)}, {v(XA+2*k,2)}, {v(XA+2*k,2)}, {v(S2A,2)}")
        A(f"v_pk_fma_f32 {v(S2B,2)}, {v(XB+2*k,2)}, {v(XB+2*k,2)}, {v(S2B,2)}")
        A(f"v_pk_fma_f32 {v(S3A,2)}, {v(XA+2*k,2)}, {v(W+2*k,2)}, {v(S3A,2)}")
        A(f"v_pk_fma_f32 {v(S3B,2)}, {v(XB+2*k,2)}, {v(W+2*k,2)}, {v(S3B,2)}")
    for r in (S1A, S1B, S2A, S2B, S3A, S3B, SW): A(f"v_add_f32 {v(r)}, {v(r)}, {v(r+1)}")
    A(f"v_mov_b32 {v(SW+1)}, {v(SW)}")
    for p, q in ((S1A, S1B), (S2A, S2B), (S3A, S3B), (SW, SW+1)): A(f"v_permlane32_swap_b32 {v(p)}, {v(q)}")
    for p, q in ((S1A, S1B), (S2A, S2B), (S3A, S3B), (SW, SW+1)): A(f"v_add_f32 {v(p)}, {v(p)}, {v(q)}")
    R4 = (S1A, S2A, S3A, SW)
    for n in (8, 4, 2, 1):
        for p in R4: A(dpp("v_add_f32", p, p, p, f"row_ror:{n}"))
    for p in R4: A(f"v_mov_b32 {v(p+1)}, {v(p)}")
    for p in R4: A(f"v_permlane16_swap_b32 {v(p)}, {v(p+1)}")
    for p in R4: A(f"v_add_f32 {v(p)}, {v(p)}, {v(p+1)}")
    X0, MU, MEAN, VAR, T, MB, RS = 40, 41, 42, 43, 44, 45, 46
    A("v_cmp_gt_u32 vcc, 32, v1")
    A(f"v_mov_b32 {v(X0)}, s17"); A(f"v_mov_b32 {v(T)}, s16")
    A(f"v_cndmask_b32 {v(X0)}, {v(X0)}, {v(T)}, vcc")
    A(f"v_mul_f32 {v(MU)}, {f32bits(1/1024)}, {v(S1A)}")
    A(f"v_mul_f32 {v(VAR)}, {f32bits(1/1024)}, {v(S2A)}")
    A(f"v_add_f32 {v(MEAN)}, {v(X0)}, {v(MU)}")
    A(f"v_fma_f32 {v(VAR)}, -{v(MU)}, {v(MU)}, {v(VAR)}")
    A(f"v_max_f32 {v(VAR)}, 0, {v(VAR)}")
    A(f"v_cvt_pk_bf16_f32 {v(MEAN)}, {v(MEAN)}, {v(VAR)}")
    A(f"v_and_b32 {v(VAR)}, {MASKHI}, {v(MEAN)}")
    A(f"v_lshlrev_b32 {v(MB)}, 16, {v(MEAN)}")
    A(f"v_add_f32 {v(VAR)}, {f32bits(1e-5)}, {v(VAR)}")
    A(f"v_cvt_pk_bf16_f32 {v(VAR)}, {v(VAR)}, {v(VAR)}")
    A(f"v_and_b32 {v(VAR)}, {MASKHI}, {v(VAR)}")
    A(f"v_sqrt_f32 {v(VAR)}, {v(VAR)}")
    A(f"v_sub_f32 {v(T)}, {v(X0)}, {v(MB)}")
    A(f"v_cvt_pk_bf16_f32 {v(50)}, {v(MB)}, {v(VAR)}")
    A(f"v_and_b32 {v(VAR)}, {MASKHI}, {v(50)}")
    A(f"v_rcp_f32 {v(RS)}, {v(VAR)}")
    A(f"v_fma_f32 {v(T)}, {v(T)}, {v(SW)}, {v(S3A)}")
    A(f"v_mul_f32 {v(T)}, {v(T)}, {v(RS)}")
    A(f"v_cvt_pk_bf16_f32 {v(51)}, {v(T)}, 0")
    A("v_lshrrev_b32 v4, 5, v0")
    A("s_lshl_b32 s3, s2, 6")
    A("v_lshl_add_u32 v4, v4, 3, s3")
    A("s_mov_b32 exec_lo, 1"); A("s_mov_b32 exec_hi, 1")
    A("buffer_store_dwordx2 v[50:51], v4, s[12:15], 0 offen")
    A(f"{name}_end:"); A("s_endpgm")
    return dict(vgpr=96, sgpr=24)

UST = 4608; EBASE = 4 * UST; EST = 4160; KBASE = EBASE + 4 * EST; KST = 8448
CONV_LDS = KBASE + 4 * KST
PB_E = 2240

KN, KE, KO, K3, KC = 16, 84, 96, 108, 124
BAND = 128; ACC = 144; UB = 176; NUB = 6; U24 = 200; BOXD = 204; BOXOP = 228; XR = 240
vTID, vL, vI, vG = 0, 1, 2, 3

def kgen(A, L, vRow, vOp, sc):
    PAR, Wm, CH, T = 16, 20, 32, 64
    BOP, AOP, D = 80, 176, 208
    sL, sLlo = sc["sL"], sc["sLlo"]
    DT = 76
    A(f"v_lshlrev_b32 v15, 16, v15")
    exp_acc(A, DT, 15, T, T+1, sL, sLlo)
    A(f"v_cvt_pk_bf16_f32 {v(DT)}, {v(DT)}, {v(DT)}")
    A(f"v_and_b32 {v(DT)}, {MASKHI}, {v(DT)}")
    AL, BE = 72, 74
    for md in range(2):
        sel = (lambda d, src: f"v_lshlrev_b32 {v(d)}, 16, {v(src)}") if md == 0 else (lambda d, src: f"v_and_b32 {v(d)}, {MASKHI}, {v(src)}")
        A(sel(T+2, PAR)); exp_acc(A, AL+md, T+2, T, T+1, sL, sLlo)
        A(sel(BE+md, PAR+1)); A(sel(CH+2*md, PAR+2)); A(sel(CH+2*md+1, PAR+3))
    A(f"v_cvt_pk_bf16_f32 {v(T)}, {v(AL)}, {v(AL+1)}")
    A(f"v_lshlrev_b32 {v(AL)}, 16, {v(T)}"); A(f"v_and_b32 {v(AL+1)}, {MASKHI}, {v(T)}")
    A(f"v_add_f32 {v(DT+1)}, {v(DT)}, {v(DT)}")
    for md in range(2):
        A(f"v_mul_f32 {v(AL+md)}, {v(AL+md)}, {v(DT)}")
        A(f"v_mul_f32 {v(BE+md)}, {v(BE+md)}, {v(DT)}")
        A(f"v_pk_mul_f32 {v(CH+2*md,2)}, {v(CH+2*md,2)}, {v(DT,2)} op_sel:[0,1] op_sel_hi:[1,1]")
        A(f"v_mul_f32 {v(AL+md)}, {f32bits(-LOG2E)}, {v(AL+md)}")
        A(f"v_mul_f32 {v(BE+md)}, 0.15915494, {v(BE+md)}")
    for q, p in enumerate((1, 8, 128)):
        for md in range(2):
            w = Wm + 4 * q + 2 * md; t = T + 4 * md
            A(f"v_mul_f32 {v(t)}, {f32bits(float(p))}, {v(AL+md)}")
            A(f"v_mul_f32 {v(t+1)}, {f32bits(float(p))}, {v(BE+md)}")
            A(f"v_exp_f32 {v(t)}, {v(t)}")
            A(f"v_fract_f32 {v(t+1)}, {v(t+1)}")
            A(f"v_cos_f32 {v(w)}, {v(t+1)}")
            A(f"v_sin_f32 {v(w+1)}, {v(t+1)}")
            neg = " neg_hi:[1,0]" if p == 8 else ""
            A(f"v_pk_mul_f32 {v(w,2)}, {v(w,2)}, {v(t,2)} op_sel:[0,0] op_sel_hi:[1,0]{neg}")
    W1, W8, W128 = Wm, Wm + 4, Wm + 8
    PK = [68, 70]; cnt = [0]
    def row(r, x0, x1):
        pk = PK[cnt[0] & 1]; cnt[0] += 1
        A(f"v_cvt_pk_bf16_f32 {v(pk)}, {v(x0)}, {v(x0+1)}")
        A(f"v_cvt_pk_bf16_f32 {v(pk+1)}, {v(x1)}, {v(x1+1)}")
        L.issue(f"ds_write_b64 {v(vRow)}, {v(pk,2)} offset:{528*r}")
    def mul2(dst, x, w):
        i0 = cmul(dst, x, w, T); i1 = cmul(dst + 2, x + 2, w + 2, T + 2)
        A(i0[0]); A(i1[0]); A(i0[1]); A(i1[1])
    def reads(dst, tag):
        for ks in range(8): L.issue(f"ds_read_b128 {v(dst+4*ks,4)}, {v(vOp)} offset:{32*ks}", (tag, ks))
    def mfmas(t, tag):
        for ks in range(8):
            L.need((tag, ks), ("B", ks))
            A(f"v_mfma_f32_16x16x32_bf16 {v(D+4*t,4)}, {v(AOP+4*ks,4)}, {v(BOP+4*ks,4)}, {v(D+4*t,4) if ks else 0}")
    BC = 12
    A(f"v_mov_b32 {v(PK[0])}, 0x3f80"); A(f"v_mov_b32 {v(PK[0]+1)}, 0x3f80")
    L.issue(f"ds_write_b64 {v(vRow)}, {v(PK[0],2)} offset:0"); cnt[0] += 1
    row(1, W8, W8 + 2)
    mul2(BC, W8, W8); row(2, BC, BC + 2)
    for r in range(3, 16):
        mul2(BC, BC, W8); row(r, BC, BC + 2)
    reads(BOP, "B")
    ch = lambda i: CH + 4 * i
    row(0, ch(0), ch(0) + 2)
    for i in range(1, 8):
        mul2(ch(i), ch(i-1), W1); row(i, ch(i), ch(i) + 2)
    for i in range(8):
        mul2(ch(i), ch(i), W128); row(8 + i, ch(i), ch(i) + 2)
    reads(AOP, "A0")
    seq1 = [0, 2, 4, 6, 0, 2, 4, 6, 0, 4, 0, 4, 0, 4, 0, 4]
    for r, i in enumerate(seq1):
        mul2(ch(i), ch(i), W128); row(r, ch(i), ch(i) + 2)
        if r == 3: mfmas(0, "A0")
    reads(AOP, "A1")
    for r in range(9):
        mul2(ch(0), ch(0), W128); row(r, ch(0), ch(0) + 2)
        if r == 3: mfmas(1, "A1")
    reads(AOP, "A2")
    mfmas(2, "A2")
    return D

def ktables(A, L, D, vKB, sc):
    D0, D1, D2 = D, D + 4, D + 8
    T = 64; AD = 12
    for k in range(4): A(f"v_mov_b32 {v(T+k)}, 0")
    A(f"v_lshl_add_u32 {v(AD)}, {v(vL)}, 4, {v(vKB)}")
    for k in range(4): L.issue(f"ds_write_b128 {v(AD)}, {v(T,4)} offset:{1024*k}")
    A(f"v_cmp_eq_u32 vcc, 32, {v(vL)}")
    A(f"v_lshlrev_b32 {v(AD)}, 5, {v(vI)}")
    A(f"v_lshl_add_u32 {v(AD)}, {v(vG)}, 9, {v(AD)}")
    A(f"v_add_u32 {v(AD)}, {v(AD)}, {v(vKB)}")
    A(f"v_add_u32 {v(AD)}, {4*(256+16)-4}, {v(AD)}")
    t1, t2, t3 = T + 8, T + 9, T + 10
    A(f"v_cndmask_b32 {v(t1)}, {v(D1+1)}, {v(D1)}, vcc")
    A(f"v_cndmask_b32 {v(t2)}, {v(D1+2)}, {v(D1+1)}, vcc")
    A(f"v_cndmask_b32 {v(t3)}, {v(D1+3)}, {v(T)}, vcc")
    A(f"v_cvt_pk_bf16_f32 {v(T+12)}, {v(D1)}, {v(D1+1)}")
    A(f"v_cvt_pk_bf16_f32 {v(T+13)}, {v(D1+2)}, {v(D1+3)}")
    A(f"v_cndmask_b32 {v(T+12)}, {v(T+12)}, {v(T)}, vcc")
    cv = lambda d, lo, hi: A(f"v_cvt_pk_bf16_f32 {v(d)}, {v(lo)}, {v(hi)}")
    cv(T, D1, D1); cv(T+1, D1, D1); cv(T+2, t1, D1); cv(T+3, t2, t1)
    cv(T+4, t2, t2); cv(T+5, t2, t2); cv(T+6, t3, t2); cv(T+7, t3, t3)
    A("s_mov_b32 exec_hi, 1")
    L.issue(f"ds_write_b128 {v(AD)}, {v(T,4)} offset:4")
    L.issue(f"ds_write_b128 {v(AD)}, {v(T+4,4)} offset:20")
    L.issue(f"ds_write_b16 {v(AD)}, {v(T)}")
    A("s_mov_b32 exec_hi, -1")
    A(f"v_and_b32 {v(AD+1)}, 1, {v(vG)}"); A(f"v_lshrrev_b32 {v(AD+2)}, 1, {v(vG)}")
    A(f"v_lshlrev_b32 {v(AD)}, 5, {v(vI)}")
    A(f"v_lshl_add_u32 {v(AD)}, {v(AD+1)}, 4, {v(AD)}")
    A(f"v_lshl_add_u32 {v(AD)}, {v(AD+2)}, 9, {v(AD)}")
    A(f"v_add3_u32 {v(AD)}, {v(AD)}, {v(vKB)}, 64")
    cv(T, D0, D0+3); cv(T+1, D0+1, D0); cv(T+2, D0+2, D0+1); cv(T+3, D0+3, D0+2)
    L.issue(f"ds_write_b16 {v(AD)}, {v(T)}")
    L.issue(f"ds_write2_b32 {v(AD)}, {v(T+1)}, {v(T+2)} offset0:1 offset1:2")
    L.issue(f"ds_write_b32 {v(AD)}, {v(T+3)} offset:12")
    L.issue(f"ds_write_b16_d16_hi {v(AD)}, {v(T)} offset:18")
    A(f"v_and_b32 {v(AD+1)}, 1, {v(vI)}")
    A(f"v_lshrrev_b32 {v(AD+2)}, 1, {v(vI)}")
    A(f"v_lshlrev_b32 {v(AD)}, 2, {v(AD+2)}")
    A(f"v_lshl_add_u32 {v(AD)}, {v(vG)}, 6, {v(AD)}")
    A(f"v_mul_u32_u24 {v(AD+2)}, 260, {v(AD+1)}")
    A(f"v_add3_u32 {v(AD)}, {v(AD)}, {v(AD+2)}, {v(vKB)}")
    A(f"v_add_u32 {v(AD)}, {PB_E-68}, {v(AD)}")
    A("s_mov_b32 exec_lo, 0")
    L.issue(f"ds_write2_b32 {v(AD)}, {v(T+12)}, {v(T+13)} offset0:0 offset1:8")
    A("s_mov_b32 exec_lo, -1")
    A(f"v_lshlrev_b32 {v(AD)}, 1, {v(vI)}")
    A(f"v_lshl_add_u32 {v(AD)}, {v(vG)}, 7, {v(AD)}")
    A(f"v_lshl_add_u32 {v(AD)}, {v(AD+1)}, 2, {v(AD)}")
    A(f"v_add_u32 {v(AD)}, {v(AD)}, {v(vKB)}")
    A(f"v_add_u32 {v(AD)}, {PB_E+512+256-196}, {v(AD)}")
    A(f"v_add_u32 {v(AD+2)}, {PB_E+4*(63-16)}, {v(vKB)}")
    A(f"v_cmp_eq_u32 vcc, 0, {v(vL)}")
    cv(T, D2, D2+1); cv(T+1, D2+2, D2+3); cv(T+2, D2, D2)
    A(f"v_cndmask_b32 {v(AD+2)}, {v(AD)}, {v(AD+2)}, vcc")
    L.issue(f"ds_write_b16 {v(AD+2)}, {v(T)}")
    L.issue(f"ds_write_b16_d16_hi {v(AD)}, {v(T)} offset:32")
    L.issue(f"ds_write_b16 {v(AD)}, {v(T+1)} offset:64")
    L.issue(f"ds_write_b16_d16_hi {v(AD)}, {v(T+1)} offset:96")
    A(f"v_readlane_b32 {s(sc['sK'])}, {v(T+2)}, 0")
    A(f"v_lshlrev_b32 {v(AD)}, 2, {v(vI)}")
    A(f"v_add_u32 {v(AD)}, {v(AD)}, {v(vKB)}")
    A(f"v_lshlrev_b32 {v(AD+1)}, 5, {v(vG)}")
    A(f"v_sub_u32 {v(AD+1)}, {v(AD)}, {v(AD+1)}")
    A(f"v_add_u32 {v(AD+1)}, {4*26}, {v(AD+1)}")
    A(f"v_add_u32 {v(AD+2)}, 1024, {v(AD+1)}")
    A(f"v_add_u32 {v(AD+3)}, 2048, {v(AD+1)}")
    A(f"v_lshlrev_b32 {v(T)}, 4, {v(vG)}")
    A(f"v_sub_u32 {v(AD)}, {v(AD)}, {v(T)}")
    A(f"v_add_u32 {v(AD)}, {PB_E+4*13}, {v(AD)}")
    for dd in range(4): A(f"v_and_b32 {v(KC+dd)}, {s(sc['sK'])}, {v(KC+dd)}")
    for k in range(17):
        b = AD + 1 + k // 8; o = 32 * (k % 8)
        L.issue(f"ds_read2_b32 {v(KN+4*k,2)}, {v(b)} offset0:{o+6} offset1:{o+4}")
        L.issue(f"ds_read2_b32 {v(KN+4*k+2,2)}, {v(b)} offset0:{o+2} offset1:{o}")
    for reg, o0, n in ((KE, 0, 3), (KO, 64, 3), (K3, 128, 4)):
        for k in range(n):
            o = o0 + 16 * k
            L.issue(f"ds_read2_b32 {v(reg+4*k,2)}, {v(AD)} offset0:{o+3} offset1:{o+2}")
            L.issue(f"ds_read2_b32 {v(reg+4*k+2,2)}, {v(AD)} offset0:{o+1} offset1:{o}")

def normalize(A, L, ST, vW, D1P):
    RS, MB, PX, XN, UP, EP = 160, 168, 176, 208, 216, 232 - 16
    for c in range(4):
        for rr in range(8):
            src = XR + 2 * rr + (c >> 1); d = PX + 8 * c + rr
            A(f"v_lshlrev_b32 {v(d)}, 16, {v(src)}" if c % 2 == 0 else f"v_and_b32 {v(d)}, {MASKHI}, {v(src)}")
    for rr in range(8):
        A(f"v_and_b32 {v(RS+rr)}, {MASKHI}, {v(ST+2*rr)}")
        A(f"v_lshlrev_b32 {v(MB+rr)}, 16, {v(ST+2*rr)}")
        A(f"v_rcp_f32 {v(RS+rr)}, {v(RS+rr)}")
    for a_ in range(4):
        A(f"v_pk_mul_f32 {v(MB+2*a_,2)}, {v(MB+2*a_,2)}, {v(RS+2*a_,2)} neg_lo:[1,0] neg_hi:[1,0]")
    for c in range(4):
        up = 216 + 8 * (c & 1); ep = up + 4
        sel = "op_sel:[0,0,0] op_sel_hi:[1,0,1]" if c % 2 == 0 else "op_sel:[0,1,0] op_sel_hi:[1,1,1]"
        for a_ in range(4):
            A(f"v_pk_fma_f32 {v(XN+2*a_,2)}, {v(PX+8*c+2*a_,2)}, {v(RS+2*a_,2)}, {v(MB+2*a_,2)}")
        for a_ in range(4):
            A(f"v_cvt_pk_bf16_f32 {v(up+a_)}, {v(XN+2*a_)}, {v(XN+2*a_+1)}")
            A(f"v_pk_fma_f32 {v(XN+2*a_,2)}, {v(XN+2*a_,2)}, {v(D1P+2*(c>>1),2)}, {v(PX+8*c+2*a_,2)} {sel}")
        for a_ in range(4):
            A(f"v_cvt_pk_bf16_f32 {v(ep+a_)}, {v(XN+2*a_)}, {v(XN+2*a_+1)}")
        L.issue(f"ds_write_b128 {v(vW)}, {v(up,4)} offset:{c*UST+512}")
        L.issue(f"ds_write_b128 {v(vW)}, {v(ep,4)} offset:{EBASE+c*EST}")

def convloop(A, L, vU, vE):
    B5, B3, B9, B7 = BAND, BAND + 4, BAND + 8, BAND + 12
    mf = lambda d, x, y, c_: f"v_mfma_f32_16x16x32_bf16 {v(d,4)}, {v(x,4)}, {v(y,4)}, {c_}"
    acc = lambda c: ACC + 4 * c
    main = []; pos = {}
    ub = lambda o: UB + 4 * ((o + 7) % NUB)
    last_use = {}
    def add(text, needs=(), key=None):
        main.append((text, needs))
        if key: pos[key] = len(main) - 1
    for o in range(-7, 57):
        pos[("first", o)] = len(main)
        cs = [c for c in range(8) if 0 <= 8 * c - o <= 16]
        for c in cs:
            add(mf(acc(c), KN + 4 * (8 * c - o), ub(o), v(acc(c), 4)), (("U", o),), ("near", c, o))
        if o >= 0 and o % 8 == 0:
            cp = o // 8
            if cp <= 5:
                add(mf(BOXD + 8, ub(o), B5, 0), (), ("bx", cp, "O0")); add(mf(BOXD + 12, ub(o), B3, 0), (), ("bx", cp, "O1"))
            if cp <= 3:
                add(mf(BOXD + 20, ub(o), B7, 0), (), ("bx", cp, "S1"))
                add(mf(acc(cp + 4), KC, ub(o), v(acc(cp + 4), 4)), (), ("corr", cp))
            pos[("lastU", o)] = len(main) - 1
            if cp <= 5:
                add(mf(BOXD, U24, B5, 0), (("U24", cp),), ("bx", cp, "E0")); add(mf(BOXD + 4, U24, B3, 0), (), ("bx", cp, "E1"))
            if cp <= 3:
                add(mf(BOXD + 16, U24, B9, 0), (), ("bx", cp, "S0"))
            pos[("lastU24", cp)] = len(main) - 1
        else:
            pos[("lastU", o)] = len(main) - 1
        if o >= 0:
            cp, ph = o // 8, o % 8
            if ph == 2 and cp <= 5:
                pos[("far", cp, "O")] = len(main)
                for dl in (2, 3, 4):
                    if cp + dl <= 7: add(mf(acc(cp + dl), BOXOP + 4, KO + 4 * (dl - 2), v(acc(cp + dl), 4)))
                pos[("farend", cp, "O")] = len(main) - 1
            if ph == 3 and cp <= 5:
                pos[("far", cp, "E")] = len(main)
                for dl in (2, 3, 4):
                    if cp + dl <= 7: add(mf(acc(cp + dl), BOXOP, KE + 4 * (dl - 2), v(acc(cp + dl), 4)))
                pos[("farend", cp, "E")] = len(main) - 1
            if ph == 4 and cp <= 3:
                pos[("far", cp, "S")] = len(main)
                for dl in (4, 5, 6, 7):
                    if cp + dl <= 7: add(mf(acc(cp + dl), BOXOP + 8, K3 + 4 * (dl - 4), v(acc(cp + dl), 4)))
                pos[("farend", cp, "S")] = len(main) - 1
    N = len(main)
    F = []
    for o in range(-7, 57):
        prev = o - NUB
        after = pos[("lastU", prev)] if prev >= -7 else -1
        F.append(dict(text=f"ds_read_b128 {v(ub(o),4)}, {v(vU)} offset:{64*(o+7)}", after=after,
                      before=max(after + 1, pos[("first", o)] - 6), tag=("U", o), lds=True, chain="U"))
    for cp in range(6):
        after = pos[("lastU24", cp - 1)] if cp else -1
        F.append(dict(text=f"ds_read_b128 {v(U24,4)}, {v(vU)} offset:{432+512*cp}", after=after,
                      before=max(after + 1, pos[("bx", cp, "E0")] - 8), tag=("U24", cp), lds=True))
    first = {}
    for i, (t, _) in enumerate(main):
        for c in range(8):
            if t.split()[1].rstrip(",") == v(acc(c), 4) and c not in first: first[c] = i
    EP = [BOXD + 2 * c for c in range(8)]
    for c in range(8):
        dl = min(first[c], pos[("bx", 0, "O0")])
        F.append(dict(text=f"ds_read_b64 {v(EP[c],2)}, {v(vE)} offset:{512*c}", after=-1, before=max(0, dl - 6) if c > 1 else 0,
                      tag=("e", c), lds=True, chain=("e", c)))
        for k in range(4):
            t = (f"v_lshlrev_b32 {v(acc(c)+k)}, 16, {v(EP[c]+k//2)}" if k % 2 == 0 else
                 f"v_and_b32 {v(acc(c)+k)}, {MASKHI}, {v(EP[c]+k//2)}")
            F.append(dict(text=t, after=-1 if c <= 1 else 1, before=max(0, dl - 1), needs=(("e", c),), chain=("e", c)))
    for cp in range(6):
        for nm, d0, op in (("O", BOXD + 8, BOXOP + 4), ("E", BOXD, BOXOP), ("S", BOXD + 16, BOXOP + 8)):
            if nm == "S" and cp > 3: continue
            after = max(pos[("bx", cp, nm + "0")], pos[("bx", cp, nm + "1")]) + 3
            if cp: after = max(after, pos[("farend", cp - 1, nm)])
            for dd in range(4):
                F.append(dict(text=f"v_cvt_pk_bf16_f32 {v(op+dd)}, {v(d0+dd)}, {v(d0+4+dd)}", after=after,
                              before=pos[("far", cp, nm)] - 1))
    OT = [12, 14]
    tail = []
    for c in range(8):
        done = pos[("near", c, 8 * c)]
        t = OT[c & 1]
        ins = [f"v_cvt_pk_bf16_f32 {v(t)}, {v(acc(c))}, {v(acc(c)+1)}", f"v_cvt_pk_bf16_f32 {v(t+1)}, {v(acc(c)+2)}, {v(acc(c)+3)}"]
        w = f"ds_write_b64 {v(vE)}, {v(t,2)} offset:{512*c}"
        if done + 4 < N:
            for x in ins: F.append(dict(text=x, after=done + 4, before=min(N, done + 12), chain=("o", c)))
            F.append(dict(text=w, after=done + 4, before=min(N, done + 13), lds=True, chain=("o", c)))
        else:
            tail += [(x, False) for x in ins] + [(w, True)]
    schedule(A, L, main, F)
    for x, l in tail:
        if l: L.issue(x)
        else: A(x)
    return N

def gen_conv(A, name):
    head(A, name)
    A("s_cmp_ge_u32 s2, 256"); A(f"s_cbranch_scc1 {name}_end")
    L = Lgkm(A)
    for d, k in ((4, "x"), (8, "lar"), (12, "aim"), (16, "cre"), (20, "cim"), (24, "ldt"), (28, "dsk"), (32, "out"), (36, "ws")):
        srd_load(A, d, k)
    sc = dict(sL=40, sLlo=41, sK=42, sW=43, sCG=44, sWV=45)
    A("s_and_b32 s44, s2, 7"); A("s_lshl_b32 s44, s44, 5"); A("s_lshr_b32 s3, s2, 3"); A("s_add_u32 s44, s44, s3")
    A(f"v_and_b32 {v(vL)}, 63, v0"); A(f"v_and_b32 {v(vI)}, 15, v0"); A(f"v_bfe_u32 {v(vG)}, v0, 4, 2")
    A("v_lshrrev_b32 v4, 6, v0"); A("v_readfirstlane_b32 s45, v4")
    A(f"s_mov_b32 s40, {f32bits(L_HI)}"); A(f"s_mov_b32 s41, {f32bits(L_LO)}")
    A("s_lshl_b32 s46, s44, 2"); A("s_add_u32 s46, s46, s45")
    A("s_lshl_b32 s47, s46, 8"); A("s_lshl_b32 s48, s46, 1"); A("s_lshl_b32 s49, s44, 3")
    A(f"v_lshl_add_u32 v4, {v(vL)}, 2, s47")
    A("v_mov_b32 v5, s48"); A("v_mov_b32 v6, s49")
    A("v_lshlrev_b32 v7, 14, v0"); A("v_add_u32 v7, s49, v7")
    A("v_lshlrev_b32 v8, 6, v0")
    for k in range(1, 4): A(f"s_mov_b32 {s(52+k)}, {4096*k}")
    A("s_waitcnt lgkmcnt(0)")
    for d, k in ((4, "x"), (8, "lar"), (12, "aim"), (16, "cre"), (20, "cim"), (24, "ldt"), (28, "dsk"), (32, "out")):
        srd_fin(A, d, k)
    srd_fin(A, 36, "ws", size=16384)
    A("buffer_load_ushort v15, v5, s[24:27], 0 offen")
    for k, d in enumerate((8, 12, 16, 20)): A(f"buffer_load_dword {v(16+k)}, v4, {s(d,4)}, 0 offen")
    D1P = 232
    A(f"buffer_load_dwordx2 {v(D1P+4,2)}, v6, s[28:31], 0 offen")
    for rr in range(8):
        so = "0" if rr < 2 else s(52 + rr // 2)
        A(f"buffer_load_dwordx2 {v(XR+2*rr,2)}, v7, s[4:7], {so} offen offset:{2048*(rr&1)}")
    ST = 144
    for k in range(4): A(f"buffer_load_dwordx4 {v(ST+4*k,4)}, v8, s[36:39], 0 offen offset:{16*k}")
    vSH = 4
    A(f"v_lshlrev_b32 {v(vSH)}, 3, {v(vG)}"); A(f"v_sub_u32 {v(vSH)}, {v(vSH)}, {v(vI)}")
    A(f"v_add_u32 {v(vSH)}, 15, {v(vSH)}"); A(f"v_min_u32 {v(vSH)}, 31, {v(vSH)}")
    for k, (lo, hi) in enumerate(((6, 10), (3, 5), (4, 12), (5, 11))): band(A, BAND + 4 * k, vSH, lo, hi, 0x3f80, 5, 6, 7, 43)
    band(A, KC, vSH, 12, 13, 0xffff, 5, 6, 7, 43)
    vKB, vRow, vOp, vU, vE, vW = 4, 5, 6, 7, 8, 9
    A(f"s_mul_i32 s50, s45, {KST}"); A(f"s_add_u32 s50, s50, {KBASE}")
    A(f"v_mov_b32 {v(vKB)}, s50")
    A(f"v_lshl_add_u32 {v(vRow)}, {v(vL)}, 3, s50")
    A(f"v_mul_u32_u24 {v(vOp)}, 528, {v(vI)}")
    A(f"v_and_b32 v10, 1, {v(vG)}"); A(f"v_lshl_add_u32 {v(vOp)}, v10, 8, {v(vOp)}")
    A(f"v_lshrrev_b32 v10, 1, {v(vG)}"); A(f"v_lshl_add_u32 {v(vOp)}, v10, 4, {v(vOp)}")
    A(f"v_add_u32 {v(vOp)}, s50, {v(vOp)}")
    A(f"s_mul_i32 s51, s45, {UST}")
    A(f"v_lshlrev_b32 v10, 5, {v(vI)}")
    A(f"v_lshl_add_u32 {v(vU)}, {v(vG)}, 4, v10"); A(f"v_add3_u32 {v(vU)}, {v(vU)}, s51, 32")
    A(f"s_mul_i32 s52, s45, {EST}"); A(f"s_add_u32 s52, s52, {EBASE}")
    A(f"v_lshl_add_u32 {v(vE)}, {v(vG)}, 3, v10"); A(f"v_add_u32 {v(vE)}, s52, {v(vE)}")
    A(f"v_lshlrev_b32 {v(vW)}, 4, v0")
    A("v_mov_b32 v12, 0"); A("v_mov_b32 v13, 0"); A(f"v_lshl_add_u32 v10, {v(vL)}, 3, s51")
    L.issue("ds_write_b64 v10, v[12:13]")
    A("s_waitcnt vmcnt(13)")
    D = kgen(A, L, vRow, vOp, sc)
    ktables(A, L, D, vKB, sc)
    A("s_waitcnt vmcnt(0)")
    for k in range(2):
        A(f"v_lshlrev_b32 {v(D1P+2*k)}, 16, {v(D1P+4+k)}"); A(f"v_and_b32 {v(D1P+2*k+1)}, {MASKHI}, {v(D1P+4+k)}")
    for k in range(4): A(f"v_add_f32 {v(D1P+k)}, 1.0, {v(D1P+k)}")
    normalize(A, L, ST, vW, D1P)
    L.drain(); A("s_barrier")
    n = convloop(A, L, vU, vE)
    L.drain(); A("s_barrier")
    A(f"v_bfe_u32 v10, v0, 2, 2"); A(f"v_mul_u32_u24 v10, {EST}, v10")
    A("v_lshrrev_b32 v11, 4, v0"); A("v_lshl_add_u32 v10, v11, 5, v10")
    A("v_and_b32 v11, 3, v0"); A("v_lshl_add_u32 v10, v11, 3, v10")
    A("v_lshlrev_b32 v11, 11, v0"); A("v_add_u32 v11, s49, v11")
    for c in range(8): L.issue(f"ds_read_b64_tr_b16 {v(16+2*c,2)}, v10 offset:{EBASE+512*c}", ("t", c))
    for c in range(8):
        A(f"s_mov_b32 s53, {c*524288}")
        L.need(("t", c))
        A(f"buffer_store_dwordx2 {v(16+2*c,2)}, v11, s[32:35], s53 offen")
    A(f"{name}_end:"); A("s_endpgm")
    return dict(vgpr=256, sgpr=64)

FFN_LDS = 98304 + 8192
def gen_ffn(A, name):
    head(A, name)
    A("s_cmp_ge_u32 s2, 224"); A(f"s_cbranch_scc1 {name}_end")
    L = Lgkm(A)
    for d, k in ((4, "x"), (8, "wg"), (12, "wu"), (16, "wd"), (20, "ws"), (24, "ws")): srd_load(A, d, k)
    A(f"v_and_b32 {v(vL)}, 63, v0"); A(f"v_and_b32 {v(vI)}, 15, v0"); A(f"v_bfe_u32 {v(vG)}, v0, 4, 2")
    A("v_lshrrev_b32 v4, 6, v0"); A("v_readfirstlane_b32 s45, v4")
    A("s_lshl_b32 s46, s2, 5")
    A(f"v_bfe_u32 v5, {v(vL)}, 1, 2"); A(f"v_bfe_u32 v6, {v(vL)}, 3, 2"); A(f"v_lshrrev_b32 v7, 5, {v(vL)}")
    A("v_lshl_add_u32 v5, v6, 3, v5"); A("v_lshl_add_u32 v5, v7, 2, v5")
    A("v_lshl_add_u32 v5, v4, 8, v5")
    A("v_mul_u32_u24 v5, 7168, v5")
    A(f"v_and_b32 v6, 1, {v(vL)}"); A("v_lshlrev_b32 v6, 4, v6")
    A("v_add3_u32 v5, v5, v6, s46")
    A(f"v_bfe_u32 v8, {v(vL)}, 1, 4"); A("v_lshlrev_b32 v8, 11, v8")
    A("v_lshl_add_u32 v8, v7, 5, v8"); A("v_add_u32 v8, v8, v6"); A("v_lshl_add_u32 v8, v4, 9, v8")
    A("s_lshl_b32 s47, s2, 15"); A("v_add_u32 v8, s47, v8")
    A(f"v_lshlrev_b32 v9, 4, {v(vL)}")
    A("s_waitcnt lgkmcnt(0)")
    for d, k in ((4, "x"), (8, "wg"), (12, "wu"), (16, "wd")): srd_fin(A, d, k)
    srd_fin(A, 20, "ws", size=65536); srd_fin(A, 24, "ws", add=WS_PART, size=256*224*128)
    KEY = 32
    for k in range(4): A(f"s_mov_b32 {s(52+k)}, {4096*k}")
    for k in range(16): A(f"buffer_load_dwordx4 {v(KEY+4*k,4)}, v9, s[20:23], {s(52+k//4)} offen offset:{1024*(k%4)}")
    A("s_lshl_b32 s48, s45, 13")
    for q in range(8):
        A(f"s_mov_b32 s49, {229376*q}")
        A(f"s_add_u32 m0, s48, {1024*q}")
        A("buffer_load_dwordx4 v5, s[8:11], s49 offen lds")
        A(f"s_add_u32 m0, s48, {32768+1024*q}")
        A("buffer_load_dwordx4 v5, s[12:15], s49 offen lds")
    for q in range(8):
        A(f"s_mov_b32 s49, {64*q}")
        A(f"s_add_u32 m0, s48, {65536+1024*q}")
        A("buffer_load_dwordx4 v8, s[16:19], s49 offen lds")
    A("s_waitcnt vmcnt(24)")
    KK = 96
    A(f"v_lshlrev_b32 v10, 1, {v(vL)}"); A("v_sub_u32 v10, 0x7ff, v10")
    for k in range(16):
        for h in range(2):
            src = KEY + 4 * k + 1 + 2 * h; d = KK + 2 * k + h
            A(f"v_lshlrev_b32 {v(d)}, 16, {v(src)}")
            A(f"v_ashrrev_i32 v11, 31, {v(d)}")
            A(f"v_or_b32 v11, 0x80000000, v11")
            A(f"v_xor_b32 {v(d)}, {v(d)}, v11")
            A(f"v_and_b32 {v(d)}, {MASKHI}, {v(d)}")
            A(f"v_subrev_u32 v11, {128*k+h}, v10")
            A(f"v_or_b32 {v(d)}, {v(d)}, v11")
    SK = 60
    for it in range(8):
        A(f"v_max3_u32 v10, {v(KK)}, {v(KK+1)}, {v(KK+2)}")
        for k in range(3, 31, 2): A(f"v_max3_u32 v10, v10, {v(KK+k)}, {v(KK+k+1)}")
        A(f"v_max_u32 v10, v10, {v(KK+31)}")
        for n in (8, 4, 2, 1): A(dpp("v_max_u32", 10, 10, 10, f"row_ror:{n}"))
        A("v_mov_b32 v11, v10"); A("v_permlane16_swap_b32 v10, v11"); A("v_max_u32 v10, v10, v11")
        A("v_mov_b32 v11, v10"); A("v_permlane32_swap_b32 v10, v11"); A("v_max_u32 v10, v10, v11")
        A(f"v_readfirstlane_b32 {s(SK+it)}, v10")
        if it < 7:
            for k in range(32):
                A(f"v_cmp_ne_u32 vcc, v10, {v(KK+k)}")
                A(f"v_cndmask_b32 {v(KK+k)}, 0, {v(KK+k)}, vcc")
    IDX = 12
    A(f"v_and_b32 v10, 7, {v(vL)}")
    A(f"v_mov_b32 {v(IDX)}, {s(SK)}")
    for it in range(1, 8):
        A(f"v_cmp_eq_u32 vcc, {it}, v10"); A(f"v_mov_b32 v11, {s(SK+it)}")
        A(f"v_cndmask_b32 {v(IDX)}, {v(IDX)}, v11, vcc")
    A(f"v_and_b32 {v(IDX)}, 0x7ff, {v(IDX)}"); A(f"v_sub_u32 {v(IDX)}, 0x7ff, {v(IDX)}")
    STT = 14
    A(f"v_lshlrev_b32 v10, 3, {v(IDX)}")
    A(f"buffer_load_dwordx2 {v(STT,2)}, v10, s[20:23], 0 offen")
    XB = 32
    A(f"v_cmp_eq_u32 vcc, 8, {v(vI)}"); A("v_mov_b32 v11, 0x3f803f80")
    A(f"v_cndmask_b32 {v(XB)}, 0, v11, vcc")
    for k in range(1, 32): A(f"v_mov_b32 {v(XB+k)}, {v(XB)}")
    A(f"v_lshlrev_b32 v10, 11, {v(IDX)}"); A(f"v_lshl_add_u32 v10, {v(vG)}, 4, v10"); A("v_lshl_add_u32 v10, v4, 9, v10")
    A("s_mov_b32 exec_lo, 0x00ff00ff"); A("s_mov_b32 exec_hi, 0x00ff00ff")
    for ks in range(8): A(f"buffer_load_dwordx4 {v(XB+4*ks,4)}, v10, s[4:7], 0 offen offset:{64*ks}")
    A("s_mov_b64 exec, -1")
    vT = 13
    A(f"v_lshlrev_b32 {v(vT)}, 3, {v(vL)}"); A(f"v_add_u32 {v(vT)}, s48, {v(vT)}")
    A("s_waitcnt vmcnt(9)")
    AG, AU, AD_ = 64, 96, 128
    for ks in range(8):
        for base, reg in ((0, AG), (32768, AU)):
            for h in range(2): L.issue(f"ds_read_b64_tr_b16 {v(reg+4*ks+2*h,2)}, {v(vT)} offset:{base+1024*ks+512*h}", (reg, ks))
    A(f"v_add_u32 v11, 65536, {v(vT)}")
    for q in range(8):
        for h in range(2): L.issue(f"ds_read_b64_tr_b16 {v(AD_+4*q+2*h,2)}, v11 offset:{1024*q+512*h}", (AD_, q))
    L.drain()
    A("s_waitcnt vmcnt(0)")
    DG, DU = 16, 20
    for ks in range(8):
        A(f"v_mfma_f32_16x16x32_bf16 {v(DG,4)}, {v(AG+4*ks,4)}, {v(XB+4*ks,4)}, {v(DG,4) if ks else 0}")
        A(f"v_mfma_f32_16x16x32_bf16 {v(DU,4)}, {v(AU+4*ks,4)}, {v(XB+4*ks,4)}, {v(DU,4) if ks else 0}")
    RED = 98304
    A(f"v_lshlrev_b32 v10, 6, {v(vI)}"); A(f"v_lshl_add_u32 v10, {v(vG)}, 4, v10"); A("v_lshl_add_u32 v10, v4, 10, v10")
    A(f"v_add_u32 v10, {RED}, v10")
    L.issue(f"ds_write_b128 v10, {v(DG,4)}"); L.issue(f"ds_write_b128 v10, {v(DU,4)} offset:4096")
    A(f"v_lshrrev_b32 v11, 3, {v(vI)}"); A(f"v_lshlrev_b32 v11, 3, v11"); A(f"v_lshl_add_u32 v11, {v(vG)}, 4, v11")
    A(f"v_add_u32 v11, {RED}, v11")
    A(f"v_and_b32 v10, 7, {v(vI)}"); A("v_lshl_add_u32 v10, v10, 6, v11")
    L.drain(); A("s_barrier")
    P = 64
    for m_ in range(2):
        for w in range(4):
            L.issue(f"ds_read_b64 {v(P+16*m_+2*w,2)}, v10 offset:{4096*m_+1024*w}")
            L.issue(f"ds_read_b64 {v(P+16*m_+8+2*w,2)}, v11 offset:{4096*m_+1024*w+512}")
    MM, RS = 24, 25
    A(f"v_lshlrev_b32 {v(MM)}, 16, {v(STT)}"); A(f"v_and_b32 {v(RS)}, {MASKHI}, {v(STT)}"); A(f"v_rcp_f32 {v(RS)}, {v(RS)}")
    L.drain()
    for q in range(4):
        b = P + 8 * q
        A(f"v_pk_add_f32 {v(b,2)}, {v(b,2)}, {v(b+2,2)}"); A(f"v_pk_add_f32 {v(b+4,2)}, {v(b+4,2)}, {v(b+6,2)}")
        A(f"v_pk_add_f32 {v(b,2)}, {v(b,2)}, {v(b+4,2)}")
    for m_ in range(2):
        b = P + 16 * m_
        A(f"v_pk_fma_f32 {v(b,2)}, {v(b+8,2)}, {v(MM,2)}, {v(b,2)} op_sel:[0,0,0] op_sel_hi:[1,0,1] neg_lo:[1,0,0] neg_hi:[1,0,0]")
        A(f"v_pk_mul_f32 {v(b,2)}, {v(b,2)}, {v(MM,2)} op_sel:[0,1] op_sel_hi:[1,1]")
    G, U_, T = P, P + 16, P + 2
    for h in range(2): A(f"v_mul_f32 {v(T+h)}, {f32bits(-LOG2E)}, {v(G+h)}")
    for h in range(2): A(f"v_exp_f32 {v(T+h)}, {v(T+h)}")
    for h in range(2): A(f"v_add_f32 {v(T+h)}, 1.0, {v(T+h)}")
    for h in range(2): A(f"v_rcp_f32 {v(T+h)}, {v(T+h)}")
    A(f"v_pk_mul_f32 {v(G,2)}, {v(G,2)}, {v(U_,2)}")
    A(f"v_pk_mul_f32 {v(G,2)}, {v(G,2)}, {v(T,2)}")
    A(f"v_cvt_pk_bf16_f32 {v(G)}, {v(G)}, {v(G+1)}")
    A(f"v_mov_b32_dpp {v(G+1)}, {v(G)} row_ror:8 row_mask:0xf bank_mask:0xf")
    HB = 28
    A(f"v_cmp_gt_u32 vcc, 8, {v(vI)}")
    A(f"v_cndmask_b32 {v(HB)}, 0, {v(G)}, vcc"); A(f"v_cndmask_b32 {v(HB+1)}, 0, {v(G+1)}, vcc")
    A(f"v_cndmask_b32 {v(HB+2)}, {v(G+1)}, 0, vcc"); A(f"v_cndmask_b32 {v(HB+3)}, {v(G)}, 0, vcc")
    A(f"v_lshrrev_b32 v10, 3, {v(vI)}"); A(f"v_lshl_add_u32 v10, v10, 2, {v(vG)}"); A("v_lshl_add_u32 v10, v4, 6, v10")
    A("v_mul_u32_u24 v10, 28672, v10")
    A(f"v_and_b32 v11, 7, {v(vI)}"); A("v_lshlrev_b32 v11, 4, v11"); A("s_lshl_b32 s49, s2, 7")
    A("v_add3_u32 v10, v10, v11, s49")
    for q in range(8): A(f"v_mfma_f32_16x16x32_bf16 {v(32+4*q,4)}, {v(AD_+4*q,4)}, {v(HB,4)}, 0")
    for q in range(8):
        A(f"s_mov_b32 s49, {8*28672*q}")
        A(f"buffer_store_dwordx4 {v(32+4*q,4)}, v10, s[24:27], s49 offen")
    A("s_or_b32 s49, s2, s45"); A("s_cmp_lg_u32 s49, 0"); A(f"s_cbranch_scc1 {name}_end")
    A(f"v_lshlrev_b32 v16, 16, {v(STT+1)}")
    A(f"v_mul_f32 v16, {f32bits(-LOG2E)}, v16"); A("v_exp_f32 v16, v16"); A("v_add_f32 v16, 1.0, v16"); A("v_rcp_f32 v16, v16")
    A("v_cvt_pk_bf16_f32 v16, v16, v16"); A(f"v_and_b32 v17, {MASKHI}, v16"); A(f"v_mov_b32 v16, {v(IDX)}")
    A(f"v_lshlrev_b32 v10, 3, {v(vL)}"); A(f"v_add_u32 v10, {WS_SEL}, v10")
    A("s_mov_b64 exec, 0xff")
    A("buffer_store_dwordx2 v[16:17], v10, s[20:23], 0 offen")
    A(f"{name}_end:"); A("s_endpgm")
    return dict(vgpr=160, sgpr=72)

def gen_fix(A, name):
    head(A, name)
    A("s_cmp_ge_u32 s2, 256"); A(f"s_cbranch_scc1 {name}_end")
    L = Lgkm(A)
    for d, k in ((4, "out"), (20, "ws"), (24, "ws")): srd_load(A, d, k)
    A("s_mul_i32 s3, s2, 28672")
    A("v_lshl_add_u32 v4, v0, 4, s3")
    A("v_and_b32 v5, 7, v0"); A(f"v_lshlrev_b32 v6, 3, v5"); A(f"v_add_u32 v6, {WS_SEL}, v6")
    for k in range(7): A(f"s_mov_b32 {s(52+k)}, {4096*k}")
    A("s_waitcnt lgkmcnt(0)")
    srd_fin(A, 4, "out"); srd_fin(A, 20, "ws", size=65536); srd_fin(A, 24, "ws", add=WS_PART, size=256*224*128)
    A("buffer_load_dwordx2 v[8:9], v6, s[20:23], 0 offen")
    for k in range(7): A(f"buffer_load_dwordx4 {v(16+4*k,4)}, v4, s[24:27], {s(52+k)} offen")
    A("s_waitcnt vmcnt(7)")
    A("s_lshl_b32 s3, s2, 3"); A("v_lshl_add_u32 v7, v8, 11, s3")
    A("buffer_load_dwordx2 v[10:11], v7, s[4:7], 0 offen")
    A("s_waitcnt vmcnt(1)")
    for k in range(1, 7):
        A(f"v_pk_add_f32 v[16:17], v[16:17], {v(16+4*k,2)}"); A(f"v_pk_add_f32 v[18:19], v[18:19], {v(18+4*k,2)}")
    for k in range(4): A(dpp("v_add_f32", 16+k, 16+k, 16+k, "row_ror:8"))
    for sw in ("v_permlane16_swap_b32", "v_permlane32_swap_b32"):
        for k in range(4): A(f"v_mov_b32 {v(20+k)}, {v(16+k)}")
        for k in range(4): A(f"{sw} {v(16+k)}, {v(20+k)}")
        for k in range(4): A(f"v_add_f32 {v(16+k)}, {v(16+k)}, {v(20+k)}")
    A("v_lshrrev_b32 v12, 6, v0"); A("v_lshlrev_b32 v12, 7, v12"); A("v_lshl_add_u32 v12, v5, 4, v12")
    L.issue("ds_write_b128 v12, v[16:19]")
    L.drain(); A("s_barrier")
    A("v_lshlrev_b32 v12, 4, v5")
    for w in range(4): L.issue(f"ds_read_b128 {v(16+4*w,4)}, v12 offset:{128*w}")
    L.drain()
    for k in range(1, 4):
        A(f"v_pk_add_f32 v[16:17], v[16:17], {v(16+4*k,2)}"); A(f"v_pk_add_f32 v[18:19], v[18:19], {v(18+4*k,2)}")
    A("s_waitcnt vmcnt(0)")
    A("v_lshlrev_b32 v20, 16, v10"); A(f"v_and_b32 v21, {MASKHI}, v10"); A("v_lshlrev_b32 v22, 16, v11"); A(f"v_and_b32 v23, {MASKHI}, v11")
    for k in range(4): A(f"v_fma_f32 {v(16+k)}, {v(16+k)}, v9, {v(20+k)}")
    A("v_cvt_pk_bf16_f32 v16, v16, v17"); A("v_cvt_pk_bf16_f32 v17, v18, v19")
    A("v_cmp_gt_u32 vcc, 8, v0"); A("s_and_saveexec_b64 s[30:31], vcc"); A(f"s_cbranch_execz {name}_end")
    A("buffer_store_dwordx2 v[16:17], v7, s[4:7], 0 offen")
    A(f"{name}_end:"); A("s_endpgm")
    return dict(vgpr=48, sgpr=64)

def build(extra=()):
    ks = [("ln_kernel", gen_ln, 256, 0), ("conv_kernel", gen_conv, 256, CONV_LDS), ("ffn_kernel", gen_ffn, 224, FFN_LDS), ("fix_kernel", gen_fix, 256, 512)]
    out = []
    for nm, _, g, lds in ks: out.append(f"; @launch kernel={nm} grid=({g},1,1) block=(256,1,1) lds={lds}")
    out.append('.amdgcn_target "amdgcn-amd-amdhsa--gfx950"')
    txt = "\n".join(out) + "\n"; kds = ""
    for nm, fn, g, lds in ks:
        A = Asm(); r = fn(A, nm); txt += A.text()
        print(nm, "lines", len(A.lines), "auto nops", A.nauto, file=sys.stderr)
        kds += KD.format(name=nm, vgpr=r["vgpr"], sgpr=r["sgpr"], acc=(r["vgpr"] + 3) // 4 * 4)
    return txt + kds

if __name__ == "__main__":
    open(sys.argv[1], "w").write(build())
```

```python
import sys
import gen_v1 as G
from parts import *
def gen_empty(A, name):
    head(A, name); A("s_endpgm"); return dict(vgpr=8, sgpr=16)
def gen_stream(A, name, keys=("wg","wu","wd"), nper=7):
    head(A, name)
    A("s_cmp_ge_u32 s2, 256"); A(f"s_cbranch_scc1 {name}_end")
    for i,k in enumerate(keys): srd_load(A, 4+4*i, k)
    A("s_mul_i32 s3, s2, 28672"); A("v_lshl_add_u32 v4, v0, 4, s3")
    for k in range(7): A(f"s_mov_b32 {s(52+k)}, {4096*k}")
    A("s_waitcnt lgkmcnt(0)")
    for i,k in enumerate(keys): srd_fin(A, 4+4*i, k)
    for i,k in enumerate(keys):
        for q in range(nper): A(f"buffer_load_dwordx4 {v(8+4*(7*i+q),4)}, v4, {s(4+4*i,4)}, {s(52+q)} offen")
    A("s_waitcnt vmcnt(0)")
    A(f"{name}_end:"); A("s_endpgm")
    return dict(vgpr=96, sgpr=64)
def build(order):
    ks = dict(ln=("ln_kernel", G.gen_ln, 256, 0), conv=("conv_kernel", G.gen_conv, 256, G.CONV_LDS), ffn=("ffn_kernel", G.gen_ffn, 224, G.FFN_LDS),
              fix=("fix_kernel", G.gen_fix, 256, 512), empty=("empty_kernel", gen_empty, 256, 0), stream=("stream_kernel", gen_stream, 256, 0))
    out = []
    for o in order:
        nm, _, g, lds = ks[o]; out.append(f"; @launch kernel={nm} grid=({g},1,1) block=(256,1,1) lds={lds}")
    out.append('.amdgcn_target "amdgcn-amd-amdhsa--gfx950"')
    txt = "\n".join(out) + "\n"; kds = ""
    for o in dict.fromkeys(order):
        nm, fn, g, lds = ks[o]
        A = Asm(); r = fn(A, nm); txt += A.text()
        kds += KD.format(name=nm, vgpr=r["vgpr"], sgpr=r["sgpr"], acc=(r["vgpr"] + 3) // 4 * 4)
    return txt + kds
base = ["ln","conv","ffn","fix"]
V = dict(base=base, e4=base+["empty"]*4, e4front=["empty"]*4+base, s1=["stream"]+base, s2=["stream","stream"]+base, dup=["ln","conv","conv","ffn","fix"])
import os
os.makedirs("var", exist_ok=True)
for k, o in V.items(): open(f"var/{k}.s","w").write(build(o))
```

```python
import sys
from parts import *
import gen_v1 as G1
from gen_v1 import KN, KE, KO, K3, KC, BAND, ACC, UB, NUB, U24, BOXD, BOXOP, XR, vL, vI, vG, KST, PB_E

WS_ACK = 2048
WS_STATS = 4096
WS_H = 32768
WS_SEL = WS_H + 112 * 1024
WS_SIZE = WS_SEL + 128
WS_STAMP = 128 << 20
SPIN_MAX = 1 << 20

UST = 4608; EBASE = 8 * UST; EST = 4160; WDB = EBASE + 8 * EST; REDB = WDB + 57344
LDS_TOTAL = 147456 + 1024

class Opt:
    stamps = False
    poll_sleep = 2
    aux_first_sleep = 8
    dma_early = 0

class Stamper:
    def __init__(self, A, on, base=70):
        self.A = A; self.on = on; self.n = 0; self.base = base
    def __call__(self, L=None):
        if not self.on: return
        A = self.A
        if L is not None: L.drain()
        A("s_memrealtime s[68:69]"); A("s_waitcnt lgkmcnt(0)"); A(f"s_mov_b32 {s(self.base+self.n)}, s68")
        self.n += 1
    def flush(self, sWave, uid):
        if not self.on: return
        A = self.A
        A(f"s_and_b32 s68, {s(sWave)}, 3"); A("s_cmp_lg_u32 s68, 0"); A(f"s_cbranch_scc1 L_nostamp_{uid}")
        A("s_mov_b64 exec, -1")
        A(f"s_load_dwordx2 s[64:65], s[0:1], {OFF['ws']}"); A("s_waitcnt lgkmcnt(0)")
        A(f"s_add_u32 s64, s64, {WS_STAMP}"); A("s_addc_u32 s65, s65, 0"); A("s_mov_b32 s66, 0x20000"); A("s_mov_b32 s67, 0x00020000")
        A("v_mov_b32 v2, 0")
        for j in range(self.n): A(f"v_writelane_b32 v2, {s(self.base+j)}, {j}")
        A(f"s_mov_b32 s68, {self.n}"); A("v_writelane_b32 v2, s68, 30")
        A("s_mov_b32 s68, 0x5a5a5a5a"); A("v_writelane_b32 v2, s68, 31")
        A(f"s_lshr_b32 s68, {s(sWave)}, 2"); A("s_lshl_b32 s69, s2, 1"); A("s_add_u32 s68, s68, s69"); A("s_lshl_b32 s68, s68, 7")
        A("v_and_b32 v3, 63, v0"); A("v_lshl_add_u32 v3, v3, 2, s68")
        A("s_mov_b64 exec, 0xffffffff")
        A("buffer_store_dword v2, v3, s[64:67], 0 offen")
        A(f"L_nostamp_{uid}:")

def tag_from_epoch(A, sE, sT):
    A(f"s_mul_i32 {s(sT)}, {s(sE)}, 0x9e3779b1"); A(f"s_add_u32 {s(sT)}, {s(sT)}, 0x7f4a7c15")

def poll(A, uid, loads, tagregs, sT, sCnt, vT, sleep):
    A(f"s_mov_b32 {s(sCnt)}, 0")
    A(f"L_poll_{uid}:")
    for x in loads: A(x)
    A("s_waitcnt vmcnt(0)")
    A(f"v_xor_b32 {v(vT)}, {s(sT)}, {v(tagregs[0])}")
    for r in tagregs[1:]: A(f"v_bitop3_b32 {v(vT)}, {v(vT)}, {v(r)}, {s(sT)} bitop3:0xf6")
    A(f"v_cmp_ne_u32 vcc, 0, {v(vT)}")
    A(f"s_cbranch_vccz L_polled_{uid}")
    A(f"s_add_u32 {s(sCnt)}, {s(sCnt)}, 1"); A(f"s_cmp_ge_u32 {s(sCnt)}, {SPIN_MAX}"); A(f"s_cbranch_scc1 L_polled_{uid}")
    if sleep: A(f"s_sleep {sleep}")
    A(f"s_branch L_poll_{uid}")
    A(f"L_polled_{uid}:")

def gen_aux(A, O):
    L = Lgkm(A); ST = Stamper(A, O.stamps)
    ST()
    for d, k in ((4, "x"), (8, "wr"), (12, "ws"), (16, "wg"), (20, "wu")): srd_load(A, d, k)
    sA, sW, sE, sT = 30, 31, 28, 29
    A("s_and_b32 s30, s2, 7"); A("s_lshl_b32 s30, s30, 4"); A("s_add_u32 s30, s30, s3")
    A(f"v_and_b32 {v(vL)}, 63, v0"); A(f"v_and_b32 {v(vI)}, 15, v0"); A(f"v_bfe_u32 {v(vG)}, v0, 4, 2")
    A("v_lshrrev_b32 v29, 6, v0"); A("v_readfirstlane_b32 s31, v29")
    A("s_lshl_b32 s32, s30, 15")
    A("v_lshlrev_b32 v30, 12, v29"); A(f"v_lshlrev_b32 v28, 4, {v(vL)}"); A("v_add3_u32 v30, v30, v28, s32")
    A("s_waitcnt lgkmcnt(0)")
    A("s_load_dword s28, s[12:13], 0")
    srd_fin(A, 4, "x"); srd_fin(A, 8, "wr")
    for k in range(4): A(f"buffer_load_dwordx4 {v(4+4*k,4)}, v30, s[4:7], 0 offen offset:{1024*k}")
    for k in range(2): A(f"buffer_load_dwordx4 {v(20+4*k,4)}, v28, s[8:11], 0 offen offset:{1024*k}")
    srd_fin(A, 12, "ws", size=WS_SIZE); srd_fin(A, 16, "wg"); srd_fin(A, 20, "wu")
    CTL = 131072 + 8192
    A("v_mov_b32 v96, 0"); A("v_mov_b32 v97, 0"); A(f"v_lshlrev_b32 v98, 3, {v(vL)}"); A(f"v_add_u32 v98, {CTL}, v98")
    A("s_cmp_lg_u32 s31, 0"); A("s_cbranch_scc1 L_aux_noz")
    A("ds_write_b64 v98, v[96:97]")
    A("L_aux_noz:")
    A(f"v_bfe_u32 v96, {v(vL)}, 2, 2"); A(f"v_lshl_add_u32 v96, {v(vG)}, 3, v96")
    A("v_mul_u32_u24 v96, 7168, v96")
    A(f"v_and_b32 v97, 1, {v(vG)}"); A("v_lshlrev_b32 v97, 1, v97"); A(f"v_and_b32 v98, 3, {v(vL)}"); A("v_xor_b32 v97, v97, v98")
    A("s_lshl_b32 s33, s30, 6")
    A("v_lshl_add_u32 v96, v97, 4, v96"); A("v_add_u32 v96, s33, v96")
    vDMA = 96
    def dma(lo, hi):
        for j in range(lo, hi):
            sub, mat, q = j >> 4, (j >> 3) & 1, j & 7
            A(f"s_add_u32 s35, s34, {(128*sub + 32*(q>>1) + 4*(q&1))*7168}")
            A(f"s_add_u32 m0, s36, {16384*sub + 8192*mat + 1024*q}")
            A(f"buffer_load_dwordx4 {v(vDMA)}, {s(16+4*mat,4)}, s35 offen lds")
    A("s_sub_u32 s36, s31, 4"); A(f"s_mul_i32 s34, s36, {256*7168}"); A("s_lshl_b32 s36, s36, 15")
    A("s_cmp_ge_u32 s31, 4"); A("s_cselect_b32 s37, 1, 0"); A("s_cmp_lt_u32 s30, 112"); A("s_cselect_b32 s37, s37, 0")
    ne = O.dma_early
    if ne:
        A("s_cmp_eq_u32 s37, 0"); A("s_cbranch_scc1 L_aux_nodma0")
        dma(0, ne)
        A("s_waitcnt vmcnt(%d)" % ne)
        A("L_aux_nodma0:")
    W, XA, XB = 32, 48, 64
    def unpack(dst, src, n):
        for k in range(n):
            A(f"v_lshlrev_b32 {v(dst+2*k)}, 16, {v(src+k)}")
            A(f"v_and_b32 {v(dst+2*k+1)}, {MASKHI}, {v(src+k)}")
    if ne:
        A("s_cmp_lg_u32 s37, 0"); A("s_cbranch_scc1 L_aux_got"); A("s_waitcnt vmcnt(0)"); A("L_aux_got:")
        ST()
        unpack(XA, 4, 8); unpack(XB, 12, 8)
        A(f"v_readfirstlane_b32 s16, {v(XA)}".replace("s16", "s38")); A(f"v_readfirstlane_b32 s39, {v(XB)}")
        unpack(W, 20, 8)
    else:
        A("s_waitcnt vmcnt(4)"); ST(); unpack(XA, 4, 8)
        A("s_waitcnt vmcnt(2)"); unpack(XB, 12, 8)
        A(f"v_readfirstlane_b32 s38, {v(XA)}"); A(f"v_readfirstlane_b32 s39, {v(XB)}")
        A("s_waitcnt vmcnt(0)"); unpack(W, 20, 8)
    for k in range(8):
        A(f"v_pk_add_f32 {v(XA+2*k,2)}, {v(XA+2*k,2)}, s[38:39] op_sel:[0,0] op_sel_hi:[1,0] neg_lo:[0,1] neg_hi:[0,1]")
        A(f"v_pk_add_f32 {v(XB+2*k,2)}, {v(XB+2*k,2)}, s[38:39] op_sel:[0,1] op_sel_hi:[1,1] neg_lo:[0,1] neg_hi:[0,1]")
    S1A, S1B, S2A, S2B, S3A, S3B, SW = 80, 82, 84, 86, 88, 90, 92
    A(f"v_pk_add_f32 {v(S1A,2)}, {v(XA,2)}, {v(XA+2,2)}"); A(f"v_pk_add_f32 {v(S1B,2)}, {v(XB,2)}, {v(XB+2,2)}")
    A(f"v_pk_add_f32 {v(SW,2)}, {v(W,2)}, {v(W+2,2)}")
    A(f"v_pk_mul_f32 {v(S2A,2)}, {v(XA,2)}, {v(XA,2)}"); A(f"v_pk_mul_f32 {v(S2B,2)}, {v(XB,2)}, {v(XB,2)}")
    A(f"v_pk_mul_f32 {v(S3A,2)}, {v(XA,2)}, {v(W,2)}"); A(f"v_pk_mul_f32 {v(S3B,2)}, {v(XB,2)}, {v(W,2)}")
    for k in range(1, 8):
        if k >= 2:
            A(f"v_pk_add_f32 {v(S1A,2)}, {v(S1A,2)}, {v(XA+2*k,2)}"); A(f"v_pk_add_f32 {v(S1B,2)}, {v(S1B,2)}, {v(XB+2*k,2)}")
            A(f"v_pk_add_f32 {v(SW,2)}, {v(SW,2)}, {v(W+2*k,2)}")
        A(f"v_pk_fma_f32 {v(S2A,2)}, {v(XA+2*k,2)}, {v(XA+2*k,2)}, {v(S2A,2)}")
        A(f"v_pk_fma_f32 {v(S2B,2)}, {v(XB+2*k,2)}, {v(XB+2*k,2)}, {v(S2B,2)}")
        A(f"v_pk_fma_f32 {v(S3A,2)}, {v(XA+2*k,2)}, {v(W+2*k,2)}, {v(S3A,2)}")
        A(f"v_pk_fma_f32 {v(S3B,2)}, {v(XB+2*k,2)}, {v(W+2*k,2)}, {v(S3B,2)}")
    for r in (S1A, S1B, S2A, S2B, S3A, S3B, SW): A(f"v_add_f32 {v(r)}, {v(r)}, {v(r+1)}")
    A(f"v_mov_b32 {v(SW+1)}, {v(SW)}")
    for p, q in ((S1A, S1B), (S2A, S2B), (S3A, S3B), (SW, SW+1)): A(f"v_permlane32_swap_b32 {v(p)}, {v(q)}")
    for p, q in ((S1A, S1B), (S2A, S2B), (S3A, S3B), (SW, SW+1)): A(f"v_add_f32 {v(p)}, {v(p)}, {v(q)}")
    R4 = (S1A, S2A, S3A, SW)
    for n in (8, 4, 2, 1):
        for p in R4: A(dpp("v_add_f32", p, p, p, f"row_ror:{n}"))
    for p in R4: A(f"v_mov_b32 {v(p+1)}, {v(p)}")
    for p in R4: A(f"v_permlane16_swap_b32 {v(p)}, {v(p+1)}")
    for p in R4: A(f"v_add_f32 {v(p)}, {v(p)}, {v(p+1)}")
    X0, MU, MEAN, VAR, T, MB, RS = 40, 41, 42, 43, 44, 45, 46
    A(f"v_cmp_gt_u32 vcc, 32, {v(vL)}")
    A(f"v_mov_b32 {v(X0)}, s39"); A(f"v_mov_b32 {v(T)}, s38")
    A(f"v_cndmask_b32 {v(X0)}, {v(X0)}, {v(T)}, vcc")
    A(f"v_mul_f32 {v(MU)}, {f32bits(1/1024)}, {v(S1A)}")
    A(f"v_mul_f32 {v(VAR)}, {f32bits(1/1024)}, {v(S2A)}")
    A(f"v_add_f32 {v(MEAN)}, {v(X0)}, {v(MU)}")
    A(f"v_fma_f32 {v(VAR)}, -{v(MU)}, {v(MU)}, {v(VAR)}")
    A(f"v_max_f32 {v(VAR)}, 0, {v(VAR)}")
    A(f"v_cvt_pk_bf16_f32 {v(MEAN)}, {v(MEAN)}, {v(VAR)}")
    A(f"v_and_b32 {v(VAR)}, {MASKHI}, {v(MEAN)}")
    A(f"v_lshlrev_b32 {v(MB)}, 16, {v(MEAN)}")
    A(f"v_add_f32 {v(VAR)}, {f32bits(1e-5)}, {v(VAR)}")
    A(f"v_cvt_pk_bf16_f32 {v(VAR)}, {v(VAR)}, {v(VAR)}")
    A(f"v_and_b32 {v(VAR)}, {MASKHI}, {v(VAR)}")
    A(f"v_sqrt_f32 {v(VAR)}, {v(VAR)}")
    A(f"v_sub_f32 {v(T)}, {v(X0)}, {v(MB)}")
    A(f"v_cvt_pk_bf16_f32 v60, {v(MB)}, {v(VAR)}")
    A(f"v_and_b32 {v(VAR)}, {MASKHI}, v60")
    A(f"v_rcp_f32 {v(RS)}, {v(VAR)}")
    A(f"v_fma_f32 {v(T)}, {v(T)}, {v(SW)}, {v(S3A)}")
    A("v_mov_b32 v61, v60")
    A(f"v_mul_f32 {v(T)}, {v(T)}, {v(RS)}")
    A(f"v_cvt_pk_bf16_f32 v64, {v(T)}, {v(T)}")
    A("v_ashrrev_i32 v65, 31, v64"); A("v_or_b32 v65, 0x80000000, v65"); A("v_xor_b32 v64, v64, v65")
    A("v_permlane32_swap_b32 v60, v61")
    A("v_lshrrev_b32 v64, 16, v64"); A("v_mov_b32 v65, v64")
    A("s_waitcnt lgkmcnt(0)")
    tag_from_epoch(A, sE, sT)
    A("v_permlane32_swap_b32 v64, v65")
    A("s_lshl_b32 s32, s30, 3"); A("s_add_u32 s32, s32, s31"); A("s_and_b32 s33, s32, 1"); A("s_lshl_b32 s33, s33, 9")
    A("s_lshr_b32 s32, s32, 1"); A("s_add_u32 s32, s32, s33"); A("s_lshl_b32 s32, s32, 4"); A(f"s_add_u32 s32, s32, {WS_STATS}")
    A("v_lshl_or_b32 v62, v65, 16, v64"); A(f"v_mov_b32 v63, {s(sT)}"); A("v_mov_b32 v66, s32")
    A("s_mov_b64 exec, 1")
    A("buffer_store_dwordx4 v[60:63], v66, s[12:15], 0 offen sc1")
    A("s_mov_b64 exec, -1")
    ST()
    XB_ = 32
    A(f"v_cmp_eq_u32 vcc, 8, {v(vI)}"); A("v_mov_b32 v11, 0x3f803f80")
    A(f"v_cndmask_b32 {v(XB_)}, 0, v11, vcc")
    for k in range(1, 16): A(f"v_mov_b32 {v(XB_+k)}, {v(XB_)}")
    A("s_cmp_lt_u32 s31, 4"); A("s_cbranch_scc1 L_aux_poller")
    A("s_cmp_eq_u32 s37, 0"); A("s_cbranch_scc1 L_aux_nodma1")
    dma(ne, 32)
    A("L_aux_nodma1:")
    ST(); ST()
    A("s_barrier")
    A("s_branch L_aux_b2")
    A("L_aux_poller:")
    GR, KY, RI = 64, 80, 88
    A(f"v_lshlrev_b32 v12, 4, v0"); A(f"v_add_u32 v12, {WS_STATS}, v12")
    A("v_lshlrev_b32 v13, 2, v0"); A("v_sub_u32 v13, 0x7ff, v13")
    roff = [0, 1, 1024, 1025, 2, 3, 1026, 1027]
    for k in range(8): A(f"v_subrev_u32 {v(RI+k)}, {roff[k]}, v13")
    A("s_mov_b32 s40, 4096"); A("s_mov_b32 s41, 8192"); A("s_mov_b32 s42, 12288"); A(f"s_mov_b32 s45, {MASKHI}")
    if O.aux_first_sleep: A(f"s_sleep {O.aux_first_sleep}")
    so = ["0", "s40", "s41", "s42"]
    poll(A, "aux", [f"buffer_load_dwordx4 {v(GR+4*k,4)}, v12, s[12:15], {so[k]} offen sc1" for k in range(4)],
         [GR + 4 * k + 3 for k in range(4)], sT, 43, 14, O.poll_sleep)
    if O.stamps:
        A("s_memrealtime s[68:69]"); A("s_waitcnt lgkmcnt(0)"); A(f"s_mov_b32 {s(ST.base+ST.n-2)}, s68"); A(f"s_mov_b32 {s(ST.base+ST.n-1)}, s68")
    for k in range(4):
        A(f"v_lshl_or_b32 {v(KY+2*k)}, {v(GR+4*k+2)}, 16, {v(RI+2*k)}")
        A(f"v_and_or_b32 {v(KY+2*k+1)}, {v(GR+4*k+2)}, s45, {v(RI+2*k+1)}")
    M1, M2, M3 = 14, 15, 16
    A(f"v_max3_u32 v17, {v(KY)}, {v(KY+1)}, {v(KY+2)}"); A(f"v_max3_u32 v18, {v(KY+3)}, {v(KY+4)}, {v(KY+5)}")
    A(f"v_max3_u32 v17, v17, {v(KY+6)}, {v(KY+7)}"); A("v_max_u32 v17, v17, v18")
    for n in (8, 4, 2, 1): A(dpp("v_max_u32", 17, 17, 17, f"row_ror:{n}"))
    A("v_lshrrev_b32 v18, 4, v0"); A("v_lshlrev_b32 v18, 2, v18"); A(f"v_add_u32 v18, {CTL+768}, v18")
    L.issue("ds_write_b32 v18, v17")
    L.drain(); A("s_barrier")
    A(f"v_lshlrev_b32 v18, 2, {v(vI)}"); A(f"v_add_u32 v18, {CTL+768}, v18")
    L.issue("ds_read_b32 v17, v18")
    A(f"v_max_u32 {v(M1)}, {v(KY)}, {v(KY+1)}"); A(f"v_min_u32 {v(M2)}, {v(KY)}, {v(KY+1)}"); A(f"v_mov_b32 {v(M3)}, 0")
    for k in range(2, 8):
        A(f"v_med3_u32 {v(M3)}, {v(M2)}, {v(M3)}, {v(KY+k)}")
        A(f"v_med3_u32 {v(M2)}, {v(M1)}, {v(M2)}, {v(KY+k)}")
        A(f"v_max_u32 {v(M1)}, {v(M1)}, {v(KY+k)}")
    A("v_mov_b32 v19, 0")
    L.drain()
    for n in range(1, 16):
        A(f"v_sub_co_u32_dpp v20, vcc, v17, v17 row_ror:{n} row_mask:0xf bank_mask:0xf")
        A.raw("v_addc_co_u32 v19, vcc, 0, v19, vcc ; nohaz")
    A("v_cmp_eq_u32 vcc, 8, v19"); A("s_ff1_i32_b64 s46, vcc"); A("v_readlane_b32 s46, v17, s46")
    A(f"v_mov_b32 v18, {CTL+256}"); A("v_mov_b32 v19, 1")
    A(f"v_cmp_le_u32 s[48:49], s46, {v(M1)}"); A(f"v_cmp_le_u32 s[50:51], s46, {v(M2)}"); A(f"v_cmp_le_u32 s[52:53], s46, {v(M3)}")
    A("s_mov_b64 exec, s[48:49]"); L.issue("ds_add_rtn_u32 v20, v18, v19")
    A("s_mov_b64 exec, s[50:51]"); L.issue("ds_add_rtn_u32 v21, v18, v19")
    A("s_mov_b64 exec, s[52:53]"); L.issue("ds_write_b32 v18, v19 offset:4")
    A("s_mov_b64 exec, -1")
    L.drain()
    for r in (20, 21):
        A(f"v_min_u32 {v(r)}, 32, {v(r)}"); A(f"v_lshlrev_b32 {v(r)}, 2, {v(r)}"); A(f"v_add_u32 {v(r)}, {CTL+64}, {v(r)}")
    A("s_mov_b64 exec, s[48:49]"); L.issue(f"ds_write_b32 v20, {v(M1)}")
    A("s_mov_b64 exec, s[50:51]"); L.issue(f"ds_write_b32 v21, {v(M2)}")
    A("s_mov_b64 exec, -1")
    L.drain()
    A("L_aux_b2:")
    A("s_barrier")
    ST()
    LS = 64
    A(f"v_and_b32 v14, 31, {v(vL)}"); A("v_lshlrev_b32 v14, 2, v14"); A(f"v_add_u32 v14, {CTL+64}, v14")
    A(f"v_lshrrev_b32 v15, 5, {v(vL)}"); A("v_lshlrev_b32 v15, 6, v15"); A(f"v_add_u32 v15, {CTL+64}, v15")
    A(f"v_mov_b32 v16, {CTL+256}")
    L.issue("ds_read_b64 v[18:19], v16", "cnt")
    L.issue("ds_read_b32 v17, v14", "own")
    for k in range(4): L.issue(f"ds_read_b128 {v(LS+4*k,4)}, v15 offset:{16*k}", ("ls", k))
    A("s_lshl_b32 s47, s31, 5"); A(f"s_add_u32 s47, s47, {CTL+512}")
    A("v_mov_b32 v20, 0")
    L.need("cnt")
    A("v_readfirstlane_b32 s48, v18"); A("v_readfirstlane_b32 s49, v19")
    A("s_cmp_gt_u32 s48, 32"); A("s_cselect_b32 s49, 1, s49"); A("s_cmp_lg_u32 s49, 0"); A("s_cbranch_scc1 L_aux_slow")
    for k in range(16):
        L.need("own", ("ls", k // 4))
        A(f"v_cmp_gt_u32 vcc, {v(LS+k)}, v17")
        A.raw("v_addc_co_u32 v20, vcc, 0, v20, vcc ; nohaz")
    A("v_mov_b32 v21, v20"); A("v_permlane32_swap_b32 v20, v21"); A("v_add_u32 v20, v20, v21")
    A("v_cmp_gt_u32 vcc, 8, v20"); A("v_lshl_add_u32 v20, v20, 2, s47")
    A("s_mov_b64 exec, vcc"); L.issue("ds_write_b32 v20, v17"); A("s_mov_b64 exec, -1")
    A("L_aux_sel:")
    IDX = 12
    A(f"v_and_b32 v14, 7, {v(vL)}"); A("v_lshl_add_u32 v14, v14, 2, s47")
    L.issue(f"ds_read_b32 v13, v14"); L.drain()
    A(f"v_and_b32 {v(IDX)}, 0x7ff, v13"); A(f"v_sub_u32 {v(IDX)}, 0x7ff, {v(IDX)}")
    A("s_cmp_ge_u32 s30, 112"); A("s_cbranch_scc1 L_aux_noffn")
    A(f"v_lshlrev_b32 v10, 11, {v(IDX)}"); A(f"v_lshl_add_u32 v10, {v(vG)}, 4, v10"); A("v_lshl_add_u32 v10, v29, 8, v10")
    A("s_mov_b32 exec_lo, 0x00ff00ff"); A("s_mov_b32 exec_hi, 0x00ff00ff")
    for ks in range(4): A(f"buffer_load_dwordx4 {v(XB_+4*ks,4)}, v10, s[4:7], 0 offen offset:{64*ks}")
    A("s_mov_b64 exec, -1")
    STT = 24
    A(f"v_bfe_u32 v14, {v(IDX)}, 1, 1"); A(f"v_lshrrev_b32 v15, 2, {v(IDX)}"); A("v_lshl_add_u32 v14, v14, 9, v15")
    A("v_lshlrev_b32 v14, 4, v14"); A(f"v_add_u32 v14, {WS_STATS}, v14")
    A(f"buffer_load_dwordx2 {v(STT,2)}, v14, s[12:15], 0 offen sc1")
    A(f"v_bfe_u32 v14, {v(vL)}, 2, 4"); A("v_lshlrev_b32 v14, 6, v14")
    A(f"v_and_b32 v15, 3, {v(vL)}"); A("v_lshl_add_u32 v14, v15, 3, v14")
    A("v_lshl_add_u32 v14, v29, 14, v14")
    A(f"v_and_b32 v15, 1, {v(vG)}"); A("v_lshlrev_b32 v15, 5, v15")
    A("v_add_u32 v16, v14, v15"); A("v_xor_b32 v15, 32, v15"); A("v_add_u32 v17, v14, v15")
    A("s_waitcnt vmcnt(5)")
    ST()
    A("s_barrier")
    AW = 64
    aw = lambda mat, ct, ks: AW + 4 * (ks * 4 + mat * 2 + ct)
    for ks in range(4):
        for mat in range(2):
            for ct in range(2):
                for h in range(2):
                    L.issue(f"ds_read_b64_tr_b16 {v(aw(mat,ct,ks)+2*h,2)}, {v(16+ct)} offset:{8192*mat+1024*(2*ks+h)}", ("aw", ks))
    DD = 128
    A("v_mul_u32_u24 v18, 16400, v29")
    A(f"v_lshl_add_u32 v18, {v(vI)}, 6, v18"); A(f"v_lshl_add_u32 v18, {v(vG)}, 4, v18")
    A(f"v_lshrrev_b32 v19, 3, {v(vL)}"); A("v_mul_u32_u24 v19, 16400, v19")
    A("s_lshr_b32 s48, s31, 2"); A("s_lshl_b32 s48, s48, 10"); A("s_and_b32 s49, s31, 3"); A("s_lshl_b32 s49, s49, 4"); A("s_add_u32 s48, s48, s49")
    A("v_add_u32 v19, s48, v19")
    A(f"v_and_b32 v20, 7, {v(vL)}"); A("v_lshl_add_u32 v20, v20, 6, v19")
    for ks in range(4):
        A(f"s_waitcnt vmcnt({4-ks})")
        L.need(("aw", ks))
        for t in range(4):
            A(f"v_mfma_f32_16x16x32_bf16 {v(DD+4*t,4)}, {v(aw(t>>1,t&1,ks),4)}, {v(XB_+4*ks,4)}, {v(DD+4*t,4) if ks else 0}")
    for t in range(4): L.issue(f"ds_write_b128 v18, {v(DD+4*t,4)} offset:{1024*t}")
    MM = 26
    A("s_waitcnt vmcnt(0)")
    A(f"v_and_b32 v14, 1, {v(IDX)}"); A("v_cmp_eq_u32 vcc, 1, v14")
    A(f"v_cndmask_b32 {v(STT)}, {v(STT)}, {v(STT+1)}, vcc")
    A(f"v_lshlrev_b32 {v(MM)}, 16, {v(STT)}"); A(f"v_and_b32 {v(MM+1)}, {MASKHI}, {v(STT)}"); A(f"v_rcp_f32 {v(MM+1)}, {v(MM+1)}")
    L.drain()
    ST()
    A("s_barrier")
    P = 64
    L.issue(f"ds_read_b128 {v(P,4)}, v20"); L.issue(f"ds_read_b128 {v(P+8,4)}, v19 offset:512")
    L.issue(f"ds_read_b128 {v(P+4,4)}, v20 offset:2048"); L.issue(f"ds_read_b128 {v(P+12,4)}, v19 offset:2560")
    A("s_lshl_b32 s48, s30, 3"); A("s_add_u32 s48, s48, s31"); A("s_lshl_b32 s48, s48, 7"); A(f"s_add_u32 s48, s48, {WS_H}")
    A(f"v_lshl_add_u32 v21, {v(vL)}, 4, s48")
    L.drain()
    for q in range(4):
        A(f"v_pk_fma_f32 {v(P+2*q,2)}, {v(P+8+2*q,2)}, {v(MM,2)}, {v(P+2*q,2)} op_sel:[0,0,0] op_sel_hi:[1,0,1] neg_lo:[1,0,0] neg_hi:[1,0,0]")
    for k in range(8): A(dpp("v_add_f32", P+k, P+k, P+k, "row_ror:8"))
    for sw in ("v_permlane16_swap_b32", "v_permlane32_swap_b32"):
        for k in range(8): A(f"v_mov_b32 {v(P+8+k)}, {v(P+k)}")
        for k in range(8): A(f"{sw} {v(P+k)}, {v(P+8+k)}")
        for q in range(4): A(f"v_pk_add_f32 {v(P+2*q,2)}, {v(P+2*q,2)}, {v(P+8+2*q,2)}")
    for q in range(4): A(f"v_pk_mul_f32 {v(P+2*q,2)}, {v(P+2*q,2)}, {v(MM,2)} op_sel:[0,1] op_sel_hi:[1,1]")
    TT = P + 8
    for k in range(4): A(f"v_mul_f32 {v(TT+k)}, {f32bits(-LOG2E)}, {v(P+k)}")
    for k in range(4): A(f"v_exp_f32 {v(TT+k)}, {v(TT+k)}")
    for q in range(2): A(f"v_pk_mul_f32 {v(P+2*q,2)}, {v(P+2*q,2)}, {v(P+4+2*q,2)}")
    for k in range(4): A(f"v_add_f32 {v(TT+k)}, 1.0, {v(TT+k)}")
    for k in range(4): A(f"v_rcp_f32 {v(TT+k)}, {v(TT+k)}")
    A(f"v_mov_b32 v62, {s(sT)}"); A(f"v_mov_b32 v63, {s(sT)}")
    for q in range(2): A(f"v_pk_mul_f32 {v(P+2*q,2)}, {v(P+2*q,2)}, {v(TT+2*q,2)}")
    A(f"v_cvt_pk_bf16_f32 v60, {v(P)}, {v(P+1)}"); A(f"v_cvt_pk_bf16_f32 v61, {v(P+2)}, {v(P+3)}")
    A("s_mov_b64 exec, 0xff")
    A("buffer_store_dwordx4 v[60:63], v21, s[12:15], 0 offen sc1")
    A("s_mov_b64 exec, -1")
    ST()
    A("s_branch L_aux_done")
    A("L_aux_noffn:")
    A("s_lshl_b32 s48, s30, 3"); A("s_add_u32 s48, s48, s31"); A(f"s_cmp_eq_u32 s48, {126*8}"); A("s_cbranch_scc1 L_aux_epoch")
    A(f"s_cmp_lg_u32 s48, {127*8}"); A("s_cbranch_scc1 L_aux_done")
    A(f"v_and_b32 v14, {MASKHI}, v13"); A("v_ashrrev_i32 v15, 31, v14"); A("v_not_b32 v15, v15"); A("v_or_b32 v15, 0x80000000, v15")
    A("v_xor_b32 v14, v14, v15"); A(f"v_and_b32 v14, {MASKHI}, v14")
    A(f"v_mul_f32 v14, {f32bits(-LOG2E)}, v14"); A("v_exp_f32 v14, v14"); A("v_add_f32 v14, 1.0, v14"); A("v_rcp_f32 v14, v14")
    A("v_cvt_pk_bf16_f32 v14, v14, v14"); A(f"v_and_b32 v61, {MASKHI}, v14"); A(f"v_mov_b32 v60, {v(IDX)}")
    A(f"v_mov_b32 v62, {s(sT)}"); A(f"v_mov_b32 v63, {s(sT)}")
    A(f"v_lshlrev_b32 v21, 4, {v(vL)}"); A(f"v_add_u32 v21, {WS_SEL}, v21")
    A("s_mov_b64 exec, 0xff")
    A("buffer_store_dwordx4 v[60:63], v21, s[12:15], 0 offen sc1")
    A("s_mov_b64 exec, -1")
    A("s_branch L_aux_done")
    A("L_aux_epoch:")
    A(f"v_lshlrev_b32 v21, 3, {v(vL)}"); A(f"v_add_u32 v21, {WS_ACK}, v21")
    poll(A, "ack", ["buffer_load_dwordx2 v[60:61], v21, s[12:15], 0 offen sc1"], [60, 61], sT, 43, 14, 4)
    A(f"v_mov_b32 v5, {s(sT)}"); A("v_mov_b32 v4, 0"); A("s_mov_b64 exec, 1")
    A("buffer_store_dword v5, v4, s[12:15], 0 offen sc1")
    A("L_aux_done:")
    ST.flush(31, "aux")
    A("s_endpgm")
    A("L_aux_slow:")
    KB = 131072
    A("s_waitcnt lgkmcnt(0)")
    A("s_cmp_ge_u32 s31, 4"); A("s_cbranch_scc1 L_aux_slow1")
    A("v_lshlrev_b32 v14, 5, v0"); A(f"v_add_u32 v14, {KB}, v14")
    A(f"ds_write_b128 v14, {v(KY,4)}"); A(f"ds_write_b128 v14, {v(KY+4,4)} offset:16")
    A("s_waitcnt lgkmcnt(0)")
    A("L_aux_slow1:")
    A("s_barrier")
    SK = 128
    A(f"v_lshlrev_b32 v14, 4, {v(vL)}"); A(f"v_add_u32 v14, {KB}, v14")
    for k in range(8): A(f"ds_read_b128 {v(SK+4*k,4)}, v14 offset:{1024*k}")
    A("s_waitcnt lgkmcnt(0)")
    A("s_mov_b32 s48, 0"); A("v_mov_b32 v16, s47")
    A("L_aux_slow2:")
    A(f"v_max3_u32 v14, {v(SK)}, {v(SK+1)}, {v(SK+2)}")
    for k in range(3, 31, 2): A(f"v_max3_u32 v14, v14, {v(SK+k)}, {v(SK+k+1)}")
    A(f"v_max_u32 v14, v14, {v(SK+31)}")
    for n in (8, 4, 2, 1): A(dpp("v_max_u32", 14, 14, 14, f"row_ror:{n}"))
    A("v_mov_b32 v15, v14"); A("v_permlane16_swap_b32 v14, v15"); A("v_max_u32 v14, v14, v15")
    A("v_mov_b32 v15, v14"); A("v_permlane32_swap_b32 v14, v15"); A("v_max_u32 v14, v14, v15")
    A("ds_write_b32 v16, v14"); A("v_add_u32 v16, 4, v16")
    for k in range(32):
        A(f"v_cmp_ne_u32 vcc, v14, {v(SK+k)}"); A(f"v_cndmask_b32 {v(SK+k)}, 0, {v(SK+k)}, vcc")
    A("s_add_u32 s48, s48, 1"); A("s_cmp_lt_u32 s48, 8"); A("s_cbranch_scc1 L_aux_slow2")
    A("s_branch L_aux_sel")

def normalize8(A, L, GR, vW, vWe, D1P, PX):
    RS, MB, XN = 160, 164, 168
    src = [GR, GR + 1, GR + 4, GR + 5]
    for rr in range(4):
        A(f"v_and_b32 {v(RS+rr)}, {MASKHI}, {v(src[rr])}")
        A(f"v_lshlrev_b32 {v(MB+rr)}, 16, {v(src[rr])}")
        A(f"v_rcp_f32 {v(RS+rr)}, {v(RS+rr)}")
    for a_ in range(2):
        A(f"v_pk_mul_f32 {v(MB+2*a_,2)}, {v(MB+2*a_,2)}, {v(RS+2*a_,2)} neg_lo:[1,0] neg_hi:[1,0]")
    for c2 in range(4):
        for cc in range(2):
            c = 2 * c2 + cc
            for a_ in range(2):
                A(f"v_pk_fma_f32 {v(XN+4*cc+2*a_,2)}, {v(PX+4*c+2*a_,2)}, {v(RS+2*a_,2)}, {v(MB+2*a_,2)}")
        up = 216 + 8 * (c2 & 1)
        for cc in range(2):
            c = 2 * c2 + cc
            sel = "op_sel:[0,0,0] op_sel_hi:[1,0,1]" if cc == 0 else "op_sel:[0,1,0] op_sel_hi:[1,1,1]"
            for a_ in range(2):
                x = XN + 4 * cc + 2 * a_
                A(f"v_cvt_pk_bf16_f32 {v(up+2*cc+a_)}, {v(x)}, {v(x+1)}")
                A(f"v_pk_fma_f32 {v(x,2)}, {v(x,2)}, {v(D1P+2*c2,2)}, {v(PX+4*c+2*a_,2)} {sel}")
            L.issue(f"ds_write_b64 {v(vW)}, {v(up+2*cc,2)} offset:{c*UST+512}")
        for cc in range(2):
            c = 2 * c2 + cc
            for a_ in range(2):
                x = XN + 4 * cc + 2 * a_
                A(f"v_cvt_pk_bf16_f32 {v(up+4+2*cc+a_)}, {v(x)}, {v(x+1)}")
            L.issue(f"ds_write_b64 {v(vWe)}, {v(up+4+2*cc,2)} offset:{c*EST}")

HREG = [K3, K3+4, K3+8, K3+12, KC, BAND+8, BAND+12, XR, XR+4, XR+8, XR+12, BOXD+16, BOXD+20, BOXOP+8]
SELR = 4

def convloop8(A, L, vU, vE, vTR, vST, sOut, extra):
    B5, B3, B9, B7 = BAND, BAND + 4, BAND + 8, BAND + 12
    mf = lambda d, x, y, c_: f"v_mfma_f32_16x16x32_bf16 {v(d,4)}, {v(x,4)}, {v(y,4)}, {c_}"
    acc = lambda c: ACC + 4 * c
    main = []; pos = {}
    ub = lambda o: UB + 4 * ((o + 7) % NUB)
    def add(text, needs=(), key=None):
        main.append((text, needs))
        if key: pos[key] = len(main) - 1
    for o in range(-7, 57):
        pos[("first", o)] = len(main)
        for c in range(8):
            if 0 <= 8 * c - o <= 16:
                add(mf(acc(c), KN + 4 * (8 * c - o), ub(o), v(acc(c), 4)), (("U", o),), ("near", c, o))
        if o >= 0 and o % 8 == 0:
            cp = o // 8
            if cp <= 5:
                add(mf(BOXD + 8, ub(o), B5, 0), (), ("bx", cp, "O0")); add(mf(BOXD + 12, ub(o), B3, 0), (), ("bx", cp, "O1"))
            if cp <= 3:
                add(mf(BOXD + 20, ub(o), B7, 0), (), ("bx", cp, "S1"))
                add(mf(acc(cp + 4), KC, ub(o), v(acc(cp + 4), 4)), (), ("corr", cp))
            pos[("lastU", o)] = len(main) - 1
            if cp <= 5:
                add(mf(BOXD, U24, B5, 0), (("U24", cp),), ("bx", cp, "E0")); add(mf(BOXD + 4, U24, B3, 0), (), ("bx", cp, "E1"))
            if cp <= 3:
                add(mf(BOXD + 16, U24, B9, 0), (), ("bx", cp, "S0"))
            pos[("lastU24", cp)] = len(main) - 1
        else:
            pos[("lastU", o)] = len(main) - 1
        if o >= 0:
            cp, ph = o // 8, o % 8
            for nm, p_, lim, dls, bop, kr in (("O", 2, 5, (2, 3, 4), BOXOP + 4, KO), ("E", 3, 5, (2, 3, 4), BOXOP, KE), ("S", 4, 3, (4, 5, 6, 7), BOXOP + 8, K3)):
                if ph == p_ and cp <= lim:
                    pos[("far", cp, nm)] = len(main)
                    for dl in dls:
                        if cp + dl <= 7: add(mf(acc(cp + dl), bop, kr + 4 * (dl - dls[0]), v(acc(cp + dl), 4)))
                    pos[("farend", cp, nm)] = len(main) - 1
    N = len(main)
    F = []
    for o in range(-7, 57):
        prev = o - NUB
        after = pos[("lastU", prev)] if prev >= -7 else -1
        F.append(dict(text=f"ds_read_b128 {v(ub(o),4)}, {v(vU)} offset:{64*(o+7)}", after=after,
                      before=max(after + 1, pos[("first", o)] - 6), tag=("U", o), lds=True, chain="U"))
    for cp in range(6):
        after = pos[("lastU24", cp - 1)] if cp else -1
        F.append(dict(text=f"ds_read_b128 {v(U24,4)}, {v(vU)} offset:{432+512*cp}", after=after,
                      before=max(after + 1, pos[("bx", cp, "E0")] - 8), tag=("U24", cp), lds=True))
    first = {}
    for i, (t, _) in enumerate(main):
        for c in range(8):
            if t.split()[1].rstrip(",") == v(acc(c), 4) and c not in first: first[c] = i
    EP = [BOXD + 2 * c for c in range(8)]
    for c in range(8):
        dl = min(first[c], pos[("bx", 0, "O0")])
        F.append(dict(text=f"ds_read_b64 {v(EP[c],2)}, {v(vE)} offset:{512*c}", after=-1, before=max(0, dl - 6) if c > 1 else 0,
                      tag=("e", c), lds=True, chain=("e", c)))
        for k in range(4):
            t = (f"v_lshlrev_b32 {v(acc(c)+k)}, 16, {v(EP[c]+k//2)}" if k % 2 == 0 else
                 f"v_and_b32 {v(acc(c)+k)}, {MASKHI}, {v(EP[c]+k//2)}")
            F.append(dict(text=t, after=-1 if c <= 1 else 1, before=max(0, dl - 1), needs=(("e", c),), chain=("e", c)))
    for cp in range(6):
        for nm, d0, op in (("O", BOXD + 8, BOXOP + 4), ("E", BOXD, BOXOP), ("S", BOXD + 16, BOXOP + 8)):
            if nm == "S" and cp > 3: continue
            after = max(pos[("bx", cp, nm + "0")], pos[("bx", cp, nm + "1")]) + 3
            if cp: after = max(after, pos[("farend", cp - 1, nm)])
            for dd in range(4):
                F.append(dict(text=f"v_cvt_pk_bf16_f32 {v(op+dd)}, {v(d0+dd)}, {v(d0+4+dd)}", after=after,
                              before=pos[("far", cp, nm)] - 1))
    OT = 10; TR = 12
    tail = []
    for c in range(8):
        done = pos[("near", c, 8 * c)]
        ins = [f"v_cvt_pk_bf16_f32 {v(OT)}, {v(acc(c))}, {v(acc(c)+1)}", f"v_cvt_pk_bf16_f32 {v(OT+1)}, {v(acc(c)+2)}, {v(acc(c)+3)}"]
        w = f"ds_write_b64 {v(vE)}, {v(OT,2)} offset:{512*c}"
        if c < 7:
            for x in ins: F.append(dict(text=x, after=done + 4, before=min(N, done + 12), chain="o"))
            F.append(dict(text=w, after=done + 4, before=min(N, done + 13), lds=True, tag=("o", c), chain="o"))
            if c & 1:
                pc = c // 2
                F.append(dict(text="s_barrier", after=done + 8, before=done + 16, needs=(("o", c),), chain="o"))
                for h in range(2):
                    F.append(dict(text=f"ds_read_b64_tr_b16 {v(TR+2*h,2)}, {v(vTR)} offset:{1024*pc+4*EST*h}", after=done + 8, before=done + 18,
                                  lds=True, tag=("tr", pc), chain="o"))
                F.append(dict(text=f"buffer_store_dwordx4 {v(TR,4)}, {v(vST)}, {s(sOut,4)}, {'0' if pc == 0 else s(53+pc)} offen", after=done + 14,
                              before=done + 24, needs=(("tr", pc),), chain="o"))
        else:
            tail += [(x, False) for x in ins] + [(w, True)]
    extra(F, pos, N)
    schedule(A, L, main, F)
    for x, l in tail:
        if l: L.issue(x)
        else: A(x)

def gen_conv(A, O):
    L = Lgkm(A); ST = Stamper(A, O.stamps)
    ST()
    for d, k in ((4, "x"), (8, "lar"), (12, "aim"), (16, "cre"), (20, "cim"), (24, "ldt"), (28, "dsk"), (32, "out"), (36, "ws"),
                 (56, "wd")):
        srd_load(A, d, k)
    sc = dict(sL=40, sLlo=41, sK=42)
    sE, sT = 43, 52
    A("s_and_b32 s44, s2, 7"); A("s_lshl_b32 s44, s44, 4"); A("s_add_u32 s44, s44, s3"); A("s_sub_u32 s44, s44, 16")
    A(f"v_and_b32 {v(vL)}, 63, v0"); A(f"v_and_b32 {v(vI)}, 15, v0"); A(f"v_bfe_u32 {v(vG)}, v0, 4, 2")
    A("v_lshrrev_b32 v4, 6, v0"); A("v_readfirstlane_b32 s45, v4")
    A(f"s_mov_b32 s40, {f32bits(L_HI)}"); A(f"s_mov_b32 s41, {f32bits(L_LO)}")
    A("s_lshl_b32 s46, s44, 3"); A("s_add_u32 s46, s46, s45")
    A("s_lshl_b32 s47, s46, 8"); A("s_lshl_b32 s48, s46, 1"); A("s_lshl_b32 s49, s44, 4")
    A(f"v_lshl_add_u32 v4, {v(vL)}, 2, s47")
    A("v_mov_b32 v5, s48"); A("v_mov_b32 v6, s49")
    A("v_lshlrev_b32 v7, 13, v0"); A("v_add_u32 v7, s49, v7")
    A("s_mov_b32 s53, 4096")
    A("s_waitcnt lgkmcnt(0)")
    A("s_load_dword s53, s[36:37], 0".replace("s53", "s50"))
    for d, k in ((24, "ldt"), (8, "lar"), (12, "aim"), (16, "cre"), (20, "cim")): srd_fin(A, d, k)
    A("buffer_load_ushort v15, v5, s[24:27], 0 offen")
    for k, d in enumerate((8, 12, 16, 20)): A(f"buffer_load_dword {v(16+k)}, v4, {s(d,4)}, 0 offen")
    for d, k in ((4, "x"), (28, "dsk"), (32, "out"), (56, "wd")): srd_fin(A, d, k)
    srd_fin(A, 36, "ws", size=WS_SIZE)
    D1P = 232; DR = 144
    A(f"buffer_load_dwordx4 {v(DR,4)}, v6, s[28:31], 0 offen")
    for rr in range(4):
        A(f"buffer_load_dwordx4 {v(XR+4*rr,4)}, v7, s[4:7], {'0' if rr < 2 else 's53'} offen offset:{2048*(rr&1)}")
    vSH = 4
    A(f"v_lshlrev_b32 {v(vSH)}, 3, {v(vG)}"); A(f"v_sub_u32 {v(vSH)}, {v(vSH)}, {v(vI)}")
    A(f"v_add_u32 {v(vSH)}, 15, {v(vSH)}"); A(f"v_min_u32 {v(vSH)}, 31, {v(vSH)}")
    for k, (lo, hi) in enumerate(((6, 10), (3, 5), (4, 12), (5, 11))): band(A, BAND + 4 * k, vSH, lo, hi, 0x3f80, 5, 6, 7, 43)
    band(A, KC, vSH, 12, 13, 0xffff, 5, 6, 7, 43)
    A("s_waitcnt lgkmcnt(0)")
    tag_from_epoch(A, 50, sT)
    A("s_cmp_lg_u32 s45, 0"); A("s_cbranch_scc1 L_conv_noack")
    A("s_lshl_b32 s50, s44, 2"); A(f"s_add_u32 s50, s50, {WS_ACK}")
    A("v_mov_b32 v10, s50"); A(f"v_mov_b32 v11, {s(sT)}"); A("s_mov_b64 exec, 1")
    A("buffer_store_dword v11, v10, s[36:39], 0 offen sc1")
    A("s_mov_b64 exec, -1")
    A("L_conv_noack:")
    vKB, vRow, vOp, vU, vE, vWD = 4, 5, 6, 7, 8, 9
    A(f"s_mul_i32 s50, s45, {KST}")
    A(f"v_mov_b32 {v(vKB)}, s50")
    A(f"v_lshl_add_u32 {v(vRow)}, {v(vL)}, 3, s50")
    A(f"v_mul_u32_u24 {v(vOp)}, 528, {v(vI)}")
    A(f"v_and_b32 v10, 1, {v(vG)}"); A(f"v_lshl_add_u32 {v(vOp)}, v10, 8, {v(vOp)}")
    A(f"v_lshrrev_b32 v10, 1, {v(vG)}"); A(f"v_lshl_add_u32 {v(vOp)}, v10, 4, {v(vOp)}")
    A(f"v_add_u32 {v(vOp)}, s50, {v(vOp)}")
    A(f"s_mul_i32 s51, s45, {UST}")
    A(f"v_lshlrev_b32 v10, 5, {v(vI)}")
    A(f"v_lshl_add_u32 {v(vU)}, {v(vG)}, 4, v10"); A(f"v_add3_u32 {v(vU)}, {v(vU)}, s51, 32")
    A(f"s_mul_i32 s54, s45, {EST}"); A(f"s_add_u32 s54, s54, {EBASE}")
    A(f"v_lshl_add_u32 {v(vE)}, {v(vG)}, 3, v10"); A(f"v_add_u32 {v(vE)}, s54, {v(vE)}")
    A(f"s_mul_i32 s54, s45, {448*2048}"); A("s_add_u32 s54, s54, s49")
    A(f"v_lshlrev_b32 {v(vWD)}, 11, {v(vL)}"); A(f"v_add_u32 {v(vWD)}, s54, {v(vWD)}")
    A(f"s_mul_i32 s55, s45, 7168"); A(f"s_add_u32 s55, s55, {WDB}")
    A("s_waitcnt vmcnt(5)")
    ST()
    K = Asm(); LK = Lgkm(K)
    D = G1.kgen(K, LK, vRow, vOp, sc)
    G1.ktables(K, LK, D, vKB, sc)
    n = len(K.lines); step = n // 8; out = []
    for i, ln in enumerate(K.lines):
        out.append(ln)
        if i % step == step - 1 and i // step < 7:
            j = i // step
            out += [f"s_mov_b32 s54, {j*64*2048}", f"s_add_u32 m0, s55, {1024*j}", f"buffer_load_dwordx4 {v(vWD)}, s[56:59], s54 offen lds"]
    A.ext(out); L.q = LK.q
    ST(L)
    PX = 176
    A("s_waitcnt vmcnt(7)")
    for c in range(8):
        for rr in range(4):
            src = XR + 4 * rr + (c >> 1); d = PX + 4 * c + rr
            A(f"v_lshlrev_b32 {v(d)}, 16, {v(src)}" if c % 2 == 0 else f"v_and_b32 {v(d)}, {MASKHI}, {v(src)}")
    for k in range(4):
        A(f"v_lshlrev_b32 {v(D1P+2*k)}, 16, {v(DR+k)}"); A(f"v_and_b32 {v(D1P+2*k+1)}, {MASKHI}, {v(DR+k)}")
    for k in range(8): A(f"v_add_f32 {v(D1P+k)}, 1.0, {v(D1P+k)}")
    vW, vWe, vPo = 4, 5, 6
    A(f"v_lshlrev_b32 {v(vW)}, 3, v0"); A(f"v_add_u32 {v(vWe)}, {EBASE}, {v(vW)}")
    A(f"v_lshlrev_b32 {v(vPo)}, 4, v0"); A(f"v_add_u32 {v(vPo)}, {WS_STATS}, {v(vPo)}")
    A("v_mov_b32 v12, 0"); A("v_mov_b32 v13, 0"); A(f"v_lshl_add_u32 v10, {v(vL)}, 3, s51")
    A("s_mov_b32 s53, 8192")
    L.drain(); A("s_barrier")
    L.issue("ds_write_b64 v10, v[12:13]")
    GR = 144
    ST(L)
    poll(A, "conv", [f"buffer_load_dwordx4 {v(GR,4)}, {v(vPo)}, s[36:39], 0 offen sc1", f"buffer_load_dwordx4 {v(GR+4,4)}, {v(vPo)}, s[36:39], s53 offen sc1"],
         [GR + 3, GR + 7], sT, 43, 10, O.poll_sleep)
    ST(L)
    normalize8(A, L, GR, vW, vWe, D1P, PX)
    vTR, vST, vH = 232, 233, 9
    A(f"v_bfe_u32 v10, v0, 2, 2"); A(f"v_mul_u32_u24 v10, {EST}, v10")
    A("v_lshrrev_b32 v11, 4, v0"); A("v_lshl_add_u32 v10, v11, 5, v10")
    A("v_and_b32 v11, 3, v0"); A("v_lshl_add_u32 v10, v11, 3, v10"); A(f"v_add_u32 {v(234)}, {EBASE}, v10")
    A(f"v_lshlrev_b32 v11, 11, v0"); A(f"v_add_u32 {v(235)}, s49, v11")
    A("s_mov_b32 s54, 0x100000"); A("s_mov_b32 s55, 0x200000")
    L.drain(); A("s_barrier")
    ST(L)
    vTR, vST = 0, 1
    A(f"v_mov_b32 {v(vTR)}, v234"); A(f"v_mov_b32 {v(vST)}, v235")
    A(f"v_lshl_add_u32 v9, {v(vG)}, 4, {v(vI)}"); A("v_lshlrev_b32 v9, 4, v9")
    A(f"s_mul_i32 s46, s45, 14336"); A(f"s_add_u32 s46, s46, {WS_H}"); A("v_add_u32 v9, s46, v9")
    A("s_mov_b32 s46, 4096"); A("s_mov_b32 s47, 8192"); A("s_mov_b32 s48, 12288")
    hso = ["0", "s46", "s47", "s48"]
    A(f"v_lshrrev_b32 v10, 3, {v(vI)}"); A(f"v_lshl_add_u32 v10, {v(vG)}, 1, v10"); A("v_lshlrev_b32 v10, 4, v10")
    A(f"v_add_u32 v3, {WS_SEL}, v10")
    hloads = [f"buffer_load_dwordx4 {v(SELR,4)}, v3, s[36:39], 0 offen sc1"] + \
             [f"buffer_load_dwordx4 {v(HREG[i],4)}, v9, s[36:39], {hso[i//4]} offen offset:{1024*(i%4)} sc1" for i in range(14)]
    OTs = 11
    def extra(F, pos, N):
        a0 = pos[("farend", 3, "S")] + 1
        for i, x in enumerate(hloads): F.append(dict(text=x, after=a0 + i, before=a0 + i + 3, chain="h"))
    A(f"v_mov_b32 v2, {v(vU)}")
    convloop8(A, L, 2, vE, vTR, vST, 32, extra)
    L.drain()
    ST(L)
    A("s_barrier")
    TR = 12
    for h in range(2): L.issue(f"ds_read_b64_tr_b16 {v(TR+2*h,2)}, {v(vTR)} offset:{1024*3+4*EST*h}", "tr")
    A("v_mbcnt_lo_u32_b32 v2, -1, 0"); A("v_mbcnt_hi_u32_b32 v2, -1, v2")
    A("v_lshrrev_b32 v10, 4, v2"); A("v_lshlrev_b32 v10, 7, v10")
    A("v_bfe_u32 v11, v2, 1, 1"); A("v_lshl_add_u32 v10, v11, 6, v10")
    A("v_bfe_u32 v11, v2, 2, 2"); A("v_lshl_add_u32 v10, v11, 4, v10")
    A("v_and_b32 v11, 1, v2"); A("v_lshl_add_u32 v10, v11, 3, v10")
    A(f"s_mul_i32 s55, s45, 7168"); A(f"s_add_u32 s55, s55, {WDB}"); A("v_add_u32 v10, s55, v10")
    AWD = 16
    for i in range(14): L.issue(f"ds_read_b64_tr_b16 {v(AWD+2*i,2)}, v10 offset:{512*i}", ("wd", i))
    A("s_waitcnt vmcnt(1)")
    tags = [SELR + 3] + [r + 3 for r in HREG]
    A(f"v_xor_b32 v11, {s(sT)}, {v(tags[0])}")
    for r in tags[1:]: A(f"v_bitop3_b32 v11, v11, {v(r)}, {s(sT)} bitop3:0xf6")
    A("v_cmp_ne_u32 vcc, 0, v11")
    A("s_cbranch_vccz L_conv_hok")
    poll(A, "h", hloads, tags, sT, 43, 11, O.poll_sleep)
    A("L_conv_hok:")
    ST()
    for k in range(8): A(f"v_readlane_b32 {s(4+k)}, {v(SELR)}, {8*k}")
    A("s_lshl_b32 s43, s45, 6"); A("s_add_u32 s43, s43, 1536"); A("v_add_u32 v11, s43, v2")
    A("s_mov_b32 s43, 0x300000")
    for k in range(8): A(f"v_cmpx_ne_u32 vcc, {s(4+k)}, v11")
    L.need("tr")
    A("s_nop 3")
    A(f"buffer_store_dwordx4 {v(TR,4)}, {v(vST)}, s[32:35], s43 offen")
    A("s_mov_b64 exec, -1")
    DY = 48
    for i in range(14):
        L.need(("wd", i))
        A(f"v_mfma_f32_16x16x16_bf16 {v(DY,4)}, {v(AWD+2*i,2)}, {v(HREG[i],2)}, {v(DY,4) if i else 0}")
    A("v_lshrrev_b32 v10, 5, v2"); A("v_lshlrev_b32 v10, 8, v10")
    A("v_bfe_u32 v11, v2, 4, 1"); A("v_lshl_add_u32 v10, v11, 7, v10")
    A("v_and_b32 v11, 7, v2"); A("v_lshl_add_u32 v10, v11, 4, v10")
    A("s_lshl_b32 s43, s45, 9"); A(f"s_add_u32 s43, s43, {REDB}"); A("v_add_u32 v10, s43, v10")
    A("s_mov_b32 exec_lo, 0x00ff00ff"); A("s_mov_b32 exec_hi, 0xff00ff00")
    L.issue(f"ds_write_b128 v10, {v(DY,4)}")
    A("s_mov_b64 exec, -1")
    A("s_waitcnt vmcnt(1)")
    L.drain(); A("s_barrier")
    A("s_cmp_lg_u32 s45, 0"); A("s_cbranch_scc1 L_conv_end")
    A("v_bfe_u32 v10, v2, 2, 1"); A("v_lshlrev_b32 v10, 7, v10")
    A("v_lshrrev_b32 v11, 3, v2"); A("v_lshl_add_u32 v10, v11, 4, v10")
    A("v_and_b32 v11, 3, v2"); A("v_lshl_add_u32 v10, v11, 2, v10"); A(f"v_add_u32 v10, {REDB}, v10")
    for k in range(8): L.issue(f"ds_read2st64_b32 {v(16+2*k,2)}, v10 offset0:{2*k} offset1:{2*k+1}")
    A("v_and_b32 v11, 7, v2"); A(f"v_mul_u32_u24 v12, {EST}, v11"); A(f"v_lshl_add_u32 v12, {v(SELR)}, 1, v12"); A(f"v_add_u32 v12, {EBASE}, v12")
    L.issue("ds_read_u16 v13, v12")
    A(f"v_lshlrev_b32 v12, 11, {v(SELR)}"); A("v_lshl_add_u32 v12, v11, 1, v12"); A("v_add_u32 v12, s49, v12")
    L.drain()
    for st in (8, 4, 2):
        for k in range(0, st, 2): A(f"v_pk_add_f32 {v(16+k,2)}, {v(16+k,2)}, {v(16+st+k,2)}")
    A("v_lshlrev_b32 v13, 16, v13"); A("v_add_f32 v16, v16, v17")
    A(f"v_fma_f32 v16, v16, {v(SELR+1)}, v13"); A("v_cvt_pk_bf16_f32 v16, v16, v16")
    A("buffer_store_short v16, v12, s[32:35], 0 offen")
    A("L_conv_end:")
    if O.stamps:
        A("s_waitcnt vmcnt(0)"); ST()
        A("v_mbcnt_lo_u32_b32 v0, -1, 0"); A("v_mbcnt_hi_u32_b32 v0, -1, v0")
    ST.flush(45, "conv")
    A("s_endpgm")

def build(O):
    name = NAME + "_kernel"
    A = Asm()
    head(A, name)
    A("s_cmp_ge_u32 s2, 256"); A("s_cbranch_scc1 L_exit")
    A("s_lshr_b32 s3, s2, 3"); A("s_cmp_ge_u32 s3, 16"); A("s_cbranch_scc1 L_conv")
    gen_aux(A, O)
    A("L_exit:"); A("s_endpgm")
    A(".p2align 6")
    A("L_conv:")
    gen_conv(A, O)
    txt = f"; @launch grid=(256,1,1) block=(512,1,1) lds={LDS_TOTAL}\n" + '.amdgcn_target "amdgcn-amd-amdhsa--gfx950"\n' + A.text()
    print("lines", len(A.lines), "auto nops", A.nauto, file=sys.stderr)
    return txt + KD.format(name=name, vgpr=256, sgpr=96, acc=256)

if __name__ == "__main__":
    O = Opt()
    for a_ in sys.argv[2:]:
        k, val = a_.split("="); setattr(O, k, int(val))
    open(sys.argv[1], "w").write(build(O))
```

```python
import sys
from parts import *
import gen_v1 as G1
from gen_v1 import KN, KE, KO, K3, KC, BAND, ACC, UB, NUB, U24, BOXD, BOXOP, XR, vL, vI, vG, KST, PB_E

WS_ACK = 2048
WS_STATS = 4096
WS_H = 32768
WS_SEL = WS_H + 112 * 1024
WS_SIZE = WS_SEL + 128
WS_STAMP = 128 << 20
SPIN_MAX = 1 << 16

UST = 4608; EBASE = 8 * UST; EST = 4160; WDB = EBASE + 8 * EST; REDB = WDB + 57344
LDS_TOTAL = 147456 + 1024

class Opt:
    stamps = False
    poll_sleep = 2
    aux_first_sleep = 8
    dma_early = 0
    probe_role = 0
    probe_j = 0
    probe_k = 0

class Stamper:
    def __init__(self, A, on, base=70):
        self.A = A; self.on = on; self.n = 0; self.base = base
    def __call__(self, L=None):
        if not self.on: return
        A = self.A
        if L is not None: L.drain()
        A("s_memrealtime s[68:69]"); A("s_waitcnt lgkmcnt(0)"); A(f"s_mov_b32 {s(self.base+self.n)}, s68")
        self.n += 1
    def probe(self, sWave, uid, j, k):
        A = self.A
        A(f"s_cmp_lg_u32 {s(sWave)}, 0"); A(f"s_cbranch_scc1 L_noprobe_{uid}")
        A(f"s_sub_u32 s66, {s(self.base+j)}, {s(self.base)}"); A(f"s_mul_i32 s66, s66, {k}"); A("s_min_u32 s66, s66, 20000")
        A("s_memrealtime s[68:69]"); A("s_waitcnt lgkmcnt(0)"); A("s_mov_b32 s67, s68")
        A(f"L_probe_{uid}:")
        A("s_memrealtime s[68:69]"); A("s_waitcnt lgkmcnt(0)"); A("s_sub_u32 s68, s68, s67"); A("s_cmp_lt_u32 s68, s66"); A(f"s_cbranch_scc1 L_probe_{uid}")
        A(f"L_noprobe_{uid}:")
    def flush(self, sWave, uid):
        if not self.on: return
        A = self.A
        A(f"s_and_b32 s68, {s(sWave)}, 3"); A("s_cmp_lg_u32 s68, 0"); A(f"s_cbranch_scc1 L_nostamp_{uid}")
        A("s_mov_b64 exec, -1")
        A(f"s_load_dwordx2 s[64:65], s[0:1], {OFF['ws']}"); A("s_waitcnt lgkmcnt(0)")
        A(f"s_add_u32 s64, s64, {WS_STAMP}"); A("s_addc_u32 s65, s65, 0"); A("s_mov_b32 s66, 0x20000"); A("s_mov_b32 s67, 0x00020000")
        A("v_mov_b32 v2, 0")
        for j in range(self.n): A(f"v_writelane_b32 v2, {s(self.base+j)}, {j}")
        A(f"s_mov_b32 s68, {self.n}"); A("v_writelane_b32 v2, s68, 30")
        A("s_mov_b32 s68, 0x5a5a5a5a"); A("v_writelane_b32 v2, s68, 31")
        A(f"s_lshr_b32 s68, {s(sWave)}, 2"); A("s_lshl_b32 s69, s2, 1"); A("s_add_u32 s68, s68, s69"); A("s_lshl_b32 s68, s68, 7")
        A("v_and_b32 v3, 63, v0"); A("v_lshl_add_u32 v3, v3, 2, s68")
        A("s_mov_b64 exec, 0xffffffff")
        A("buffer_store_dword v2, v3, s[64:67], 0 offen")
        A(f"L_nostamp_{uid}:")

def tag_from_epoch(A, sE, sT):
    A(f"s_mul_i32 {s(sT)}, {s(sE)}, 0x9e3779b1"); A(f"s_add_u32 {s(sT)}, {s(sT)}, 0x7f4a7c15")

def poll(A, uid, loads, tagregs, sT, sCnt, vT, sleep):
    A(f"s_mov_b32 {s(sCnt)}, 0")
    A(f"L_poll_{uid}:")
    for x in loads: A(x)
    A("s_waitcnt vmcnt(0)")
    A(f"v_xor_b32 {v(vT)}, {s(sT)}, {v(tagregs[0])}")
    for r in tagregs[1:]: A(f"v_bitop3_b32 {v(vT)}, {v(vT)}, {v(r)}, {s(sT)} bitop3:0xf6")
    A(f"v_cmp_ne_u32 vcc, 0, {v(vT)}")
    A(f"s_cbranch_vccz L_polled_{uid}")
    A(f"s_add_u32 {s(sCnt)}, {s(sCnt)}, 1"); A(f"s_cmp_ge_u32 {s(sCnt)}, {SPIN_MAX}"); A(f"s_cbranch_scc1 L_polled_{uid}")
    if sleep: A(f"s_sleep {sleep}")
    A(f"s_branch L_poll_{uid}")
    A(f"L_polled_{uid}:")

def gen_aux(A, O):
    L = Lgkm(A); ST = Stamper(A, O.stamps)
    ST()
    for d, k in ((4, "x"), (8, "wr"), (12, "ws"), (16, "wg"), (20, "wu")): srd_load(A, d, k)
    sA, sW, sE, sT = 30, 31, 28, 29
    A("s_and_b32 s30, s2, 7"); A("s_lshl_b32 s30, s30, 4"); A("s_add_u32 s30, s30, s3")
    A(f"v_and_b32 {v(vL)}, 63, v0"); A(f"v_and_b32 {v(vI)}, 15, v0"); A(f"v_bfe_u32 {v(vG)}, v0, 4, 2")
    A("v_lshrrev_b32 v29, 6, v0"); A("v_readfirstlane_b32 s31, v29")
    A("s_lshl_b32 s32, s30, 15")
    A("v_lshlrev_b32 v30, 12, v29"); A(f"v_lshlrev_b32 v28, 4, {v(vL)}"); A("v_add3_u32 v30, v30, v28, s32")
    A("s_waitcnt lgkmcnt(0)")
    A("s_load_dword s28, s[12:13], 0")
    srd_fin(A, 4, "x"); srd_fin(A, 8, "wr")
    for k in range(4): A(f"buffer_load_dwordx4 {v(4+4*k,4)}, v30, s[4:7], 0 offen offset:{1024*k}")
    for k in range(2): A(f"buffer_load_dwordx4 {v(20+4*k,4)}, v28, s[8:11], 0 offen offset:{1024*k}")
    srd_fin(A, 12, "ws", size=WS_SIZE); srd_fin(A, 16, "wg"); srd_fin(A, 20, "wu")
    CTL = 131072 + 8192
    A("v_mov_b32 v96, 0"); A("v_mov_b32 v97, 0"); A(f"v_lshlrev_b32 v98, 3, {v(vL)}"); A(f"v_add_u32 v98, {CTL}, v98")
    A("s_cmp_lg_u32 s31, 0"); A("s_cbranch_scc1 L_aux_noz")
    A("ds_write_b64 v98, v[96:97]")
    A("L_aux_noz:")
    A(f"v_bfe_u32 v96, {v(vL)}, 2, 2"); A(f"v_lshl_add_u32 v96, {v(vG)}, 3, v96")
    A("v_mul_u32_u24 v96, 7168, v96")
    A(f"v_and_b32 v97, 1, {v(vG)}"); A("v_lshlrev_b32 v97, 1, v97"); A(f"v_and_b32 v98, 3, {v(vL)}"); A("v_xor_b32 v97, v97, v98")
    A("s_lshl_b32 s33, s30, 6")
    A("v_lshl_add_u32 v96, v97, 4, v96"); A("v_add_u32 v96, s33, v96")
    vDMA = 96
    def dma(lo, hi):
        for j in range(lo, hi):
            sub, mat, q = j >> 4, (j >> 3) & 1, j & 7
            A(f"s_add_u32 s35, s34, {(128*sub + 32*(q>>1) + 4*(q&1))*7168}")
            A(f"s_add_u32 m0, s36, {16384*sub + 8192*mat + 1024*q}")
            A(f"buffer_load_dwordx4 {v(vDMA)}, {s(16+4*mat,4)}, s35 offen lds")
    A("s_sub_u32 s36, s31, 4"); A(f"s_mul_i32 s34, s36, {256*7168}"); A("s_lshl_b32 s36, s36, 15")
    A("s_cmp_ge_u32 s31, 4"); A("s_cselect_b32 s37, 1, 0"); A("s_cmp_lt_u32 s30, 112"); A("s_cselect_b32 s37, s37, 0")
    ne = O.dma_early
    if ne:
        A("s_cmp_eq_u32 s37, 0"); A("s_cbranch_scc1 L_aux_nodma0")
        dma(0, ne)
        A("s_waitcnt vmcnt(%d)" % ne)
        A("L_aux_nodma0:")
    W, XA, XB = 32, 48, 64
    def unpack(dst, src, n):
        for k in range(n):
            A(f"v_lshlrev_b32 {v(dst+2*k)}, 16, {v(src+k)}")
            A(f"v_and_b32 {v(dst+2*k+1)}, {MASKHI}, {v(src+k)}")
    if ne:
        A("s_cmp_lg_u32 s37, 0"); A("s_cbranch_scc1 L_aux_got"); A("s_waitcnt vmcnt(0)"); A("L_aux_got:")
        ST()
        unpack(XA, 4, 8); unpack(XB, 12, 8)
        A(f"v_readfirstlane_b32 s16, {v(XA)}".replace("s16", "s38")); A(f"v_readfirstlane_b32 s39, {v(XB)}")
        unpack(W, 20, 8)
    else:
        A("s_waitcnt vmcnt(4)"); ST(); unpack(XA, 4, 8)
        A("s_waitcnt vmcnt(2)"); unpack(XB, 12, 8)
        A(f"v_readfirstlane_b32 s38, {v(XA)}"); A(f"v_readfirstlane_b32 s39, {v(XB)}")
        A("s_waitcnt vmcnt(0)"); unpack(W, 20, 8)
    for k in range(8):
        A(f"v_pk_add_f32 {v(XA+2*k,2)}, {v(XA+2*k,2)}, s[38:39] op_sel:[0,0] op_sel_hi:[1,0] neg_lo:[0,1] neg_hi:[0,1]")
        A(f"v_pk_add_f32 {v(XB+2*k,2)}, {v(XB+2*k,2)}, s[38:39] op_sel:[0,1] op_sel_hi:[1,1] neg_lo:[0,1] neg_hi:[0,1]")
    S1A, S1B, S2A, S2B, S3A, S3B, SW = 80, 82, 84, 86, 88, 90, 92
    A(f"v_pk_add_f32 {v(S1A,2)}, {v(XA,2)}, {v(XA+2,2)}"); A(f"v_pk_add_f32 {v(S1B,2)}, {v(XB,2)}, {v(XB+2,2)}")
    A(f"v_pk_add_f32 {v(SW,2)}, {v(W,2)}, {v(W+2,2)}")
    A(f"v_pk_mul_f32 {v(S2A,2)}, {v(XA,2)}, {v(XA,2)}"); A(f"v_pk_mul_f32 {v(S2B,2)}, {v(XB,2)}, {v(XB,2)}")
    A(f"v_pk_mul_f32 {v(S3A,2)}, {v(XA,2)}, {v(W,2)}"); A(f"v_pk_mul_f32 {v(S3B,2)}, {v(XB,2)}, {v(W,2)}")
    for k in range(1, 8):
        if k >= 2:
            A(f"v_pk_add_f32 {v(S1A,2)}, {v(S1A,2)}, {v(XA+2*k,2)}"); A(f"v_pk_add_f32 {v(S1B,2)}, {v(S1B,2)}, {v(XB+2*k,2)}")
            A(f"v_pk_add_f32 {v(SW,2)}, {v(SW,2)}, {v(W+2*k,2)}")
        A(f"v_pk_fma_f32 {v(S2A,2)}, {v(XA+2*k,2)}, {v(XA+2*k,2)}, {v(S2A,2)}")
        A(f"v_pk_fma_f32 {v(S2B,2)}, {v(XB+2*k,2)}, {v(XB+2*k,2)}, {v(S2B,2)}")
        A(f"v_pk_fma_f32 {v(S3A,2)}, {v(XA+2*k,2)}, {v(W+2*k,2)}, {v(S3A,2)}")
        A(f"v_pk_fma_f32 {v(S3B,2)}, {v(XB+2*k,2)}, {v(W+2*k,2)}, {v(S3B,2)}")
    for r in (S1A, S1B, S2A, S2B, S3A, S3B, SW): A(f"v_add_f32 {v(r)}, {v(r)}, {v(r+1)}")
    A(f"v_mov_b32 {v(SW+1)}, {v(SW)}")
    for p, q in ((S1A, S1B), (S2A, S2B), (S3A, S3B), (SW, SW+1)): A(f"v_permlane32_swap_b32 {v(p)}, {v(q)}")
    for p, q in ((S1A, S1B), (S2A, S2B), (S3A, S3B), (SW, SW+1)): A(f"v_add_f32 {v(p)}, {v(p)}, {v(q)}")
    R4 = (S1A, S2A, S3A, SW)
    for n in (8, 4, 2, 1):
        for p in R4: A(dpp("v_add_f32", p, p, p, f"row_ror:{n}"))
    for p in R4: A(f"v_mov_b32 {v(p+1)}, {v(p)}")
    for p in R4: A(f"v_permlane16_swap_b32 {v(p)}, {v(p+1)}")
    for p in R4: A(f"v_add_f32 {v(p)}, {v(p)}, {v(p+1)}")
    X0, MU, MEAN, VAR, T, MB, RS = 40, 41, 42, 43, 44, 45, 46
    A(f"v_cmp_gt_u32 vcc, 32, {v(vL)}")
    A(f"v_mov_b32 {v(X0)}, s39"); A(f"v_mov_b32 {v(T)}, s38")
    A(f"v_cndmask_b32 {v(X0)}, {v(X0)}, {v(T)}, vcc")
    A(f"v_mul_f32 {v(MU)}, {f32bits(1/1024)}, {v(S1A)}")
    A(f"v_mul_f32 {v(VAR)}, {f32bits(1/1024)}, {v(S2A)}")
    A(f"v_add_f32 {v(MEAN)}, {v(X0)}, {v(MU)}")
    A(f"v_fma_f32 {v(VAR)}, -{v(MU)}, {v(MU)}, {v(VAR)}")
    A(f"v_max_f32 {v(VAR)}, 0, {v(VAR)}")
    A(f"v_cvt_pk_bf16_f32 {v(MEAN)}, {v(MEAN)}, {v(VAR)}")
    A(f"v_and_b32 {v(VAR)}, {MASKHI}, {v(MEAN)}")
    A(f"v_lshlrev_b32 {v(MB)}, 16, {v(MEAN)}")
    A(f"v_add_f32 {v(VAR)}, {f32bits(1e-5)}, {v(VAR)}")
    A(f"v_cvt_pk_bf16_f32 {v(VAR)}, {v(VAR)}, {v(VAR)}")
    A(f"v_and_b32 {v(VAR)}, {MASKHI}, {v(VAR)}")
    A(f"v_sqrt_f32 {v(VAR)}, {v(VAR)}")
    A(f"v_sub_f32 {v(T)}, {v(X0)}, {v(MB)}")
    A(f"v_cvt_pk_bf16_f32 v60, {v(MB)}, {v(VAR)}")
    A(f"v_and_b32 {v(VAR)}, {MASKHI}, v60")
    A(f"v_rcp_f32 {v(RS)}, {v(VAR)}")
    A(f"v_fma_f32 {v(T)}, {v(T)}, {v(SW)}, {v(S3A)}")
    A("v_mov_b32 v61, v60")
    A(f"v_mul_f32 {v(T)}, {v(T)}, {v(RS)}")
    A(f"v_cvt_pk_bf16_f32 v64, {v(T)}, {v(T)}")
    A("v_ashrrev_i32 v65, 31, v64"); A("v_or_b32 v65, 0x80000000, v65"); A("v_xor_b32 v64, v64, v65")
    A("v_permlane32_swap_b32 v60, v61")
    A("v_lshrrev_b32 v64, 16, v64"); A("v_mov_b32 v65, v64")
    A("s_waitcnt lgkmcnt(0)")
    tag_from_epoch(A, sE, sT)
    A("v_permlane32_swap_b32 v64, v65")
    A("s_lshl_b32 s32, s30, 3"); A("s_add_u32 s32, s32, s31"); A("s_and_b32 s33, s32, 1"); A("s_lshl_b32 s33, s33, 9")
    A("s_lshr_b32 s32, s32, 1"); A("s_add_u32 s32, s32, s33"); A("s_lshl_b32 s32, s32, 4"); A(f"s_add_u32 s32, s32, {WS_STATS}")
    A("v_lshl_or_b32 v62, v65, 16, v64"); A(f"v_mov_b32 v63, {s(sT)}"); A("v_mov_b32 v66, s32")
    A("s_mov_b64 exec, 1")
    A("buffer_store_dwordx4 v[60:63], v66, s[12:15], 0 offen sc1")
    A("s_mov_b64 exec, -1")
    ST()
    XB_ = 32
    A(f"v_cmp_eq_u32 vcc, 8, {v(vI)}"); A("v_mov_b32 v11, 0x3f803f80")
    A(f"v_cndmask_b32 {v(XB_)}, 0, v11, vcc")
    for k in range(1, 16): A(f"v_mov_b32 {v(XB_+k)}, {v(XB_)}")
    A("s_cmp_lt_u32 s31, 4"); A("s_cbranch_scc1 L_aux_poller")
    A("s_cmp_eq_u32 s37, 0"); A("s_cbranch_scc1 L_aux_nodma1")
    dma(ne, 32)
    A("L_aux_nodma1:")
    ST(); ST()
    A("s_barrier")
    A("s_branch L_aux_b2")
    A("L_aux_poller:")
    GR, KY, RI = 64, 80, 88
    A(f"v_lshlrev_b32 v12, 4, v0"); A(f"v_add_u32 v12, {WS_STATS}, v12")
    A("v_lshlrev_b32 v13, 2, v0"); A("v_sub_u32 v13, 0x7ff, v13")
    roff = [0, 1, 1024, 1025, 2, 3, 1026, 1027]
    for k in range(8): A(f"v_subrev_u32 {v(RI+k)}, {roff[k]}, v13")
    A("s_mov_b32 s40, 4096"); A("s_mov_b32 s41, 8192"); A("s_mov_b32 s42, 12288"); A(f"s_mov_b32 s45, {MASKHI}")
    if O.aux_first_sleep: A(f"s_sleep {O.aux_first_sleep}")
    so = ["0", "s40", "s41", "s42"]
    poll(A, "aux", [f"buffer_load_dwordx4 {v(GR+4*k,4)}, v12, s[12:15], {so[k]} offen sc1" for k in range(4)],
         [GR + 4 * k + 3 for k in range(4)], sT, 43, 14, O.poll_sleep)
    if O.stamps:
        A("s_memrealtime s[68:69]"); A("s_waitcnt lgkmcnt(0)"); A(f"s_mov_b32 {s(ST.base+ST.n-2)}, s68"); A(f"s_mov_b32 {s(ST.base+ST.n-1)}, s68")
    for k in range(4):
        A(f"v_lshl_or_b32 {v(KY+2*k)}, {v(GR+4*k+2)}, 16, {v(RI+2*k)}")
        A(f"v_and_or_b32 {v(KY+2*k+1)}, {v(GR+4*k+2)}, s45, {v(RI+2*k+1)}")
    M1, M2, M3 = 14, 15, 16
    A(f"v_max3_u32 v17, {v(KY)}, {v(KY+1)}, {v(KY+2)}"); A(f"v_max3_u32 v18, {v(KY+3)}, {v(KY+4)}, {v(KY+5)}")
    A(f"v_max3_u32 v17, v17, {v(KY+6)}, {v(KY+7)}"); A("v_max_u32 v17, v17, v18")
    for n in (8, 4, 2, 1): A(dpp("v_max_u32", 17, 17, 17, f"row_ror:{n}"))
    A("v_lshrrev_b32 v18, 4, v0"); A("v_lshlrev_b32 v18, 2, v18"); A(f"v_add_u32 v18, {CTL+768}, v18")
    L.issue("ds_write_b32 v18, v17")
    L.drain(); A("s_barrier")
    A(f"v_lshlrev_b32 v18, 2, {v(vI)}"); A(f"v_add_u32 v18, {CTL+768}, v18")
    L.issue("ds_read_b32 v17, v18")
    A(f"v_max_u32 {v(M1)}, {v(KY)}, {v(KY+1)}"); A(f"v_min_u32 {v(M2)}, {v(KY)}, {v(KY+1)}"); A(f"v_mov_b32 {v(M3)}, 0")
    for k in range(2, 8):
        A(f"v_med3_u32 {v(M3)}, {v(M2)}, {v(M3)}, {v(KY+k)}")
        A(f"v_med3_u32 {v(M2)}, {v(M1)}, {v(M2)}, {v(KY+k)}")
        A(f"v_max_u32 {v(M1)}, {v(M1)}, {v(KY+k)}")
    A("v_mov_b32 v19, 0")
    L.drain()
    for n in range(1, 16):
        A(f"v_sub_co_u32_dpp v20, vcc, v17, v17 row_ror:{n} row_mask:0xf bank_mask:0xf")
        A.raw("v_addc_co_u32 v19, vcc, 0, v19, vcc ; nohaz")
    A("v_cmp_eq_u32 vcc, 8, v19"); A("s_ff1_i32_b64 s46, vcc"); A("v_readlane_b32 s46, v17, s46")
    A(f"v_mov_b32 v18, {CTL+256}"); A("v_mov_b32 v19, 1")
    A(f"v_cmp_le_u32 s[48:49], s46, {v(M1)}"); A(f"v_cmp_le_u32 s[50:51], s46, {v(M2)}"); A(f"v_cmp_le_u32 s[52:53], s46, {v(M3)}")
    A("s_mov_b64 exec, s[48:49]"); L.issue("ds_add_rtn_u32 v20, v18, v19")
    A("s_mov_b64 exec, s[50:51]"); L.issue("ds_add_rtn_u32 v21, v18, v19")
    A("s_mov_b64 exec, s[52:53]"); L.issue("ds_write_b32 v18, v19 offset:4")
    A("s_mov_b64 exec, -1")
    L.drain()
    for r in (20, 21):
        A(f"v_min_u32 {v(r)}, 32, {v(r)}"); A(f"v_lshlrev_b32 {v(r)}, 2, {v(r)}"); A(f"v_add_u32 {v(r)}, {CTL+64}, {v(r)}")
    A("s_mov_b64 exec, s[48:49]"); L.issue(f"ds_write_b32 v20, {v(M1)}")
    A("s_mov_b64 exec, s[50:51]"); L.issue(f"ds_write_b32 v21, {v(M2)}")
    A("s_mov_b64 exec, -1")
    L.drain()
    A("L_aux_b2:")
    A("s_barrier")
    ST()
    LS = 64
    A(f"v_and_b32 v14, 31, {v(vL)}"); A("v_lshlrev_b32 v14, 2, v14"); A(f"v_add_u32 v14, {CTL+64}, v14")
    A(f"v_lshrrev_b32 v15, 5, {v(vL)}"); A("v_lshlrev_b32 v15, 6, v15"); A(f"v_add_u32 v15, {CTL+64}, v15")
    A(f"v_mov_b32 v16, {CTL+256}")
    L.issue("ds_read_b64 v[18:19], v16", "cnt")
    L.issue("ds_read_b32 v17, v14", "own")
    for k in range(4): L.issue(f"ds_read_b128 {v(LS+4*k,4)}, v15 offset:{16*k}", ("ls", k))
    A("s_lshl_b32 s47, s31, 5"); A(f"s_add_u32 s47, s47, {CTL+512}")
    A("v_mov_b32 v20, 0")
    L.need("cnt")
    A("v_readfirstlane_b32 s48, v18"); A("v_readfirstlane_b32 s49, v19")
    A("s_cmp_gt_u32 s48, 32"); A("s_cselect_b32 s49, 1, s49"); A("s_cmp_lg_u32 s49, 0"); A("s_cbranch_scc1 L_aux_slow")
    for k in range(16):
        L.need("own", ("ls", k // 4))
        A(f"v_cmp_gt_u32 vcc, {v(LS+k)}, v17")
        A.raw("v_addc_co_u32 v20, vcc, 0, v20, vcc ; nohaz")
    A("v_mov_b32 v21, v20"); A("v_permlane32_swap_b32 v20, v21"); A("v_add_u32 v20, v20, v21")
    A("v_cmp_gt_u32 vcc, 8, v20"); A("v_lshl_add_u32 v20, v20, 2, s47")
    A("s_mov_b64 exec, vcc"); L.issue("ds_write_b32 v20, v17"); A("s_mov_b64 exec, -1")
    A("L_aux_sel:")
    IDX = 12
    A(f"v_and_b32 v14, 7, {v(vL)}"); A("v_lshl_add_u32 v14, v14, 2, s47")
    L.issue(f"ds_read_b32 v13, v14"); L.drain()
    A(f"v_and_b32 {v(IDX)}, 0x7ff, v13"); A(f"v_sub_u32 {v(IDX)}, 0x7ff, {v(IDX)}")
    A("s_cmp_ge_u32 s30, 112"); A("s_cbranch_scc1 L_aux_noffn")
    A(f"v_lshlrev_b32 v10, 11, {v(IDX)}"); A(f"v_lshl_add_u32 v10, {v(vG)}, 4, v10"); A("v_lshl_add_u32 v10, v29, 8, v10")
    A("s_mov_b32 exec_lo, 0x00ff00ff"); A("s_mov_b32 exec_hi, 0x00ff00ff")
    for ks in range(4): A(f"buffer_load_dwordx4 {v(XB_+4*ks,4)}, v10, s[4:7], 0 offen offset:{64*ks}")
    A("s_mov_b64 exec, -1")
    STT = 24
    A(f"v_bfe_u32 v14, {v(IDX)}, 1, 1"); A(f"v_lshrrev_b32 v15, 2, {v(IDX)}"); A("v_lshl_add_u32 v14, v14, 9, v15")
    A("v_lshlrev_b32 v14, 4, v14"); A(f"v_add_u32 v14, {WS_STATS}, v14")
    A(f"buffer_load_dwordx2 {v(STT,2)}, v14, s[12:15], 0 offen sc1")
    A(f"v_bfe_u32 v14, {v(vL)}, 2, 4"); A("v_lshlrev_b32 v14, 6, v14")
    A(f"v_and_b32 v15, 3, {v(vL)}"); A("v_lshl_add_u32 v14, v15, 3, v14")
    A("v_lshl_add_u32 v14, v29, 14, v14")
    A(f"v_and_b32 v15, 1, {v(vG)}"); A("v_lshlrev_b32 v15, 5, v15")
    A("v_add_u32 v16, v14, v15"); A("v_xor_b32 v15, 32, v15"); A("v_add_u32 v17, v14, v15")
    A("s_waitcnt vmcnt(5)")
    ST()
    A("s_barrier")
    AW = 64
    aw = lambda mat, ct, ks: AW + 4 * (ks * 4 + mat * 2 + ct)
    for ks in range(4):
        for mat in range(2):
            for ct in range(2):
                for h in range(2):
                    L.issue(f"ds_read_b64_tr_b16 {v(aw(mat,ct,ks)+2*h,2)}, {v(16+ct)} offset:{8192*mat+1024*(2*ks+h)}", ("aw", ks))
    DD = 128
    A("v_mul_u32_u24 v18, 16400, v29")
    A(f"v_lshl_add_u32 v18, {v(vI)}, 6, v18"); A(f"v_lshl_add_u32 v18, {v(vG)}, 4, v18")
    A(f"v_lshrrev_b32 v19, 3, {v(vL)}"); A("v_mul_u32_u24 v19, 16400, v19")
    A("s_lshr_b32 s48, s31, 2"); A("s_lshl_b32 s48, s48, 10"); A("s_and_b32 s49, s31, 3"); A("s_lshl_b32 s49, s49, 4"); A("s_add_u32 s48, s48, s49")
    A("v_add_u32 v19, s48, v19")
    A(f"v_and_b32 v20, 7, {v(vL)}"); A("v_lshl_add_u32 v20, v20, 6, v19")
    for ks in range(4):
        A(f"s_waitcnt vmcnt({4-ks})")
        L.need(("aw", ks))
        for t in range(4):
            A(f"v_mfma_f32_16x16x32_bf16 {v(DD+4*t,4)}, {v(aw(t>>1,t&1,ks),4)}, {v(XB_+4*ks,4)}, {v(DD+4*t,4) if ks else 0}")
    for t in range(4): L.issue(f"ds_write_b128 v18, {v(DD+4*t,4)} offset:{1024*t}")
    MM = 26
    A("s_waitcnt vmcnt(0)")
    A(f"v_and_b32 v14, 1, {v(IDX)}"); A("v_cmp_eq_u32 vcc, 1, v14")
    A(f"v_cndmask_b32 {v(STT)}, {v(STT)}, {v(STT+1)}, vcc")
    A(f"v_lshlrev_b32 {v(MM)}, 16, {v(STT)}"); A(f"v_and_b32 {v(MM+1)}, {MASKHI}, {v(STT)}"); A(f"v_rcp_f32 {v(MM+1)}, {v(MM+1)}")
    L.drain()
    ST()
    A("s_barrier")
    P = 64
    L.issue(f"ds_read_b128 {v(P,4)}, v20"); L.issue(f"ds_read_b128 {v(P+8,4)}, v19 offset:512")
    L.issue(f"ds_read_b128 {v(P+4,4)}, v20 offset:2048"); L.issue(f"ds_read_b128 {v(P+12,4)}, v19 offset:2560")
    A("s_lshl_b32 s48, s30, 3"); A("s_add_u32 s48, s48, s31"); A("s_lshl_b32 s48, s48, 7"); A(f"s_add_u32 s48, s48, {WS_H}")
    A(f"v_lshl_add_u32 v21, {v(vL)}, 4, s48")
    L.drain()
    for q in range(4):
        A(f"v_pk_fma_f32 {v(P+2*q,2)}, {v(P+8+2*q,2)}, {v(MM,2)}, {v(P+2*q,2)} op_sel:[0,0,0] op_sel_hi:[1,0,1] neg_lo:[1,0,0] neg_hi:[1,0,0]")
    for k in range(8): A(dpp("v_add_f32", P+k, P+k, P+k, "row_ror:8"))
    for sw in ("v_permlane16_swap_b32", "v_permlane32_swap_b32"):
        for k in range(8): A(f"v_mov_b32 {v(P+8+k)}, {v(P+k)}")
        for k in range(8): A(f"{sw} {v(P+k)}, {v(P+8+k)}")
        for q in range(4): A(f"v_pk_add_f32 {v(P+2*q,2)}, {v(P+2*q,2)}, {v(P+8+2*q,2)}")
    for q in range(4): A(f"v_pk_mul_f32 {v(P+2*q,2)}, {v(P+2*q,2)}, {v(MM,2)} op_sel:[0,1] op_sel_hi:[1,1]")
    TT = P + 8
    for k in range(4): A(f"v_mul_f32 {v(TT+k)}, {f32bits(-LOG2E)}, {v(P+k)}")
    for k in range(4): A(f"v_exp_f32 {v(TT+k)}, {v(TT+k)}")
    for q in range(2): A(f"v_pk_mul_f32 {v(P+2*q,2)}, {v(P+2*q,2)}, {v(P+4+2*q,2)}")
    for k in range(4): A(f"v_add_f32 {v(TT+k)}, 1.0, {v(TT+k)}")
    for k in range(4): A(f"v_rcp_f32 {v(TT+k)}, {v(TT+k)}")
    A(f"v_mov_b32 v62, {s(sT)}"); A(f"v_mov_b32 v63, {s(sT)}")
    for q in range(2): A(f"v_pk_mul_f32 {v(P+2*q,2)}, {v(P+2*q,2)}, {v(TT+2*q,2)}")
    A(f"v_cvt_pk_bf16_f32 v60, {v(P)}, {v(P+1)}"); A(f"v_cvt_pk_bf16_f32 v61, {v(P+2)}, {v(P+3)}")
    A("s_mov_b64 exec, 0xff")
    A("buffer_store_dwordx4 v[60:63], v21, s[12:15], 0 offen sc1")
    A("s_mov_b64 exec, -1")
    ST()
    A("s_branch L_aux_done")
    A("L_aux_noffn:")
    A("s_lshl_b32 s48, s30, 3"); A("s_add_u32 s48, s48, s31"); A(f"s_cmp_eq_u32 s48, {126*8}"); A("s_cbranch_scc1 L_aux_epoch")
    A(f"s_cmp_lg_u32 s48, {127*8}"); A("s_cbranch_scc1 L_aux_done")
    A(f"v_and_b32 v14, {MASKHI}, v13"); A("v_ashrrev_i32 v15, 31, v14"); A("v_not_b32 v15, v15"); A("v_or_b32 v15, 0x80000000, v15")
    A("v_xor_b32 v14, v14, v15"); A(f"v_and_b32 v14, {MASKHI}, v14")
    A(f"v_mul_f32 v14, {f32bits(-LOG2E)}, v14"); A("v_exp_f32 v14, v14"); A("v_add_f32 v14, 1.0, v14"); A("v_rcp_f32 v14, v14")
    A("v_cvt_pk_bf16_f32 v14, v14, v14"); A(f"v_and_b32 v61, {MASKHI}, v14"); A(f"v_mov_b32 v60, {v(IDX)}")
    A(f"v_mov_b32 v62, {s(sT)}"); A(f"v_mov_b32 v63, {s(sT)}")
    A(f"v_lshlrev_b32 v21, 4, {v(vL)}"); A(f"v_add_u32 v21, {WS_SEL}, v21")
    A("s_mov_b64 exec, 0xff")
    A("buffer_store_dwordx4 v[60:63], v21, s[12:15], 0 offen sc1")
    A("s_mov_b64 exec, -1")
    A("s_branch L_aux_done")
    A("L_aux_epoch:")
    A(f"v_lshlrev_b32 v21, 3, {v(vL)}"); A(f"v_add_u32 v21, {WS_ACK}, v21")
    poll(A, "ack", ["buffer_load_dwordx2 v[60:61], v21, s[12:15], 0 offen sc1"], [60, 61], sT, 43, 14, 4)
    A(f"v_mov_b32 v5, {s(sT)}"); A("v_mov_b32 v4, 0"); A("s_mov_b64 exec, 1")
    A("buffer_store_dword v5, v4, s[12:15], 0 offen sc1")
    A("L_aux_done:")
    if O.probe_role == 1: ST.probe(31, "aux", O.probe_j, O.probe_k)
    ST.flush(31, "aux")
    A("s_endpgm")
    A("L_aux_slow:")
    KB = 131072
    A("s_waitcnt lgkmcnt(0)")
    A("s_cmp_ge_u32 s31, 4"); A("s_cbranch_scc1 L_aux_slow1")
    A("v_lshlrev_b32 v14, 5, v0"); A(f"v_add_u32 v14, {KB}, v14")
    A(f"ds_write_b128 v14, {v(KY,4)}"); A(f"ds_write_b128 v14, {v(KY+4,4)} offset:16")
    A("s_waitcnt lgkmcnt(0)")
    A("L_aux_slow1:")
    A("s_barrier")
    SK = 128
    A(f"v_lshlrev_b32 v14, 4, {v(vL)}"); A(f"v_add_u32 v14, {KB}, v14")
    for k in range(8): A(f"ds_read_b128 {v(SK+4*k,4)}, v14 offset:{1024*k}")
    A("s_waitcnt lgkmcnt(0)")
    A("s_mov_b32 s48, 0"); A("v_mov_b32 v16, s47")
    A("L_aux_slow2:")
    A(f"v_max3_u32 v14, {v(SK)}, {v(SK+1)}, {v(SK+2)}")
    for k in range(3, 31, 2): A(f"v_max3_u32 v14, v14, {v(SK+k)}, {v(SK+k+1)}")
    A(f"v_max_u32 v14, v14, {v(SK+31)}")
    for n in (8, 4, 2, 1): A(dpp("v_max_u32", 14, 14, 14, f"row_ror:{n}"))
    A("v_mov_b32 v15, v14"); A("v_permlane16_swap_b32 v14, v15"); A("v_max_u32 v14, v14, v15")
    A("v_mov_b32 v15, v14"); A("v_permlane32_swap_b32 v14, v15"); A("v_max_u32 v14, v14, v15")
    A("ds_write_b32 v16, v14"); A("v_add_u32 v16, 4, v16")
    for k in range(32):
        A(f"v_cmp_ne_u32 vcc, v14, {v(SK+k)}"); A(f"v_cndmask_b32 {v(SK+k)}, 0, {v(SK+k)}, vcc")
    A("s_add_u32 s48, s48, 1"); A("s_cmp_lt_u32 s48, 8"); A("s_cbranch_scc1 L_aux_slow2")
    A("s_branch L_aux_sel")

def normalize8(A, L, GR, vW, vWe, D1P, PX):
    RS, MB, XN = 160, 164, 168
    src = [GR, GR + 1, GR + 4, GR + 5]
    for rr in range(4):
        A(f"v_and_b32 {v(RS+rr)}, {MASKHI}, {v(src[rr])}")
        A(f"v_lshlrev_b32 {v(MB+rr)}, 16, {v(src[rr])}")
        A(f"v_rcp_f32 {v(RS+rr)}, {v(RS+rr)}")
    for a_ in range(2):
        A(f"v_pk_mul_f32 {v(MB+2*a_,2)}, {v(MB+2*a_,2)}, {v(RS+2*a_,2)} neg_lo:[1,0] neg_hi:[1,0]")
    for c2 in range(4):
        for cc in range(2):
            c = 2 * c2 + cc
            for a_ in range(2):
                A(f"v_pk_fma_f32 {v(XN+4*cc+2*a_,2)}, {v(PX+4*c+2*a_,2)}, {v(RS+2*a_,2)}, {v(MB+2*a_,2)}")
        up = 216 + 8 * (c2 & 1)
        for cc in range(2):
            c = 2 * c2 + cc
            sel = "op_sel:[0,0,0] op_sel_hi:[1,0,1]" if cc == 0 else "op_sel:[0,1,0] op_sel_hi:[1,1,1]"
            for a_ in range(2):
                x = XN + 4 * cc + 2 * a_
                A(f"v_cvt_pk_bf16_f32 {v(up+2*cc+a_)}, {v(x)}, {v(x+1)}")
                A(f"v_pk_fma_f32 {v(x,2)}, {v(x,2)}, {v(D1P+2*c2,2)}, {v(PX+4*c+2*a_,2)} {sel}")
            L.issue(f"ds_write_b64 {v(vW)}, {v(up+2*cc,2)} offset:{c*UST+512}")
        for cc in range(2):
            c = 2 * c2 + cc
            for a_ in range(2):
                x = XN + 4 * cc + 2 * a_
                A(f"v_cvt_pk_bf16_f32 {v(up+4+2*cc+a_)}, {v(x)}, {v(x+1)}")
            L.issue(f"ds_write_b64 {v(vWe)}, {v(up+4+2*cc,2)} offset:{c*EST}")

HREG = [K3, K3+4, K3+8, K3+12, KC, BAND+8, BAND+12, XR, XR+4, XR+8, XR+12, BOXD+16, BOXD+20, BOXOP+8]
SELR = 4

def convloop8(A, L, vU, vE, vTR, vST, sOut, extra):
    B5, B3, B9, B7 = BAND, BAND + 4, BAND + 8, BAND + 12
    mf = lambda d, x, y, c_: f"v_mfma_f32_16x16x32_bf16 {v(d,4)}, {v(x,4)}, {v(y,4)}, {c_}"
    acc = lambda c: ACC + 4 * c
    main = []; pos = {}
    ub = lambda o: UB + 4 * ((o + 7) % NUB)
    def add(text, needs=(), key=None):
        main.append((text, needs))
        if key: pos[key] = len(main) - 1
    for o in range(-7, 57):
        pos[("first", o)] = len(main)
        for c in range(8):
            if 0 <= 8 * c - o <= 16:
                add(mf(acc(c), KN + 4 * (8 * c - o), ub(o), v(acc(c), 4)), (("U", o),), ("near", c, o))
        if o >= 0 and o % 8 == 0:
            cp = o // 8
            if cp <= 5:
                add(mf(BOXD + 8, ub(o), B5, 0), (), ("bx", cp, "O0")); add(mf(BOXD + 12, ub(o), B3, 0), (), ("bx", cp, "O1"))
            if cp <= 3:
                add(mf(BOXD + 20, ub(o), B7, 0), (), ("bx", cp, "S1"))
                add(mf(acc(cp + 4), KC, ub(o), v(acc(cp + 4), 4)), (), ("corr", cp))
            pos[("lastU", o)] = len(main) - 1
            if cp <= 5:
                add(mf(BOXD, U24, B5, 0), (("U24", cp),), ("bx", cp, "E0")); add(mf(BOXD + 4, U24, B3, 0), (), ("bx", cp, "E1"))
            if cp <= 3:
                add(mf(BOXD + 16, U24, B9, 0), (), ("bx", cp, "S0"))
            pos[("lastU24", cp)] = len(main) - 1
        else:
            pos[("lastU", o)] = len(main) - 1
        if o >= 0:
            cp, ph = o // 8, o % 8
            for nm, p_, lim, dls, bop, kr in (("O", 2, 5, (2, 3, 4), BOXOP + 4, KO), ("E", 3, 5, (2, 3, 4), BOXOP, KE), ("S", 4, 3, (4, 5, 6, 7), BOXOP + 8, K3)):
                if ph == p_ and cp <= lim:
                    pos[("far", cp, nm)] = len(main)
                    for dl in dls:
                        if cp + dl <= 7: add(mf(acc(cp + dl), bop, kr + 4 * (dl - dls[0]), v(acc(cp + dl), 4)))
                    pos[("farend", cp, nm)] = len(main) - 1
    N = len(main)
    F = []
    for o in range(-7, 57):
        prev = o - NUB
        after = pos[("lastU", prev)] if prev >= -7 else -1
        F.append(dict(text=f"ds_read_b128 {v(ub(o),4)}, {v(vU)} offset:{64*(o+7)}", after=after,
                      before=max(after + 1, pos[("first", o)] - 6), tag=("U", o), lds=True, chain="U"))
    for cp in range(6):
        after = pos[("lastU24", cp - 1)] if cp else -1
        F.append(dict(text=f"ds_read_b128 {v(U24,4)}, {v(vU)} offset:{432+512*cp}", after=after,
                      before=max(after + 1, pos[("bx", cp, "E0")] - 8), tag=("U24", cp), lds=True))
    first = {}
    for i, (t, _) in enumerate(main):
        for c in range(8):
            if t.split()[1].rstrip(",") == v(acc(c), 4) and c not in first: first[c] = i
    EP = [BOXD + 2 * c for c in range(8)]
    for c in range(8):
        dl = min(first[c], pos[("bx", 0, "O0")])
        F.append(dict(text=f"ds_read_b64 {v(EP[c],2)}, {v(vE)} offset:{512*c}", after=-1, before=max(0, dl - 6) if c > 1 else 0,
                      tag=("e", c), lds=True, chain=("e", c)))
        for k in range(4):
            t = (f"v_lshlrev_b32 {v(acc(c)+k)}, 16, {v(EP[c]+k//2)}" if k % 2 == 0 else
                 f"v_and_b32 {v(acc(c)+k)}, {MASKHI}, {v(EP[c]+k//2)}")
            F.append(dict(text=t, after=-1 if c <= 1 else 1, before=max(0, dl - 1), needs=(("e", c),), chain=("e", c)))
    for cp in range(6):
        for nm, d0, op in (("O", BOXD + 8, BOXOP + 4), ("E", BOXD, BOXOP), ("S", BOXD + 16, BOXOP + 8)):
            if nm == "S" and cp > 3: continue
            after = max(pos[("bx", cp, nm + "0")], pos[("bx", cp, nm + "1")]) + 3
            if cp: after = max(after, pos[("farend", cp - 1, nm)])
            for dd in range(4):
                F.append(dict(text=f"v_cvt_pk_bf16_f32 {v(op+dd)}, {v(d0+dd)}, {v(d0+4+dd)}", after=after,
                              before=pos[("far", cp, nm)] - 1))
    OT = 10; TR = 12
    tail = []
    for c in range(8):
        done = pos[("near", c, 8 * c)]
        ins = [f"v_cvt_pk_bf16_f32 {v(OT)}, {v(acc(c))}, {v(acc(c)+1)}", f"v_cvt_pk_bf16_f32 {v(OT+1)}, {v(acc(c)+2)}, {v(acc(c)+3)}"]
        w = f"ds_write_b64 {v(vE)}, {v(OT,2)} offset:{512*c}"
        if c < 7:
            for x in ins: F.append(dict(text=x, after=done + 4, before=min(N, done + 12), chain="o"))
            F.append(dict(text=w, after=done + 4, before=min(N, done + 13), lds=True, tag=("o", c), chain="o"))
            if c & 1:
                pc = c // 2
                F.append(dict(text="s_barrier", after=done + 8, before=done + 16, needs=(("o", c),), chain="o"))
                for h in range(2):
                    F.append(dict(text=f"ds_read_b64_tr_b16 {v(TR+2*h,2)}, {v(vTR)} offset:{1024*pc+4*EST*h}", after=done + 8, before=done + 18,
                                  lds=True, tag=("tr", pc), chain="o"))
                F.append(dict(text=f"buffer_store_dwordx4 {v(TR,4)}, {v(vST)}, {s(sOut,4)}, {'0' if pc == 0 else s(53+pc)} offen", after=done + 14,
                              before=done + 24, needs=(("tr", pc),), chain="o"))
        else:
            tail += [(x, False) for x in ins] + [(w, True)]
    extra(F, pos, N)
    schedule(A, L, main, F)
    for x, l in tail:
        if l: L.issue(x)
        else: A(x)

def gen_conv(A, O):
    L = Lgkm(A); ST = Stamper(A, O.stamps)
    ST()
    for d, k in ((4, "x"), (8, "lar"), (12, "aim"), (16, "cre"), (20, "cim"), (24, "ldt"), (28, "dsk"), (32, "out"), (36, "ws"),
                 (56, "wd")):
        srd_load(A, d, k)
    sc = dict(sL=40, sLlo=41, sK=42)
    sE, sT = 43, 52
    A("s_and_b32 s44, s2, 7"); A("s_lshl_b32 s44, s44, 4"); A("s_add_u32 s44, s44, s3"); A("s_sub_u32 s44, s44, 16")
    A(f"v_and_b32 {v(vL)}, 63, v0"); A(f"v_and_b32 {v(vI)}, 15, v0"); A(f"v_bfe_u32 {v(vG)}, v0, 4, 2")
    A("v_lshrrev_b32 v4, 6, v0"); A("v_readfirstlane_b32 s45, v4")
    A(f"s_mov_b32 s40, {f32bits(L_HI)}"); A(f"s_mov_b32 s41, {f32bits(L_LO)}")
    A("s_lshl_b32 s46, s44, 3"); A("s_add_u32 s46, s46, s45")
    A("s_lshl_b32 s47, s46, 8"); A("s_lshl_b32 s48, s46, 1"); A("s_lshl_b32 s49, s44, 4")
    A(f"v_lshl_add_u32 v4, {v(vL)}, 2, s47")
    A("v_mov_b32 v5, s48"); A("v_mov_b32 v6, s49")
    A("v_lshlrev_b32 v7, 13, v0"); A("v_add_u32 v7, s49, v7")
    A("s_mov_b32 s53, 4096")
    A("s_waitcnt lgkmcnt(0)")
    A("s_load_dword s53, s[36:37], 0".replace("s53", "s50"))
    for d, k in ((24, "ldt"), (8, "lar"), (12, "aim"), (16, "cre"), (20, "cim")): srd_fin(A, d, k)
    A("buffer_load_ushort v15, v5, s[24:27], 0 offen")
    for k, d in enumerate((8, 12, 16, 20)): A(f"buffer_load_dword {v(16+k)}, v4, {s(d,4)}, 0 offen")
    for d, k in ((4, "x"), (28, "dsk"), (32, "out"), (56, "wd")): srd_fin(A, d, k)
    srd_fin(A, 36, "ws", size=WS_SIZE)
    D1P = 232; DR = 144
    A(f"buffer_load_dwordx4 {v(DR,4)}, v6, s[28:31], 0 offen")
    for rr in range(4):
        A(f"buffer_load_dwordx4 {v(XR+4*rr,4)}, v7, s[4:7], {'0' if rr < 2 else 's53'} offen offset:{2048*(rr&1)}")
    vSH = 4
    A(f"v_lshlrev_b32 {v(vSH)}, 3, {v(vG)}"); A(f"v_sub_u32 {v(vSH)}, {v(vSH)}, {v(vI)}")
    A(f"v_add_u32 {v(vSH)}, 15, {v(vSH)}"); A(f"v_min_u32 {v(vSH)}, 31, {v(vSH)}")
    for k, (lo, hi) in enumerate(((6, 10), (3, 5), (4, 12), (5, 11))): band(A, BAND + 4 * k, vSH, lo, hi, 0x3f80, 5, 6, 7, 43)
    band(A, KC, vSH, 12, 13, 0xffff, 5, 6, 7, 43)
    A("s_waitcnt lgkmcnt(0)")
    tag_from_epoch(A, 50, sT)
    A("s_cmp_lg_u32 s45, 0"); A("s_cbranch_scc1 L_conv_noack")
    A("s_lshl_b32 s50, s44, 2"); A(f"s_add_u32 s50, s50, {WS_ACK}")
    A("v_mov_b32 v10, s50"); A(f"v_mov_b32 v11, {s(sT)}"); A("s_mov_b64 exec, 1")
    A("buffer_store_dword v11, v10, s[36:39], 0 offen sc1")
    A("s_mov_b64 exec, -1")
    A("L_conv_noack:")
    vKB, vRow, vOp, vU, vE, vWD = 4, 5, 6, 7, 8, 9
    A(f"s_mul_i32 s50, s45, {KST}")
    A(f"v_mov_b32 {v(vKB)}, s50")
    A(f"v_lshl_add_u32 {v(vRow)}, {v(vL)}, 3, s50")
    A(f"v_mul_u32_u24 {v(vOp)}, 528, {v(vI)}")
    A(f"v_and_b32 v10, 1, {v(vG)}"); A(f"v_lshl_add_u32 {v(vOp)}, v10, 8, {v(vOp)}")
    A(f"v_lshrrev_b32 v10, 1, {v(vG)}"); A(f"v_lshl_add_u32 {v(vOp)}, v10, 4, {v(vOp)}")
    A(f"v_add_u32 {v(vOp)}, s50, {v(vOp)}")
    A(f"s_mul_i32 s51, s45, {UST}")
    A(f"v_lshlrev_b32 v10, 5, {v(vI)}")
    A(f"v_lshl_add_u32 {v(vU)}, {v(vG)}, 4, v10"); A(f"v_add3_u32 {v(vU)}, {v(vU)}, s51, 32")
    A(f"s_mul_i32 s54, s45, {EST}"); A(f"s_add_u32 s54, s54, {EBASE}")
    A(f"v_lshl_add_u32 {v(vE)}, {v(vG)}, 3, v10"); A(f"v_add_u32 {v(vE)}, s54, {v(vE)}")
    A(f"s_mul_i32 s54, s45, {448*2048}"); A("s_add_u32 s54, s54, s49")
    A(f"v_lshlrev_b32 {v(vWD)}, 11, {v(vL)}"); A(f"v_add_u32 {v(vWD)}, s54, {v(vWD)}")
    A(f"s_mul_i32 s55, s45, 7168"); A(f"s_add_u32 s55, s55, {WDB}")
    A("s_waitcnt vmcnt(5)")
    ST()
    K = Asm(); LK = Lgkm(K)
    D = G1.kgen(K, LK, vRow, vOp, sc)
    G1.ktables(K, LK, D, vKB, sc)
    n = len(K.lines); step = n // 8; out = []
    for i, ln in enumerate(K.lines):
        out.append(ln)
        if i % step == step - 1 and i // step < 7:
            j = i // step
            out += [f"s_mov_b32 s54, {j*64*2048}", f"s_add_u32 m0, s55, {1024*j}", f"buffer_load_dwordx4 {v(vWD)}, s[56:59], s54 offen lds"]
    A.ext(out); L.q = LK.q
    ST(L)
    PX = 176
    A("s_waitcnt vmcnt(7)")
    for c in range(8):
        for rr in range(4):
            src = XR + 4 * rr + (c >> 1); d = PX + 4 * c + rr
            A(f"v_lshlrev_b32 {v(d)}, 16, {v(src)}" if c % 2 == 0 else f"v_and_b32 {v(d)}, {MASKHI}, {v(src)}")
    for k in range(4):
        A(f"v_lshlrev_b32 {v(D1P+2*k)}, 16, {v(DR+k)}"); A(f"v_and_b32 {v(D1P+2*k+1)}, {MASKHI}, {v(DR+k)}")
    for k in range(8): A(f"v_add_f32 {v(D1P+k)}, 1.0, {v(D1P+k)}")
    vW, vWe, vPo = 4, 5, 6
    A(f"v_lshlrev_b32 {v(vW)}, 3, v0"); A(f"v_add_u32 {v(vWe)}, {EBASE}, {v(vW)}")
    A(f"v_lshlrev_b32 {v(vPo)}, 4, v0"); A(f"v_add_u32 {v(vPo)}, {WS_STATS}, {v(vPo)}")
    A("v_mov_b32 v12, 0"); A("v_mov_b32 v13, 0"); A(f"v_lshl_add_u32 v10, {v(vL)}, 3, s51")
    A("s_mov_b32 s53, 8192")
    L.drain(); A("s_barrier")
    L.issue("ds_write_b64 v10, v[12:13]")
    GR = 144
    ST(L)
    poll(A, "conv", [f"buffer_load_dwordx4 {v(GR,4)}, {v(vPo)}, s[36:39], 0 offen sc1", f"buffer_load_dwordx4 {v(GR+4,4)}, {v(vPo)}, s[36:39], s53 offen sc1"],
         [GR + 3, GR + 7], sT, 43, 10, O.poll_sleep)
    ST(L)
    normalize8(A, L, GR, vW, vWe, D1P, PX)
    vTR, vST, vH = 232, 233, 9
    A(f"v_bfe_u32 v10, v0, 2, 2"); A(f"v_mul_u32_u24 v10, {EST}, v10")
    A("v_lshrrev_b32 v11, 4, v0"); A("v_lshl_add_u32 v10, v11, 5, v10")
    A("v_and_b32 v11, 3, v0"); A("v_lshl_add_u32 v10, v11, 3, v10"); A(f"v_add_u32 {v(234)}, {EBASE}, v10")
    A(f"v_lshlrev_b32 v11, 11, v0"); A(f"v_add_u32 {v(235)}, s49, v11")
    A("s_mov_b32 s54, 0x100000"); A("s_mov_b32 s55, 0x200000")
    L.drain(); A("s_barrier")
    ST(L)
    vTR, vST = 0, 1
    A(f"v_mov_b32 {v(vTR)}, v234"); A(f"v_mov_b32 {v(vST)}, v235")
    A(f"v_lshl_add_u32 v9, {v(vG)}, 4, {v(vI)}"); A("v_lshlrev_b32 v9, 4, v9")
    A(f"s_mul_i32 s46, s45, 14336"); A(f"s_add_u32 s46, s46, {WS_H}"); A("v_add_u32 v9, s46, v9")
    A("s_mov_b32 s46, 4096"); A("s_mov_b32 s47, 8192"); A("s_mov_b32 s48, 12288")
    hso = ["0", "s46", "s47", "s48"]
    A(f"v_lshrrev_b32 v10, 3, {v(vI)}"); A(f"v_lshl_add_u32 v10, {v(vG)}, 1, v10"); A("v_lshlrev_b32 v10, 4, v10")
    A(f"v_add_u32 v3, {WS_SEL}, v10")
    hloads = [f"buffer_load_dwordx4 {v(SELR,4)}, v3, s[36:39], 0 offen sc1"] + \
             [f"buffer_load_dwordx4 {v(HREG[i],4)}, v9, s[36:39], {hso[i//4]} offen offset:{1024*(i%4)} sc1" for i in range(14)]
    OTs = 11
    def extra(F, pos, N):
        a0 = pos[("farend", 3, "S")] + 1
        for i, x in enumerate(hloads): F.append(dict(text=x, after=a0 + i, before=a0 + i + 3, chain="h"))
    A(f"v_mov_b32 v2, {v(vU)}")
    convloop8(A, L, 2, vE, vTR, vST, 32, extra)
    L.drain()
    ST(L)
    A("s_barrier")
    TR = 12
    for h in range(2): L.issue(f"ds_read_b64_tr_b16 {v(TR+2*h,2)}, {v(vTR)} offset:{1024*3+4*EST*h}", "tr")
    A("v_mbcnt_lo_u32_b32 v2, -1, 0"); A("v_mbcnt_hi_u32_b32 v2, -1, v2")
    A("v_lshrrev_b32 v10, 4, v2"); A("v_lshlrev_b32 v10, 7, v10")
    A("v_bfe_u32 v11, v2, 1, 1"); A("v_lshl_add_u32 v10, v11, 6, v10")
    A("v_bfe_u32 v11, v2, 2, 2"); A("v_lshl_add_u32 v10, v11, 4, v10")
    A("v_and_b32 v11, 1, v2"); A("v_lshl_add_u32 v10, v11, 3, v10")
    A(f"s_mul_i32 s55, s45, 7168"); A(f"s_add_u32 s55, s55, {WDB}"); A("v_add_u32 v10, s55, v10")
    AWD = 16
    for i in range(14): L.issue(f"ds_read_b64_tr_b16 {v(AWD+2*i,2)}, v10 offset:{512*i}", ("wd", i))
    A("s_waitcnt vmcnt(1)")
    tags = [SELR + 3] + [r + 3 for r in HREG]
    A(f"v_xor_b32 v11, {s(sT)}, {v(tags[0])}")
    for r in tags[1:]: A(f"v_bitop3_b32 v11, v11, {v(r)}, {s(sT)} bitop3:0xf6")
    A("v_cmp_ne_u32 vcc, 0, v11")
    A("s_cbranch_vccz L_conv_hok")
    poll(A, "h", hloads, tags, sT, 43, 11, O.poll_sleep)
    A("L_conv_hok:")
    ST()
    for k in range(8): A(f"v_readlane_b32 {s(4+k)}, {v(SELR)}, {8*k}")
    A("s_lshl_b32 s43, s45, 6"); A("s_add_u32 s43, s43, 1536"); A("v_add_u32 v11, s43, v2")
    A("s_mov_b32 s43, 0x300000")
    for k in range(8): A(f"v_cmpx_ne_u32 vcc, {s(4+k)}, v11")
    L.need("tr")
    A("s_nop 3")
    A(f"buffer_store_dwordx4 {v(TR,4)}, {v(vST)}, s[32:35], s43 offen")
    A("s_mov_b64 exec, -1")
    DY = 48
    for i in range(14):
        L.need(("wd", i))
        A(f"v_mfma_f32_16x16x16_bf16 {v(DY,4)}, {v(AWD+2*i,2)}, {v(HREG[i],2)}, {v(DY,4) if i else 0}")
    A("v_lshrrev_b32 v10, 5, v2"); A("v_lshlrev_b32 v10, 8, v10")
    A("v_bfe_u32 v11, v2, 4, 1"); A("v_lshl_add_u32 v10, v11, 7, v10")
    A("v_and_b32 v11, 7, v2"); A("v_lshl_add_u32 v10, v11, 4, v10")
    A("s_lshl_b32 s43, s45, 9"); A(f"s_add_u32 s43, s43, {REDB}"); A("v_add_u32 v10, s43, v10")
    A("s_mov_b32 exec_lo, 0x00ff00ff"); A("s_mov_b32 exec_hi, 0xff00ff00")
    L.issue(f"ds_write_b128 v10, {v(DY,4)}")
    A("s_mov_b64 exec, -1")
    A("s_waitcnt vmcnt(1)")
    L.drain(); A("s_barrier")
    A("s_cmp_lg_u32 s45, 0"); A("s_cbranch_scc1 L_conv_end")
    A("v_bfe_u32 v10, v2, 2, 1"); A("v_lshlrev_b32 v10, 7, v10")
    A("v_lshrrev_b32 v11, 3, v2"); A("v_lshl_add_u32 v10, v11, 4, v10")
    A("v_and_b32 v11, 3, v2"); A("v_lshl_add_u32 v10, v11, 2, v10"); A(f"v_add_u32 v10, {REDB}, v10")
    for k in range(8): L.issue(f"ds_read2st64_b32 {v(16+2*k,2)}, v10 offset0:{2*k} offset1:{2*k+1}")
    A("v_and_b32 v11, 7, v2"); A(f"v_mul_u32_u24 v12, {EST}, v11"); A(f"v_lshl_add_u32 v12, {v(SELR)}, 1, v12"); A(f"v_add_u32 v12, {EBASE}, v12")
    L.issue("ds_read_u16 v13, v12")
    A(f"v_lshlrev_b32 v12, 11, {v(SELR)}"); A("v_lshl_add_u32 v12, v11, 1, v12"); A("v_add_u32 v12, s49, v12")
    L.drain()
    for st in (8, 4, 2):
        for k in range(0, st, 2): A(f"v_pk_add_f32 {v(16+k,2)}, {v(16+k,2)}, {v(16+st+k,2)}")
    A("v_lshlrev_b32 v13, 16, v13"); A("v_add_f32 v16, v16, v17")
    A(f"v_fma_f32 v16, v16, {v(SELR+1)}, v13"); A("v_cvt_pk_bf16_f32 v16, v16, v16")
    A("buffer_store_short v16, v12, s[32:35], 0 offen")
    A("L_conv_end:")
    if O.stamps:
        A("s_waitcnt vmcnt(0)"); ST()
        A("v_mbcnt_lo_u32_b32 v0, -1, 0"); A("v_mbcnt_hi_u32_b32 v0, -1, v0")
    if O.probe_role == 2: ST.probe(45, "conv", O.probe_j, O.probe_k)
    ST.flush(45, "conv")
    A("s_endpgm")

def build(O):
    name = NAME + "_kernel"
    A = Asm()
    head(A, name)
    A("s_cmp_ge_u32 s2, 256"); A("s_cbranch_scc1 L_exit")
    A("s_lshr_b32 s3, s2, 3"); A("s_cmp_ge_u32 s3, 16"); A("s_cbranch_scc1 L_conv")
    gen_aux(A, O)
    A("L_exit:"); A("s_endpgm")
    A(".p2align 6")
    A("L_conv:")
    gen_conv(A, O)
    txt = f"; @launch grid=(256,1,1) block=(512,1,1) lds={LDS_TOTAL}\n" + '.amdgcn_target "amdgcn-amd-amdhsa--gfx950"\n' + A.text()
    print("lines", len(A.lines), "auto nops", A.nauto, file=sys.stderr)
    return txt + KD.format(name=name, vgpr=256, sgpr=96, acc=256)

if __name__ == "__main__":
    O = Opt()
    for a_ in sys.argv[2:]:
        k, val = a_.split("="); setattr(O, k, int(val))
    open(sys.argv[1], "w").write(build(O))
```

```python
import sys
from parts import *

WS_ACK = 2048
WS_STATS = 4096
WS_SEL = 24576
WS_G = 32768
WS_Y = WS_G + 8 * 57344
WS_SIZE = WS_Y + 128 * 2048
WS_STAMP = 128 << 20
SPIN_MAX = 1 << 16
XS = 131072; XST = 1040
KEYS = XS + 9 * XST
CTL = KEYS + 8192
LDS_TOTAL = CTL + 512
PART = 24512; WDST = 7184
UST = 4608; EBASE = 8 * UST; EST = 4160; KST = 8448; TBASE = 71680; TST = 4096; PB_E = 2240
vL, vI, vG = 1, 2, 3
KN, KE, KO, K3, KC = 16, 84, 96, 108, 124
BAND = 128; ACC = 144; UB = 176; NUB = 6; U24 = 200; BOXD = 204; BOXOP = 228; XR = 240

class Opt:
    stamps = 0
    poll_sleep = 2
    aux_first_sleep = 8
    stream_wait = 1
    slab_early = 0
    xcol_at = 2
    code_pf = 1
    conv_first = 0
    addtid = 0
    stagger = 2
    per_gap = 2
    prio = 1
    exp = 0
    comb = 1
    g_first_sleep = 0
    probe_role = 0
    probe_j = 0
    probe_k = 0

class Stamper:
    def __init__(self, A, on, base=70):
        self.A = A; self.on = on; self.n = 0; self.base = base
    def __call__(self, L=None):
        if not self.on: return
        A = self.A
        if L is not None: L.drain()
        A("s_memrealtime s[68:69]"); A("s_waitcnt lgkmcnt(0)"); A(f"s_mov_b32 {s(self.base+self.n)}, s68")
        self.n += 1
    def cyc0(self, r):
        if self.on: self.A(f"s_memtime {s(r,2)}"); self.A("s_waitcnt lgkmcnt(0)")
    def cyc1(self, r):
        if not self.on: return
        A = self.A
        A("s_memtime s[68:69]"); A("s_waitcnt lgkmcnt(0)"); A(f"s_sub_u32 s68, s68, {s(r)}"); A(f"s_add_u32 {s(self.base+self.n)}, s68, {s(self.base)}"); self.n += 1
    def probe(self, sWave, uid, j, k):
        A = self.A
        A(f"s_cmp_lg_u32 {s(sWave)}, 0"); A(f"s_cbranch_scc1 L_noprobe_{uid}")
        A(f"s_sub_u32 s66, {s(self.base+j)}, {s(self.base)}"); A(f"s_mul_i32 s66, s66, {k}"); A("s_min_u32 s66, s66, 20000")
        A("s_memrealtime s[68:69]"); A("s_waitcnt lgkmcnt(0)"); A("s_mov_b32 s67, s68")
        A(f"L_probe_{uid}:")
        A("s_memrealtime s[68:69]"); A("s_waitcnt lgkmcnt(0)"); A("s_sub_u32 s68, s68, s67"); A("s_cmp_lt_u32 s68, s66"); A(f"s_cbranch_scc1 L_probe_{uid}")
        A(f"L_noprobe_{uid}:")
    def flush(self, sWave, uid):
        if not self.on: return
        A = self.A
        A(f"s_and_b32 s68, {s(sWave)}, 3"); A("s_cmp_lg_u32 s68, 0"); A(f"s_cbranch_scc1 L_nostamp_{uid}")
        A("s_mov_b64 exec, -1")
        A(f"s_load_dwordx2 s[64:65], s[0:1], {OFF['ws']}"); A("s_waitcnt lgkmcnt(0)")
        A(f"s_add_u32 s64, s64, {WS_STAMP}"); A("s_addc_u32 s65, s65, 0"); A("s_mov_b32 s66, 0x20000"); A("s_mov_b32 s67, 0x00020000")
        A("v_mov_b32 v2, 0")
        for j in range(self.n): A(f"v_writelane_b32 v2, {s(self.base+j)}, {j}")
        A(f"s_mov_b32 s68, {self.n}"); A("v_writelane_b32 v2, s68, 30")
        A("s_mov_b32 s68, 0x5a5a5a5a"); A("v_writelane_b32 v2, s68, 31")
        A(f"s_lshr_b32 s68, {s(sWave)}, 2"); A("s_lshl_b32 s69, s94, 1"); A("s_add_u32 s68, s68, s69"); A("s_lshl_b32 s68, s68, 7")
        A("v_and_b32 v3, 63, v0"); A("v_lshl_add_u32 v3, v3, 2, s68")
        A("s_mov_b64 exec, 0xffffffff")
        A("buffer_store_dword v2, v3, s[64:67], 0 offen")
        A(f"L_nostamp_{uid}:")

def tag_from_epoch(A, sE, sT):
    A(f"s_mul_i32 {s(sT)}, {s(sE)}, 0x9e3779b1"); A(f"s_add_u32 {s(sT)}, {s(sT)}, 0x7f4a7c15")

def bounded(A, sCnt, out, lim=SPIN_MAX):
    A(f"s_add_u32 {s(sCnt)}, {s(sCnt)}, 1"); A(f"s_cmp_ge_u32 {s(sCnt)}, {lim}"); A(f"s_cbranch_scc1 {out}")

def poll(A, uid, loads, tagregs, sT, sCnt, vT, sleep):
    A(f"s_mov_b32 {s(sCnt)}, 0")
    A(f"L_poll_{uid}:")
    for x in loads: A(x)
    A("s_waitcnt vmcnt(0)")
    A(f"v_xor_b32 {v(vT)}, {s(sT)}, {v(tagregs[0])}")
    for r in tagregs[1:]: A(f"v_bitop3_b32 {v(vT)}, {v(vT)}, {v(r)}, {s(sT)} bitop3:0xf6")
    A(f"v_cmp_ne_u32 vcc, 0, {v(vT)}")
    A(f"s_cbranch_vccz L_polled_{uid}")
    bounded(A, sCnt, f"L_polled_{uid}")
    if sleep: A(f"s_sleep {sleep}")
    A(f"s_branch L_poll_{uid}")
    A(f"L_polled_{uid}:")

def poll_masked(A, uid, loads, tagregs, sT, sCnt, sM, sleep, issued=False):
    n = len(loads)
    if not issued:
        for x in loads: A(x)
    A(f"s_mov_b32 {s(sCnt)}, 0")
    A(f"L_poll_{uid}:")
    A("s_waitcnt vmcnt(0)")
    for k in range(n): A(f"v_cmp_ne_u32 {s(sM+2*k,2)}, {s(sT)}, {v(tagregs[k])}")
    if n == 1: A(f"s_cmp_eq_u64 {s(sM,2)}, 0"); A(f"s_cbranch_scc1 L_polled_{uid}")
    else:
        A(f"s_or_b64 vcc, {s(sM,2)}, {s(sM+2,2)}")
        for k in range(2, n): A(f"s_or_b64 vcc, vcc, {s(sM+2*k,2)}")
        A(f"s_cbranch_scc0 L_polled_{uid}")
    bounded(A, sCnt, f"L_polled_{uid}")
    if sleep: A(f"s_sleep {sleep}")
    for k in range(n):
        A(f"s_mov_b64 exec, {s(sM+2*k,2)}"); A(f"s_cbranch_execz L_ps_{uid}_{k}")
        A(loads[k])
        A(f"L_ps_{uid}_{k}:")
    A("s_mov_b64 exec, -1")
    A(f"s_branch L_poll_{uid}")
    A(f"L_polled_{uid}:")

def lds_count_wait(A, uid, vAddr, off, n, vTmp, sTmp, sCnt, sleep=0):
    A(f"s_mov_b32 {s(sCnt)}, 0")
    A(f"L_lw_{uid}:")
    A(f"ds_read_b32 {v(vTmp)}, {v(vAddr)} offset:{off}")
    bounded(A, sCnt, f"L_lwx_{uid}", SPIN_MAX * 8)
    A("s_waitcnt lgkmcnt(0)")
    A(f"v_readfirstlane_b32 {s(sTmp)}, {v(vTmp)}")
    A(f"s_cmp_ge_u32 {s(sTmp)}, {n}"); A(f"s_cbranch_scc1 L_lwx_{uid}")
    if sleep: A(f"s_sleep {sleep}")
    A(f"s_branch L_lw_{uid}")
    A(f"L_lwx_{uid}:")
    A("s_waitcnt lgkmcnt(0)")

def code_prefetch(A, uid, sP, vA, vD, label, n, back=False):
    A(f"s_getpc_b64 {s(sP,2)}")
    A(f"L_pc_{uid}:")
    if back: A(f"s_sub_u32 {s(sP)}, {s(sP)}, L_pc_{uid}-{label}"); A(f"s_subb_u32 {s(sP+1)}, {s(sP+1)}, 0")
    else: A(f"s_add_u32 {s(sP)}, {s(sP)}, {label}-L_pc_{uid}"); A(f"s_addc_u32 {s(sP+1)}, {s(sP+1)}, 0")
    A(f"s_mov_b32 {s(sP+2)}, L_code_end-{label}"); A(f"s_mov_b32 {s(sP+3)}, 0x00020000")
    A(f"v_lshlrev_b32 {v(vA)}, 7, {v(vL)}")
    for k in range(n):
        if k: A(f"v_add_u32 {v(vA)}, 8192, {v(vA)}")
        A(f"buffer_load_dword {v(vD)}, {v(vA)}, {s(sP,4)}, 0 offen")

def gen_aux(A, O):
    L = Lgkm(A); ST = Stamper(A, O.stamps)
    ST()
    sX, sA, sW, sE, sT, sKH = 50, 30, 31, 28, 29, 44
    A("s_and_b32 s50, s2, 7"); A("s_lshl_b32 s30, s50, 4"); A("s_add_u32 s30, s30, s3"); A("s_and_b32 s44, s3, 1")
    A("s_cmp_ge_u32 s3, 3"); A("s_addc_u32 s38, s3, 0"); A("s_cmp_ge_u32 s3, 10"); A("s_addc_u32 s38, s38, 0")
    A("s_cmp_eq_u32 s3, 14"); A("s_cselect_b32 s38, 3, s38"); A("s_cmp_eq_u32 s3, 15"); A("s_cselect_b32 s38, 11, s38")
    A(f"v_and_b32 {v(vL)}, 63, v0"); A(f"v_and_b32 {v(vI)}, 15, v0"); A(f"v_bfe_u32 {v(vG)}, v0, 4, 2")
    A("v_lshrrev_b32 v29, 6, v0"); A("v_readfirstlane_b32 s31, v29")
    A(f"v_lshlrev_b32 v28, 4, {v(vL)}")
    A("s_lshl_b32 s32, s30, 15"); A("v_lshlrev_b32 v30, 13, v29"); A("v_add3_u32 v30, v30, v28, s32")
    A(f"v_mov_b32 v22, {CTL}"); A("v_mov_b32 v23, 1")
    A("s_cmp_ge_u32 s31, 4"); A("s_cbranch_scc1 L_aux_sinit")
    if O.prio: A("s_setprio 2")
    A("s_mov_b32 s33, 4096")
    X, W = 32, 64
    A("s_waitcnt lgkmcnt(0)")
    A("s_load_dword s28, s[12:13], 0")
    srd_fin(A, 4, "x"); srd_fin(A, 8, "wr")
    for k in range(8): A(f"buffer_load_dwordx4 {v(X+4*k,4)}, v30, s[4:7], {'0' if k < 4 else 's33'} offen offset:{1024*(k&3)} nt")
    for k in range(2): A(f"buffer_load_dwordx4 {v(W+4*k,4)}, v28, s[8:11], 0 offen offset:{1024*k}")
    srd_fin(A, 12, "ws", size=WS_SIZE); srd_fin(A, 24, "wd")
    A("s_barrier")
    A(f"v_lshlrev_b32 v12, 4, v0"); A(f"v_add_u32 v12, {WS_STATS}, v12")
    RI = 88
    A("v_lshlrev_b32 v13, 2, v0"); A("v_sub_u32 v13, 0x800, v13")
    roff = [0, 1, 1024, 1025, 2, 3, 1026, 1027]
    for k in range(8): A(f"v_subrev_u32 {v(RI+k)}, {roff[k]}, v13")
    A("s_mov_b32 s40, 4096"); A("s_mov_b32 s41, 8192"); A("s_mov_b32 s42, 12288"); A(f"s_mov_b32 s45, {MASKHI}")
    A("v_lshrrev_b32 v24, 4, v0"); A("v_lshl_add_u32 v24, v24, 2, v22")
    A(f"v_lshl_add_u32 v25, {v(vI)}, 2, v22")
    A(f"v_and_b32 v26, 31, {v(vL)}"); A("v_lshl_add_u32 v26, v26, 2, v22")
    A(f"v_lshrrev_b32 v27, 5, {v(vL)}"); A("v_lshl_add_u32 v27, v27, 6, v22")
    A("s_lshl_b32 s47, s31, 5"); A(f"s_add_u32 s47, s47, {CTL+64}")
    A(f"v_lshl_add_u32 v31, {v(vL)}, 2, s47")
    if O.comb:
        A("s_lshl_b32 s32, s30, 6"); A(f"s_add_u32 s32, s32, {WS_STATS}")
        A(f"v_bfe_u32 v11, {v(vL)}, 2, 1"); A("v_lshlrev_b32 v11, 13, v11"); A(f"v_and_b32 v10, 3, {v(vL)}"); A("v_lshl_add_u32 v11, v10, 4, v11")
        A("v_add_u32 v11, s32, v11")
        A("s_lshl_b32 s32, s31, 4"); A(f"s_add_u32 s32, s32, {CTL+320}")
        A(f"v_lshlrev_b32 v10, 6, {v(vG)}"); A("v_add_u32 v10, s32, v10")
        A(f"v_lshl_add_u32 v9, {v(vL)}, 4, v22")
    else:
        A("s_lshl_b32 s32, s30, 2"); A("s_add_u32 s32, s32, s31"); A("s_lshl_b32 s32, s32, 4"); A(f"s_add_u32 s32, s32, {WS_STATS}")
        A(f"v_lshlrev_b32 v11, 13, {v(vG)}"); A("v_add_u32 v11, s32, v11")
    A("s_mov_b32 s33, 0x3f803f80")
    S1, S2, S3, SW = 72, 76, 80, 84
    A("s_waitcnt vmcnt(2)")
    if O.stream_wait: A("s_mov_b64 exec, 1"); A("ds_add_u32 v22, v23 offset:260"); A("s_mov_b64 exec, -1")
    ST()
    def dot(d, x, y, first):
        A(f"v_dot2_f32_bf16 {v(d)}, {x}, {v(y)}, 0" if first else f"v_dot2c_f32_bf16 {v(d)}, {x}, {v(y)}")
    for k in range(8):
        for r in range(4):
            dot(S1 + r, "s33", X + 8 * r + k, k == 0); dot(S2 + r, v(X + 8 * r + k), X + 8 * r + k, k == 0)
    A("s_waitcnt vmcnt(0)")
    for k in range(8):
        for r in range(4): dot(S3 + r, v(W + k), X + 8 * r + k, k == 0)
        dot(SW, "s33", W + k, k == 0)
    A(f"v_mov_b32 {v(SW+1)}, {v(SW)}")
    pairs = [(q + r, q + r + 1) for q in (S1, S2, S3) for r in (0, 2)] + [(SW, SW + 1)]
    for p, q in pairs: A(f"v_permlane32_swap_b32 {v(p)}, {v(q)}")
    for p, q in pairs: A(f"v_add_f32 {v(p)}, {v(p)}, {v(q)}")
    A(f"v_mov_b32 {v(SW+2)}, {v(SW)}")
    R4 = (S1, S2, S3, SW)
    for p in R4: A(f"v_permlane16_swap_b32 {v(p)}, {v(p+2)}")
    for p in R4: A(f"v_add_f32 {v(p)}, {v(p)}, {v(p+2)}")
    for n in (8, 4, 2, 1):
        for p in R4: A(dpp("v_add_f32", p, p, p, f"row_ror:{n}"))
    MEAN, VAR, T, MB, RS = 42, 43, 44, 45, 46
    A(f"v_mul_f32 {v(MEAN)}, {f32bits(1/1024)}, {v(S1)}")
    A(f"v_mul_f32 {v(VAR)}, {f32bits(1/1024)}, {v(S2)}")
    A(f"v_fma_f32 {v(VAR)}, -{v(MEAN)}, {v(MEAN)}, {v(VAR)}")
    A(f"v_max_f32 {v(VAR)}, 0, {v(VAR)}")
    A(f"v_cvt_pk_bf16_f32 {v(MEAN)}, {v(MEAN)}, {v(VAR)}")
    A(f"v_and_b32 {v(VAR)}, {MASKHI}, {v(MEAN)}")
    A(f"v_lshlrev_b32 {v(MB)}, 16, {v(MEAN)}")
    A(f"v_add_f32 {v(VAR)}, {f32bits(1e-5)}, {v(VAR)}")
    A(f"v_cvt_pk_bf16_f32 {v(VAR)}, {v(VAR)}, {v(VAR)}")
    A(f"v_and_b32 {v(VAR)}, {MASKHI}, {v(VAR)}")
    A(f"v_sqrt_f32 {v(VAR)}, {v(VAR)}")
    A(f"v_fma_f32 {v(T)}, -{v(MB)}, {v(SW)}, {v(S3)}")
    A(f"v_cvt_pk_bf16_f32 v60, {v(MB)}, {v(VAR)}")
    A(f"v_and_b32 {v(VAR)}, {MASKHI}, v60")
    A(f"v_rcp_f32 {v(RS)}, {v(VAR)}")
    A("v_mov_b32 v61, v60")
    A("s_waitcnt lgkmcnt(0)")
    tag_from_epoch(A, sE, sT)
    A(f"v_mul_f32 {v(T)}, {v(T)}, {v(RS)}")
    A(f"v_cvt_pk_bf16_f32 v64, {v(T)}, {v(T)}")
    A("v_ashrrev_i32 v65, 31, v64"); A("v_or_b32 v65, 0x80000000, v65"); A("v_xor_b32 v64, v64, v65")
    A("v_permlane32_swap_b32 v60, v61")
    A("v_lshrrev_b32 v64, 16, v64"); A(f"v_mov_b32 v63, {s(sT)}"); A("v_mov_b32 v65, v64")
    A("v_permlane32_swap_b32 v64, v65")
    A("v_lshl_or_b32 v62, v65, 16, v64")
    A("s_mov_b64 exec, 0x10001")
    if O.comb:
        A("ds_write_b128 v10, v[60:63]")
        A("s_mov_b64 exec, 1"); A("ds_add_rtn_u32 v13, v22, v23 offset:264")
        A("s_mov_b64 exec, 0xff"); A("ds_read_b128 v[60:63], v9 offset:320")
        A("s_waitcnt lgkmcnt(0)")
        A("v_readfirstlane_b32 s32, v13"); A("s_cmp_lg_u32 s32, 3"); A("s_cbranch_scc1 L_aux_nopub")
    A("buffer_store_dwordx4 v[60:63], v11, s[12:15], 0 offen sc1")
    A("L_aux_nopub:")
    A("s_mov_b64 exec, -1")
    ST()
    GR, KY = 64, 80
    if O.aux_first_sleep: A(f"s_sleep {O.aux_first_sleep}")
    so = ["0", "s40", "s41", "s42"]
    poll_masked(A, "aux", [f"buffer_load_dwordx4 {v(GR+4*k,4)}, v12, s[12:15], {so[k]} offen sc1" for k in range(4)],
                [GR + 4 * k + 3 for k in range(4)], sT, 43, 52, O.poll_sleep)
    ST()
    for k in range(4):
        A(f"v_lshl_or_b32 {v(KY+2*k)}, {v(GR+4*k+2)}, 16, {v(RI+2*k)}")
        A(f"v_and_or_b32 {v(KY+2*k+1)}, {v(GR+4*k+2)}, s45, {v(RI+2*k+1)}")
    M1, M2, M3 = 14, 15, 16
    A(f"v_max3_u32 v17, {v(KY)}, {v(KY+1)}, {v(KY+2)}"); A(f"v_max3_u32 v18, {v(KY+3)}, {v(KY+4)}, {v(KY+5)}")
    A(f"v_max3_u32 v17, v17, {v(KY+6)}, {v(KY+7)}"); A("v_max_u32 v17, v17, v18")
    net = [f"v_max_u32 {v(M1)}, {v(KY)}, {v(KY+1)}", f"v_min_u32 {v(M2)}, {v(KY)}, {v(KY+1)}", f"v_mov_b32 {v(M3)}, 0"]
    for k in range(2, 8):
        net += [f"v_med3_u32 {v(M3)}, {v(M2)}, {v(M3)}, {v(KY+k)}", f"v_med3_u32 {v(M2)}, {v(M1)}, {v(M2)}, {v(KY+k)}",
                f"v_max_u32 {v(M1)}, {v(M1)}, {v(KY+k)}"]
    for n in (8, 4, 2, 1):
        A(net.pop(0)); A(net.pop(0)); A(dpp("v_max_u32", 17, 17, 17, f"row_ror:{n}"))
    A("ds_write_b32 v24, v17")
    A("ds_read_b32 v17, v25")
    A.ext(net)
    A("v_mov_b32 v19, 0"); A("s_mov_b32 s43, 0")
    A("L_aux_gm:")
    A("s_waitcnt lgkmcnt(0)")
    A("v_cmp_eq_u32 vcc, 0, v17"); A("s_cbranch_vccz L_aux_gmok")
    A("ds_read_b32 v17, v25")
    bounded(A, 43, "L_aux_gmok", SPIN_MAX * 8); A("s_branch L_aux_gm")
    A("L_aux_gmok:")
    A("s_waitcnt lgkmcnt(0)")
    for n in range(1, 16):
        A(f"v_sub_co_u32_dpp v20, vcc, v17, v17 row_ror:{n} row_mask:0xf bank_mask:0xf")
        A.raw("v_addc_co_u32 v19, vcc, 0, v19, vcc ; nohaz")
    A("v_cmp_eq_u32 vcc, 8, v19"); A("s_ff1_i32_b64 s46, vcc"); A("v_readlane_b32 s46, v17, s46")
    A("v_mov_b32 v18, 1")
    A(f"v_cmp_le_u32 s[48:49], s46, {v(M1)}"); A(f"v_cmp_le_u32 s[52:53], s46, {v(M2)}"); A(f"v_cmp_le_u32 s[54:55], s46, {v(M3)}")
    A("s_bcnt1_i32_b64 s46, s[48:49]"); A("s_bcnt1_i32_b64 s56, s[52:53]")
    A("v_mbcnt_lo_u32_b32 v20, s48, 0"); A("v_mbcnt_lo_u32_b32 v21, s52, 0")
    A("v_mbcnt_hi_u32_b32 v20, s49, v20"); A("v_mbcnt_hi_u32_b32 v21, s53, v21")
    A("s_add_u32 s56, s56, s46"); A("s_lshl_b32 s46, s46, 2"); A("s_add_u32 s46, s46, s47")
    A("v_lshl_add_u32 v20, v20, 2, s47"); A("v_lshl_add_u32 v21, v21, 2, s46")
    A("s_cmp_lg_u64 s[54:55], 0"); A("s_cselect_b32 s56, 9, s56"); A("s_cmp_gt_u32 s56, 8"); A("s_cbranch_scc0 L_aux_fit")
    A("s_mov_b64 s[48:49], 0"); A("s_mov_b64 s[52:53], 0"); A("s_mov_b32 s56, 0"); A("v_mov_b32 v18, 2")
    A("L_aux_fit:")
    A("s_lshl_b32 s56, 0xff, s56"); A("s_and_b32 s56, s56, 0xff"); A("s_mov_b32 s57, 0")
    A("s_mov_b64 exec, s[48:49]"); A(f"ds_write_b32 v20, {v(M1)}")
    A("s_mov_b64 exec, s[52:53]"); A(f"ds_write_b32 v21, {v(M2)}")
    A("s_mov_b64 exec, s[56:57]"); A("ds_write_b32 v31, v18")
    A("s_mov_b64 exec, -1")
    LS = 64
    A("s_mov_b32 s43, 0"); A("v_mov_b32 v20, 0")
    A("L_aux_ls:")
    A("ds_read_b32 v17, v26 offset:64")
    for k in range(4): A(f"ds_read_b128 {v(LS+4*k,4)}, v27 offset:{64+16*k}")
    A("s_waitcnt lgkmcnt(4)")
    A("v_cmp_eq_u32 vcc, 0, v17"); A("s_cbranch_vccz L_aux_lsok")
    A("s_waitcnt lgkmcnt(0)")
    bounded(A, 43, "L_aux_lsok", SPIN_MAX * 8); A("s_branch L_aux_ls")
    A("L_aux_lsok:")
    A("v_cmp_eq_u32 vcc, 2, v17"); A("s_cbranch_vccnz L_aux_slow")
    for k in range(16):
        if k % 4 == 0: A(f"s_waitcnt lgkmcnt({3-k//4})")
        A(f"v_cmp_gt_u32 vcc, {v(LS+k)}, v17")
        A.raw("v_addc_co_u32 v20, vcc, 0, v20, vcc ; nohaz")
    A("s_lshl_b32 s46, s31, 1"); A("s_add_u32 s47, s46, 1")
    A("v_mov_b32 v21, v20"); A("v_permlane32_swap_b32 v20, v21"); A("v_add_u32 v20, v20, v21")
    A("v_cmp_eq_u32 s[48:49], s46, v20"); A("v_cmp_eq_u32 s[52:53], s47, v20")
    A("s_ff1_i32_b64 s48, s[48:49]"); A("s_ff1_i32_b64 s49, s[52:53]")
    A("v_readlane_b32 s48, v17, s48"); A("v_readlane_b32 s49, v17, s49")
    A("L_aux_sel:")
    A("s_and_b32 s52, s48, 0xfff"); A("s_sub_u32 s52, 0x800, s52"); A("s_and_b32 s53, s49, 0xfff"); A("s_sub_u32 s53, 0x800, s53")
    A(f"s_mul_i32 s46, s31, {2*XST}"); A(f"s_add_u32 s46, s46, {XS}"); A("s_lshl_b32 s47, s44, 10")
    IDX, STT = 12, 26
    A(f"v_mov_b32 {v(IDX)}, s52"); A(f"v_writelane_b32 {v(IDX)}, s53, 1")
    A("s_cmp_ge_u32 s3, 14"); A("s_cbranch_scc1 L_aux_nox")
    for t in range(2):
        A(f"s_lshl_b32 {s(52+t)}, {s(52+t)}, 11"); A(f"s_add_u32 {s(52+t)}, {s(52+t)}, s47")
        A(f"s_add_u32 m0, s46, {XST*t}")
        A(f"buffer_load_dwordx4 v28, s[4:7], {s(52+t)} offen lds")
    A(f"v_bfe_u32 v14, {v(IDX)}, 1, 1"); A(f"v_lshrrev_b32 v15, 2, {v(IDX)}"); A("v_lshl_add_u32 v14, v14, 9, v15")
    A("v_lshlrev_b32 v14, 4, v14"); A(f"v_add_u32 v14, {WS_STATS}, v14")
    A("s_mov_b64 exec, 3")
    A(f"buffer_load_dwordx2 {v(STT,2)}, v14, s[12:15], 0 offen sc1")
    A("s_mov_b64 exec, -1")
    ST()
    A(f"v_and_b32 v14, 1, {v(IDX)}"); A("v_cmp_eq_u32 vcc, 1, v14")
    A("s_lshl_b32 s46, s31, 3"); A(f"s_add_u32 s46, s46, {CTL+192}"); A(f"v_lshl_add_u32 v15, {v(vL)}, 2, s46")
    A("s_waitcnt vmcnt(0)")
    A(f"v_cndmask_b32 {v(STT)}, {v(STT)}, {v(STT+1)}, vcc")
    A("s_mov_b64 exec, 3"); A(f"ds_write_b32 v15, {v(STT)}"); A("s_mov_b64 exec, -1")
    A("s_waitcnt lgkmcnt(0)")
    A("s_branch L_aux_b3")
    A("L_aux_nox:")
    ST.n -= 1; ST()
    A("s_cmp_lg_u32 s30, 127"); A("s_cbranch_scc1 L_aux_b3")
    A("v_mov_b32 v13, s48"); A("v_writelane_b32 v13, s49, 1")
    A(f"v_and_b32 v14, {MASKHI}, v13"); A("v_ashrrev_i32 v15, 31, v14"); A("v_not_b32 v15, v15"); A("v_or_b32 v15, 0x80000000, v15")
    A("v_xor_b32 v14, v14, v15"); A(f"v_and_b32 v14, {MASKHI}, v14")
    A(f"v_mul_f32 v14, {f32bits(-LOG2E)}, v14"); A("v_exp_f32 v14, v14"); A("v_add_f32 v14, 1.0, v14"); A("v_rcp_f32 v14, v14")
    A("v_cvt_pk_bf16_f32 v14, v14, v14"); A(f"v_and_b32 v61, {MASKHI}, v14"); A(f"v_mov_b32 v60, {v(IDX)}")
    A(f"v_mov_b32 v62, {s(sT)}"); A(f"v_mov_b32 v63, {s(sT)}")
    A("s_lshl_b32 s46, s31, 5"); A(f"s_add_u32 s46, s46, {WS_SEL}"); A(f"v_lshl_add_u32 v21, {v(vL)}, 4, s46")
    A("s_mov_b64 exec, 3")
    A("buffer_store_dwordx4 v[60:63], v21, s[12:15], 0 offen sc1")
    A("s_mov_b64 exec, -1")
    A("L_aux_b3:")
    WD = 128
    A("s_mul_i32 s46, s50, 448"); A("s_mul_i32 s47, s31, 112"); A("s_add_u32 s46, s46, s47")
    A(f"v_lshrrev_b32 v14, 3, {v(vL)}"); A("v_add_u32 v14, s46, v14"); A("v_lshlrev_b32 v14, 11, v14")
    A(f"v_and_b32 v15, 7, {v(vL)}"); A("v_lshl_add_u32 v14, v15, 4, v14"); A("s_lshl_b32 s46, s38, 7"); A("v_add_u32 v14, s46, v14")
    if O.prio: A("s_setprio 0")
    ST()
    A("s_barrier")
    for i in range(14):
        A(f"s_mov_b32 s46, {16384*i}")
        A(f"buffer_load_dwordx4 {v(WD+4*i,4)}, v14, s[24:27], s46 offen nt")
    A("s_branch L_aux_b4")
    A("L_aux_sinit:")
    A("v_mov_b32 v96, 0"); A("v_mov_b32 v97, 0"); A(f"v_lshl_add_u32 v98, {v(vL)}, 3, v22")
    A("ds_write_b64 v98, v[96:97]")
    A("v_mov_b32 v96, 0x3f803f80"); A("v_and_b32 v98, 255, v0"); A(f"v_lshlrev_b32 v98, 2, v98"); A(f"v_add_u32 v98, {XS+8*XST}, v98")
    A("ds_write_b32 v98, v96")
    A(f"v_bfe_u32 v96, {v(vL)}, 3, 2"); A(f"v_lshrrev_b32 v97, 5, {v(vL)}"); A("v_lshl_add_u32 v96, v97, 3, v96")
    A("v_mul_u32_u24 v96, 7168, v96")
    A(f"v_lshlrev_b32 v98, 1, {v(vG)}"); A(f"v_and_b32 v94, 7, {v(vL)}"); A("v_xor_b32 v98, v98, v94")
    A("s_mul_i32 s51, s50, 896"); A("s_lshr_b32 s33, s3, 1"); A("s_add_u32 s37, s33, 1"); A("s_cmp_eq_u32 s37, 7"); A("s_cselect_b32 s37, 0, s37")
    A("s_lshl_b32 s33, s33, 7"); A("s_lshl_b32 s37, s37, 7"); A("s_add_u32 s33, s33, s51"); A("s_add_u32 s37, s37, s51")
    A("v_lshl_add_u32 v96, v98, 4, v96"); A("v_add_u32 v97, s37, v96"); A("v_add_u32 v96, s33, v96")
    vDMA = 96
    A("s_sub_u32 s36, s31, 4"); A("s_lshl_b32 s34, s44, 2"); A("s_add_u32 s34, s34, s36"); A(f"s_mul_i32 s34, s34, {128*7168}")
    A("s_lshl_b32 s36, s36, 15")
    A("s_waitcnt lgkmcnt(0)")
    A("s_load_dword s28, s[12:13], 0")
    srd_fin(A, 12, "ws", size=WS_SIZE); srd_fin(A, 16, "wg"); srd_fin(A, 20, "wu")
    A("s_barrier")
    if O.code_pf:
        A("s_cmp_lg_u32 s31, 7"); A("s_cbranch_scc1 L_aux_nocp"); A("s_cmp_gt_u32 s3, 1"); A("s_cbranch_scc1 L_aux_nocp")
        code_prefetch(A, "aux", 52, 100, 101, "L_aux_code", 2, back=True)
        A("L_aux_nocp:")
    A("s_waitcnt lgkmcnt(0)")
    tag_from_epoch(A, sE, sT)
    ST.n = 1
    A("s_cmp_ge_u32 s3, 14"); A("s_cbranch_scc1 L_aux_idle")
    if O.stream_wait: lds_count_wait(A, "st", 22, 260, 4, 18, 46, 43, 1)
    ST()
    for j in range(32):
        ks, mat, h, gh = j >> 3, (j >> 2) & 1, (j >> 1) & 1, j & 1
        A(f"s_add_u32 s35, s34, {(32*ks + 16*gh + 4*h)*7168}")
        A(f"s_add_u32 m0, s36, {16384*mat + 1024*(4*ks+2*h+gh)}")
        if O.exp & 16: A("s_mov_b32 s35, s34")
        A(f"buffer_load_dwordx4 {v(vDMA+mat)}, {s(16+4*mat,4)}, s35 offen{' nt' if O.w_nt else ''} lds")
    ST()
    A(f"v_bfe_u32 v14, {v(vL)}, 2, 3"); A("v_lshrrev_b32 v15, 1, v14"); A("v_lshlrev_b32 v14, 7, v14")
    A(f"v_lshrrev_b32 v13, 5, {v(vL)}"); A("v_lshl_add_u32 v14, v13, 10, v14")
    A(f"v_and_b32 v13, 3, {v(vL)}"); A("v_lshl_add_u32 v14, v13, 3, v14"); A("v_add_u32 v14, s36, v14")
    for ct in range(4):
        A(f"v_xor_b32 v13, {ct}, v15"); A(f"v_lshl_add_u32 {v(24+ct)}, v13, 5, v14")
    A(f"v_min_u32 v20, 8, {v(vI)}"); A(f"v_mul_u32_u24 v20, {XST}, v20"); A(f"v_lshl_add_u32 v20, {v(vG)}, 4, v20")
    A("s_lshr_b32 s35, s36, 7"); A(f"s_add_u32 s35, s35, {XS}"); A("v_add_u32 v20, s35, v20")
    A(f"v_lshlrev_b32 v19, 6, {v(vI)}"); A(f"v_lshl_add_u32 v19, {v(vG)}, 4, v19")
    A("s_lshr_b32 s35, s36, 11"); A("s_add_u32 s35, s35, s36"); A(f"s_add_u32 s35, s35, {PART}"); A("v_add_u32 v19, s35, v19")
    XB_, AW, DD = 32, 64, 192
    aw = lambda t, ks: AW + 4 * (ks * 8 + t)
    for ks in range(4):
        A(f"s_waitcnt vmcnt({8*(3-ks)})")
        for t in range(8):
            for h in range(2):
                L.issue(f"ds_read_b64_tr_b16 {v(aw(t,ks)+2*h,2)}, {v(24+(t&3))} offset:{16384*(t>>2)+4096*ks+2048*h}", ("aw", ks, t))
    ST(L); ST(); ST()
    A("s_barrier")
    for ks in range(4): L.issue(f"ds_read_b128 {v(XB_+4*ks,4)}, v20 offset:{64*ks}", ("x", ks))
    for ks in range(4):
        L.need(("x", ks))
        for t in range(8):
            A(f"v_mfma_f32_16x16x32_bf16 {v(DD+4*t,4)}, {v(aw(t,ks),4)}, {v(XB_+4*ks,4)}, {v(DD+4*t,4) if ks else 0}")
    for t in range(8): L.issue(f"ds_write_b128 v19, {v(DD+4*t,4)} offset:{1024*t}")
    L.drain()
    A("s_branch L_aux_b4")
    A("L_aux_idle:")
    ST.n = 1
    for _ in range(5): ST()
    A("s_barrier")
    A("L_aux_b4:")
    A(f"v_and_b32 v20, 7, {v(vL)}"); A(f"v_lshlrev_b32 v21, 2, v20"); A(f"v_add_u32 v21, {CTL+192}, v21")
    A(f"v_bfe_u32 v19, {v(vL)}, 3, 2"); A("v_mul_u32_u24 v19, 32784, v19")
    A(f"v_lshrrev_b32 v18, 5, {v(vL)}"); A("v_lshl_add_u32 v19, v18, 12, v19")
    A("s_lshr_b32 s48, s31, 2"); A("s_lshl_b32 s48, s48, 10"); A("s_and_b32 s49, s31, 3"); A("s_lshl_b32 s49, s49, 4"); A("s_add_u32 s48, s48, s49")
    A(f"s_add_u32 s48, s48, {PART}"); A("v_add_u32 v19, s48, v19")
    A("s_lshr_b32 s49, s3, 1"); A("s_cmp_eq_u32 s49, 6"); A(f"s_movk_i32 s48, {14336-6*2048}"); A(f"s_cselect_b32 s49, s48, {14336+2048}")
    A("v_mul_u32_u24 v22, s49, v18"); A("v_lshl_add_u32 v22, v20, 4, v22")
    A(f"v_bfe_u32 v18, {v(vL)}, 3, 1"); A("v_lshl_add_u32 v22, v18, 10, v22")
    A("s_mul_i32 s56, s50, 57344"); A(f"s_add_u32 s56, s56, {WS_G}")
    A("s_mul_i32 s48, s44, 28672"); A("s_lshr_b32 s49, s3, 1"); A("s_lshl_b32 s49, s49, 11"); A("s_add_u32 s48, s48, s49")
    A("s_lshl_b32 s49, s31, 7"); A("s_add_u32 s48, s48, s49"); A("s_add_u32 s48, s48, s56"); A("v_add_u32 v22, s48, v22")
    A("v_lshl_add_u32 v20, v20, 6, v19")
    for k in range(4): A(f"s_bfe_u32 {s(52+k)}, {s(sT)}, {hex(8*k | (8 << 16))}")
    A("v_mov_b32 v23, 0xffffff00")
    A("v_cmp_eq_u32 s[58:59], 1, v18")
    ST()
    A("s_barrier")
    A("s_cmp_ge_u32 s3, 14"); A("s_cbranch_scc1 L_aux_noh")
    P, MM = 64, 24
    L.issue(f"ds_read_b32 {v(MM)}, v21")
    L.issue(f"ds_read_b128 {v(P,4)}, v20"); L.issue(f"ds_read_b128 {v(P+8,4)}, v19 offset:512")
    L.issue(f"ds_read_b128 {v(P+4,4)}, v20 offset:2048"); L.issue(f"ds_read_b128 {v(P+12,4)}, v19 offset:2560")
    L.drain()
    A(f"v_and_b32 {v(MM+1)}, {MASKHI}, {v(MM)}"); A(f"v_lshlrev_b32 {v(MM)}, 16, {v(MM)}"); A(f"v_rcp_f32 {v(MM+1)}, {v(MM+1)}")
    for q in range(4):
        A(f"v_pk_fma_f32 {v(P+2*q,2)}, {v(P+8+2*q,2)}, {v(MM,2)}, {v(P+2*q,2)} op_sel:[0,0,0] op_sel_hi:[1,0,1] neg_lo:[1,0,0] neg_hi:[1,0,0]")
    for k in range(4): A(f"v_cndmask_b32 {v(P+8+k)}, {v(P+4+k)}, {v(P+k)}, s[58:59]")
    for k in range(4): A(f"v_cndmask_b32 {v(P+k)}, {v(P+k)}, {v(P+4+k)}, s[58:59]")
    for k in range(4): A(dpp("v_add_f32", P+k, P+8+k, P+k, "row_ror:8"))
    for k in range(4): A(f"v_mov_b32 {v(P+4+k)}, {v(P+k)}")
    for k in range(4): A(f"v_permlane16_swap_b32 {v(P+k)}, {v(P+4+k)}")
    for q in range(2): A(f"v_pk_add_f32 {v(P+2*q,2)}, {v(P+2*q,2)}, {v(P+4+2*q,2)}")
    for q in range(2): A(f"v_pk_mul_f32 {v(P+2*q,2)}, {v(P+2*q,2)}, {v(MM,2)} op_sel:[0,1] op_sel_hi:[1,1]")
    for k in range(4): A(f"v_and_or_b32 {v(P+k)}, {v(P+k)}, v23, {s(52+k)}")
    A("s_mov_b32 exec_lo, 0xffff"); A("s_mov_b32 exec_hi, 0xffff")
    A(f"buffer_store_dwordx4 {v(P,4)}, v22, s[12:15], 0 offen sc1")
    A("s_mov_b64 exec, -1")
    A("L_aux_noh:")
    ST()
    A("s_cmp_ge_u32 s31, 4"); A("s_cbranch_scc1 L_aux_nowd")
    A(f"v_and_b32 v14, 7, {v(vL)}"); A("v_mul_u32_u24 v15, 86, v14"); A("v_lshrrev_b32 v15, 8, v15")
    A(f"v_mul_u32_u24 v14, {WDST}, v14"); A(f"v_mul_u32_u24 v15, {32768-3*WDST}, v15"); A("v_add_u32 v14, v14, v15")
    A(f"v_lshrrev_b32 v15, 3, {v(vL)}"); A("v_lshl_add_u32 v14, v15, 4, v14")
    A("s_mul_i32 s46, s31, 1792"); A("v_add_u32 v14, s46, v14")
    A("s_waitcnt vmcnt(1)")
    A("s_cmp_lt_u32 s3, 14"); A("s_cbranch_scc1 L_aux_wd1"); A("s_waitcnt vmcnt(0)"); A("L_aux_wd1:")
    for i in range(14): L.issue(f"ds_write_b128 v14, {v(WD+4*i,4)} offset:{128*i}")
    L.drain()
    A("L_aux_nowd:")
    A(f"v_lshlrev_b32 v10, 7, {v(vG)}")
    A(f"v_bfe_u32 v11, {v(vL)}, 1, 1"); A("v_lshl_add_u32 v10, v11, 6, v10")
    A(f"v_bfe_u32 v11, {v(vL)}, 2, 2"); A("v_lshl_add_u32 v10, v11, 4, v10")
    A(f"v_and_b32 v11, 1, {v(vL)}"); A("v_lshl_add_u32 v10, v11, 3, v10")
    A("s_mul_i32 s46, s31, 86"); A("s_lshr_b32 s46, s46, 8"); A(f"s_mul_i32 s46, s46, {32768-3*WDST}")
    A(f"s_mul_i32 s47, s31, {WDST}"); A("s_add_u32 s46, s46, s47"); A("v_add_u32 v10, s46, v10")
    A("v_lshl_add_u32 v14, v0, 4, s56")
    A(f"v_lshlrev_b32 v15, 3, {v(vL)}"); A(f"v_add_u32 v15, {XS}, v15"); A("s_lshl_b32 s47, s31, 9"); A("v_add_u32 v16, s47, v15")
    for k in range(1, 8): A(f"s_mov_b32 {s(59+k)}, {7168*k}")
    A(f"s_mov_b32 s58, {f32bits(-LOG2E)}"); A("s_mov_b32 s43, 0"); A("v_mov_b32 v17, 0xff")
    ST()
    A("s_barrier")
    AWD, HB, GG = 64, 96, 128
    for i in range(14): L.issue(f"ds_read_b64_tr_b16 {v(AWD+2*i,2)}, v10 offset:{512*i}")
    A("s_cmp_eq_u32 s31, 7"); A("s_cbranch_scc1 L_aux_nohp")
    gld = [f"buffer_load_dwordx4 {v(GG+4*k,4)}, v14, s[12:15], {'0' if k == 0 else s(59+k)} offen sc1" for k in range(8)]
    if O.g_first_sleep: A(f"s_sleep {O.g_first_sleep}")
    for x in gld: A(x)
    A("L_aux_gp:")
    A("s_waitcnt vmcnt(0)")
    for k in range(4):
        for a_ in range(4): A(f"v_bitop3_b32 {v(32+4*a_+k)}, {v(GG+8*a_+k)}, {v(GG+8*a_+4+k)}, {s(52+k)} bitop3:0x7e")
    for a_ in range(4): A(f"v_or3_b32 {v(32+4*a_)}, {v(32+4*a_)}, {v(33+4*a_)}, {v(34+4*a_)}")
    for a_ in range(4): A(f"v_bitop3_b32 {v(32+4*a_)}, {v(32+4*a_)}, {v(35+4*a_)}, v17 bitop3:0xa8")
    for a_ in range(4): A(f"v_cmp_ne_u32 {s(4+2*a_,2)}, 0, {v(32+4*a_)}")
    A("s_or_b64 vcc, s[4:5], s[6:7]"); A("s_or_b64 s[32:33], s[8:9], s[10:11]"); A("s_or_b64 vcc, vcc, s[32:33]"); A("s_cbranch_scc0 L_aux_gok")
    bounded(A, 43, "L_aux_gok")
    if O.poll_sleep: A(f"s_sleep {O.poll_sleep}")
    for a_ in range(4):
        A(f"s_mov_b64 exec, {s(4+2*a_,2)}"); A(f"s_cbranch_execz L_aux_gs{a_}")
        A(gld[2*a_]); A(gld[2*a_+1])
        A(f"L_aux_gs{a_}:")
    A("s_mov_b64 exec, -1")
    A("s_branch L_aux_gp")
    A("L_aux_gok:")
    gg = lambda j, it: GG + 4 * (2 * j + it)
    for it in range(2):
        for m_ in range(2):
            for q in range(2): A(f"v_pk_add_f32 {v(gg(m_,it)+2*q,2)}, {v(gg(m_,it)+2*q,2)}, {v(gg(m_+2,it)+2*q,2)}")
    for it in range(2):
        for q in range(2): A(f"v_pk_mul_f32 {v(gg(2,it)+2*q,2)}, {v(gg(0,it)+2*q,2)}, s[58:59] op_sel_hi:[1,0]")
    for it in range(2):
        for k in range(4): A(f"v_exp_f32 {v(gg(2,it)+k)}, {v(gg(2,it)+k)}")
        for q in range(2): A(f"v_pk_mul_f32 {v(gg(0,it)+2*q,2)}, {v(gg(0,it)+2*q,2)}, {v(gg(1,it)+2*q,2)}")
    for it in range(2):
        for q in range(2): A(f"v_pk_add_f32 {v(gg(2,it)+2*q,2)}, {v(gg(2,it)+2*q,2)}, 1.0 op_sel_hi:[1,0]")
    for it in range(2):
        for k in range(4): A(f"v_rcp_f32 {v(gg(2,it)+k)}, {v(gg(2,it)+k)}")
    for it in range(2):
        for q in range(2): A(f"v_pk_mul_f32 {v(gg(0,it)+2*q,2)}, {v(gg(0,it)+2*q,2)}, {v(gg(2,it)+2*q,2)}")
        for q in range(2): A(f"v_cvt_pk_bf16_f32 {v(gg(1,it)+q)}, {v(gg(0,it)+2*q)}, {v(gg(0,it)+2*q+1)}")
        A(f"ds_write_b64 v16, {v(gg(1,it),2)} offset:{3584*it}")
    A("L_aux_nohp:")
    A("s_waitcnt lgkmcnt(0)"); L.q = []
    ST()
    A("s_barrier")
    for i in range(14): L.issue(f"ds_read_b64 {v(HB+2*i,2)}, v15 offset:{512*i}", ("hb", i))
    A("s_lshl_b32 s46, s38, 3"); A("s_add_u32 s46, s46, s31"); A("s_lshl_b32 s46, s46, 3"); A("s_add_u32 s46, s46, s50")
    A("s_lshl_b32 s46, s46, 8"); A(f"s_add_u32 s46, s46, {WS_Y}")
    A(f"v_lshlrev_b32 v14, 7, {v(vG)}"); A(f"v_lshl_add_u32 v14, {v(vI)}, 4, v14"); A("v_add_u32 v14, s46, v14")
    DY = 32
    for i in range(14):
        L.need(("hb", i))
        A(f"v_mfma_f32_16x16x16_bf16 {v(DY,4)}, {v(AWD+2*i,2)}, {v(HB+2*i,2)}, {v(DY,4) if i else 0}")
    for k in range(4): A(f"v_mov_b32_dpp {v(DY+4+k)}, {v(DY+k)} row_ror:8 row_mask:0xf bank_mask:0xf")
    for k in range(4): A(f"v_permlane32_swap_b32 {v(DY+4+k)}, {v(DY+8+k)}")
    for q in range(2): A(f"v_pk_add_f32 {v(DY+2*q,2)}, {v(DY+2*q,2)}, {v(DY+8+2*q,2)}")
    for k in range(4): A(f"v_and_or_b32 {v(DY+k)}, {v(DY+k)}, v23, {s(52+k)}")
    A("s_mov_b64 exec, 0x00ff00ff")
    A(f"buffer_store_dwordx4 {v(DY,4)}, v14, s[12:15], 0 offen sc1")
    A("s_mov_b64 exec, -1")
    ST()
    A("s_lshl_b32 s48, s30, 3"); A("s_add_u32 s48, s48, s31"); A(f"s_cmp_lg_u32 s48, {126*8}"); A("s_cbranch_scc1 L_aux_done")
    A(f"v_lshlrev_b32 v21, 3, {v(vL)}"); A(f"v_add_u32 v21, {WS_ACK}, v21")
    poll(A, "ack", ["buffer_load_dwordx2 v[60:61], v21, s[12:15], 0 offen sc1"], [60, 61], sT, 43, 14, 4)
    A(f"v_mov_b32 v5, {s(sT)}"); A("v_mov_b32 v4, 0"); A("s_mov_b64 exec, 1")
    A("buffer_store_dword v5, v4, s[12:15], 0 offen sc1")
    A("L_aux_done:")
    if O.probe_role == 1: ST.probe(31, "aux", O.probe_j, O.probe_k)
    ST.flush(31, "aux")
    A("s_endpgm")
    A("L_aux_slow:")
    A("s_waitcnt lgkmcnt(0)")
    A("v_lshlrev_b32 v14, 5, v0"); A(f"v_add_u32 v14, {KEYS}, v14")
    A(f"ds_write_b128 v14, {v(KY,4)}"); A(f"ds_write_b128 v14, {v(KY+4,4)} offset:16")
    A("s_waitcnt lgkmcnt(0)")
    A("s_mov_b64 exec, 1"); A("ds_add_u32 v22, v23 offset:256"); A("s_mov_b64 exec, -1")
    lds_count_wait(A, "slow", 22, 256, 4, 18, 46, 43)
    SK = 128
    A(f"v_lshlrev_b32 v14, 4, {v(vL)}"); A(f"v_add_u32 v14, {KEYS}, v14")
    for k in range(8): A(f"ds_read_b128 {v(SK+4*k,4)}, v14 offset:{1024*k}")
    A("s_waitcnt lgkmcnt(0)")
    A("s_lshl_b32 s46, s31, 1"); A("s_add_u32 s46, s46, 2"); A("s_mov_b32 s49, 0")
    A("L_aux_slow2:")
    A(f"v_max3_u32 v14, {v(SK)}, {v(SK+1)}, {v(SK+2)}")
    for k in range(3, 31, 2): A(f"v_max3_u32 v14, v14, {v(SK+k)}, {v(SK+k+1)}")
    A(f"v_max_u32 v14, v14, {v(SK+31)}")
    for n in (8, 4, 2, 1): A(dpp("v_max_u32", 14, 14, 14, f"row_ror:{n}"))
    A("v_mov_b32 v15, v14"); A("v_permlane16_swap_b32 v14, v15"); A("v_max_u32 v14, v14, v15")
    A("v_mov_b32 v15, v14"); A("v_permlane32_swap_b32 v14, v15"); A("v_max_u32 v14, v14, v15")
    A("s_mov_b32 s48, s49"); A("v_readfirstlane_b32 s49, v14")
    for k in range(32):
        A(f"v_cmp_ne_u32 vcc, v14, {v(SK+k)}"); A(f"v_cndmask_b32 {v(SK+k)}, 0, {v(SK+k)}, vcc")
    A("s_sub_u32 s46, s46, 1"); A("s_cmp_lg_u32 s46, 0"); A("s_cbranch_scc1 L_aux_slow2")
    A("s_branch L_aux_sel")

AD_S1, AD_S0, AD_S2, AD_S3, AD_S3A, AD_P, AD_E, AD_D = 220, 221, 222, 223, 224, 225, 228, 229

def table_addresses(A, sTB):
    t = 10
    A(f"v_lshlrev_b32 {v(t)}, 5, {v(vI)}")
    A(f"v_lshl_add_u32 {v(AD_S1)}, {v(vG)}, 9, {v(t)}"); A(f"v_add_u32 {v(AD_S1)}, {s(sTB)}, {v(AD_S1)}"); A(f"v_add_u32 {v(AD_S1)}, {4*(256+16)-4}, {v(AD_S1)}")
    A(f"v_and_b32 {v(t+2)}, 1, {v(vG)}"); A(f"v_lshl_add_u32 {v(AD_S0)}, {v(t+2)}, 4, {v(t)}")
    A(f"v_lshrrev_b32 {v(t+2)}, 1, {v(vG)}"); A(f"v_lshl_add_u32 {v(AD_S0)}, {v(t+2)}, 9, {v(AD_S0)}"); A(f"v_add3_u32 {v(AD_S0)}, {v(AD_S0)}, {s(sTB)}, 64")
    A(f"v_and_b32 {v(t+2)}, 1, {v(vI)}"); A(f"v_lshrrev_b32 {v(t+3)}, 1, {v(vI)}")
    A(f"v_lshlrev_b32 {v(AD_S2)}, 2, {v(t+3)}"); A(f"v_lshl_add_u32 {v(AD_S2)}, {v(vG)}, 6, {v(AD_S2)}")
    A(f"v_mul_u32_u24 {v(t+3)}, 260, {v(t+2)}"); A(f"v_add3_u32 {v(AD_S2)}, {v(AD_S2)}, {v(t+3)}, {s(sTB)}"); A(f"v_add_u32 {v(AD_S2)}, {PB_E-68}, {v(AD_S2)}")
    A(f"v_lshlrev_b32 {v(AD_S3)}, 1, {v(vI)}"); A(f"v_lshl_add_u32 {v(AD_S3)}, {v(vG)}, 7, {v(AD_S3)}")
    A(f"v_lshl_add_u32 {v(AD_S3)}, {v(t+2)}, 2, {v(AD_S3)}"); A(f"v_add_u32 {v(AD_S3)}, {s(sTB)}, {v(AD_S3)}"); A(f"v_add_u32 {v(AD_S3)}, {PB_E+512+256-196}, {v(AD_S3)}")
    A(f"v_mov_b32 {v(AD_S3A)}, {v(AD_S3)}"); A(f"s_add_u32 s43, {s(sTB)}, {PB_E+4*(63-16)}"); A(f"v_writelane_b32 {v(AD_S3A)}, s43, 0")
    A(f"v_lshl_add_u32 {v(t)}, {v(vI)}, 2, {s(sTB)}")
    A(f"v_lshlrev_b32 {v(t+2)}, 5, {v(vG)}"); A(f"v_sub_u32 {v(AD_P)}, {v(t)}, {v(t+2)}"); A(f"v_add_u32 {v(AD_P)}, {4*26}, {v(AD_P)}")
    A(f"v_add_u32 {v(AD_P+1)}, 1024, {v(AD_P)}"); A(f"v_add_u32 {v(AD_P+2)}, 2048, {v(AD_P)}")
    A(f"v_lshlrev_b32 {v(t+2)}, 4, {v(vG)}"); A(f"v_sub_u32 {v(AD_E)}, {v(t)}, {v(t+2)}"); A(f"v_add_u32 {v(AD_E)}, {PB_E+4*13}, {v(AD_E)}")

def kgen(A, L, O, vRow, vOp, sL, sLlo):
    PAR, Wm, CH, T = 16, 20, 32, 64
    BOP, AOP, D = 80, 176, 208
    DT, AL, BE = 76, 72, 74
    A("v_lshlrev_b32 v15, 16, v15"); A("v_lshlrev_b32 v14, 16, v14")
    exp_acc(A, DT, 15, T, T+1, sL, sLlo)
    A("v_add_f32 v14, 1.0, v14")
    A(f"v_cvt_pk_bf16_f32 {v(DT)}, {v(DT)}, {v(DT)}")
    A(f"v_and_b32 {v(AD_D)}, {v(AD_D)}, v14")
    A(f"v_and_b32 {v(DT)}, {MASKHI}, {v(DT)}")
    for md in range(2):
        sel = (lambda d, src: f"v_lshlrev_b32 {v(d)}, 16, {v(src)}") if md == 0 else (lambda d, src: f"v_and_b32 {v(d)}, {MASKHI}, {v(src)}")
        A(sel(T+2, PAR)); exp_acc(A, AL+md, T+2, T, T+1, sL, sLlo)
        A(sel(BE+md, PAR+1)); A(sel(CH+2*md, PAR+2)); A(sel(CH+2*md+1, PAR+3))
    A(f"v_cvt_pk_bf16_f32 {v(T)}, {v(AL)}, {v(AL+1)}")
    A(f"v_add_f32 {v(DT+1)}, {v(DT)}, {v(DT)}")
    A(f"v_lshlrev_b32 {v(AL)}, 16, {v(T)}"); A(f"v_and_b32 {v(AL+1)}, {MASKHI}, {v(T)}")
    A(f"v_pk_mul_f32 {v(BE,2)}, {v(BE,2)}, {v(DT,2)} op_sel_hi:[1,0]")
    A(f"v_pk_mul_f32 {v(AL,2)}, {v(AL,2)}, {v(DT,2)} op_sel_hi:[1,0]")
    for md in range(2):
        A(f"v_pk_mul_f32 {v(CH+2*md,2)}, {v(CH+2*md,2)}, {v(DT,2)} op_sel:[0,1] op_sel_hi:[1,1]")
        A(f"v_mul_f32 {v(BE+md)}, 0.15915494, {v(BE+md)}")
        A(f"v_mul_f32 {v(AL+md)}, {f32bits(-LOG2E)}, {v(AL+md)}")
    for q, p in ((1, 8), (0, 1), (2, 128)):
        for md in range(2):
            w = Wm + 4 * q + 2 * md; t = T + 4 * md
            if p > 1:
                A(f"v_mul_f32 {v(t)}, {f32bits(float(p))}, {v(AL+md)}"); A(f"v_mul_f32 {v(t+1)}, {f32bits(float(p))}, {v(BE+md)}")
                A(f"v_exp_f32 {v(t)}, {v(t)}"); A(f"v_fract_f32 {v(t+1)}, {v(t+1)}")
            else:
                A(f"v_exp_f32 {v(t)}, {v(AL+md)}"); A(f"v_fract_f32 {v(t+1)}, {v(BE+md)}")
            A(f"v_cos_f32 {v(w)}, {v(t+1)}"); A(f"v_sin_f32 {v(w+1)}, {v(t+1)}")
        for md in range(2):
            w = Wm + 4 * q + 2 * md; t = T + 4 * md
            A(f"v_pk_mul_f32 {v(w,2)}, {v(w,2)}, {v(t,2)} op_sel:[0,0] op_sel_hi:[1,0]{' neg_hi:[1,0]' if p == 8 else ''}")
    if O.exp & 32: A("CYC ; mark")
    W1, W8, W128 = Wm, Wm + 4, Wm + 8
    PK = [68, 70]; cnt = [0]
    def put(r, pk):
        if O.addtid:
            L.issue(f"ds_write_addtid_b32 {v(pk)} offset:{528*r}"); L.issue(f"ds_write_addtid_b32 {v(pk+1)} offset:{528*r+256}")
        else:
            L.issue(f"ds_write_b64 {v(vRow)}, {v(pk,2)} offset:{528*r}")
    def row(r, x0):
        pk = PK[cnt[0] & 1]; cnt[0] += 1
        A(f"v_cvt_pk_bf16_f32 {v(pk)}, {v(x0)}, {v(x0+1)}")
        A(f"v_cvt_pk_bf16_f32 {v(pk+1)}, {v(x0+2)}, {v(x0+3)}")
        put(r, pk)
    def mul2(dst, x, w):
        i0 = cmul(dst, x, w, T); i1 = cmul(dst + 2, x + 2, w + 2, T + 2)
        A(i0[0]); A(i1[0]); A(i0[1]); A(i1[1])
    def reads(dst, tag):
        for ks in range(8): L.issue(f"ds_read_b128 {v(dst+4*ks,4)}, {v(vOp)} offset:{32*ks}", (tag, ks))
    def mfma(t, tag, ks):
        L.need((tag, ks), ("B", ks))
        A(f"v_mfma_f32_16x16x32_bf16 {v(D+4*t,4)}, {v(AOP+4*ks,4)}, {v(BOP+4*ks,4)}, {v(D+4*t,4) if ks else 0}")
    BC = 12
    A(f"v_mov_b32 {v(PK[0])}, 0x3f80"); A(f"v_mov_b32 {v(PK[0]+1)}, 0x3f80")
    put(0, PK[0]); cnt[0] += 1
    row(1, W8)
    mul2(BC, W8, W8); row(2, BC)
    for r in range(3, 16):
        mul2(BC, BC, W8); row(r, BC)
    reads(BOP, "B")
    ch = lambda i: CH + 4 * i
    row(0, ch(0))
    for i in range(1, 8):
        mul2(ch(i), ch(i-1), W1); row(i, ch(i))
    for i in range(8):
        mul2(ch(i), ch(i), W128); row(8 + i, ch(i))
    reads(AOP, "A0")
    for r, i in enumerate([0, 2, 4, 6, 0, 2, 4, 6, 0, 4, 0, 4, 0, 4, 0, 4]):
        mul2(ch(i), ch(i), W128); row(r, ch(i))
        if 3 <= r < 11: mfma(0, "A0", r - 3)
    reads(AOP, "A1")
    for r in range(9):
        mul2(ch(0), ch(0), W128); row(r, ch(0))
        if r >= 2: mfma(1, "A1", r - 2)
    mfma(1, "A1", 7)
    if O.exp & 32: A("CYC ; mark")
    reads(AOP, "A2")
    return D, lambda ks: mfma(2, "A2", ks)

def ktables(A, L, D, mf2, sK, MARK=False):
    D0, D1, D2 = D, D + 4, D + 8
    T = 64
    cv = lambda d, lo, hi: A(f"v_cvt_pk_bf16_f32 {v(d)}, {v(lo)}, {v(hi)}")
    t1, t2, t3 = T + 8, T + 9, T + 10
    A(f"v_add_f32 {v(D0)}, {v(D0)}, {v(AD_D)}")
    A(f"v_cndmask_b32 {v(t1)}, {v(D1+1)}, {v(D1)}, s[58:59]")
    A(f"v_cndmask_b32 {v(t2)}, {v(D1+2)}, {v(D1+1)}, s[58:59]")
    A(f"v_cndmask_b32 {v(t3)}, {v(D1+3)}, 0, s[58:59]")
    cv(T+12, D1, D1+1); cv(T+13, D1+2, D1+3)
    mf2(0); mf2(1)
    cv(T, D1, D1); cv(T+1, D1, D1); cv(T+2, t1, D1); cv(T+3, t2, t1)
    mf2(2); mf2(3)
    cv(T+4, t2, t2); cv(T+5, t2, t2); cv(T+6, t3, t2); cv(T+7, t3, t3)
    mf2(4); mf2(5)
    A(f"v_cndmask_b32 {v(T+12)}, {v(T+12)}, 0, s[58:59]")
    A("s_mov_b32 exec_hi, 1")
    L.issue(f"ds_write_b128 {v(AD_S1)}, {v(T,4)} offset:4")
    L.issue(f"ds_write_b128 {v(AD_S1)}, {v(T+4,4)} offset:20")
    L.issue(f"ds_write_b16 {v(AD_S1)}, {v(T)}")
    A("s_mov_b32 exec_hi, -1")
    mf2(6); mf2(7)
    cv(T+8, D0, D0+3); cv(T+9, D0+1, D0); cv(T+10, D0+2, D0+1); cv(T+11, D0+3, D0+2)
    L.issue(f"ds_write_b16 {v(AD_S0)}, {v(T+8)}")
    L.issue(f"ds_write2_b32 {v(AD_S0)}, {v(T+9)}, {v(T+10)} offset0:1 offset1:2")
    L.issue(f"ds_write_b32 {v(AD_S0)}, {v(T+11)} offset:12")
    L.issue(f"ds_write_b16_d16_hi {v(AD_S0)}, {v(T+8)} offset:18")
    A("s_mov_b32 exec_lo, 0")
    L.issue(f"ds_write2_b32 {v(AD_S2)}, {v(T+12)}, {v(T+13)} offset0:0 offset1:8")
    A("s_mov_b32 exec_lo, -1")
    def near(k):
        b = AD_P + k // 8; o = 32 * (k % 8)
        L.issue(f"ds_read2_b32 {v(KN+4*k,2)}, {v(b)} offset0:{o+6} offset1:{o+4}")
        L.issue(f"ds_read2_b32 {v(KN+4*k+2,2)}, {v(b)} offset0:{o+2} offset1:{o}")
    if MARK: A("CYC ; mark")
    for k in range(4): near(k)
    TT = 100
    cv(TT, D2, D2+1); cv(TT+1, D2+2, D2+3); cv(TT+2, D2, D2)
    L.issue(f"ds_write_b16 {v(AD_S3A)}, {v(TT)}")
    L.issue(f"ds_write_b16_d16_hi {v(AD_S3)}, {v(TT)} offset:32")
    L.issue(f"ds_write_b16 {v(AD_S3)}, {v(TT+1)} offset:64")
    L.issue(f"ds_write_b16_d16_hi {v(AD_S3)}, {v(TT+1)} offset:96")
    A(f"v_readlane_b32 {s(sK)}, {v(TT+2)}, 0")
    for k in range(4, 17): near(k)
    for dd in range(4): A(f"v_and_b32 {v(KC+dd)}, {s(sK)}, {v(KC+dd)}")
    for reg, o0, n in ((KE, 0, 3), (KO, 64, 3), (K3, 128, 4)):
        for k in range(n):
            o = o0 + 16 * k
            L.issue(f"ds_read2_b32 {v(reg+4*k,2)}, {v(AD_E)} offset0:{o+3} offset1:{o+2}")
            L.issue(f"ds_read2_b32 {v(reg+4*k+2,2)}, {v(AD_E)} offset0:{o+1} offset1:{o}")

def convloop(A, L, O, vU, vE, vTR, vST, sOut, sWave, extra):
    B5, B3, B9, B7 = BAND, BAND + 4, BAND + 8, BAND + 12
    mf = lambda d, x, y, c_: f"v_mfma_f32_16x16x32_bf16 {v(d,4)}, {v(x,4)}, {v(y,4)}, {c_}"
    acc = lambda c: ACC + 4 * c
    main = []; pos = {}
    ub = lambda o: UB + 4 * ((o + 7) % NUB)
    def add(text, needs=(), key=None):
        main.append((text, needs))
        if key: pos[key] = len(main) - 1
    for o in range(-7, 57):
        pos[("first", o)] = len(main)
        for c in range(8):
            if 0 <= 8 * c - o <= 16:
                add(mf(acc(c), KN + 4 * (8 * c - o), ub(o), v(acc(c), 4)), (("U", o),), ("near", c, o))
        if o >= 0 and o % 8 == 0:
            cp = o // 8
            if cp <= 5:
                add(mf(BOXD + 8, ub(o), B5, 0), (), ("bx", cp, "O0")); add(mf(BOXD + 12, ub(o), B3, 0), (), ("bx", cp, "O1"))
            if cp <= 3:
                add(mf(BOXD + 20, ub(o), B7, 0), (), ("bx", cp, "S1"))
                add(mf(acc(cp + 4), KC, ub(o), v(acc(cp + 4), 4)), (), ("corr", cp))
            pos[("lastU", o)] = len(main) - 1
            if cp <= 5:
                add(mf(BOXD, U24, B5, 0), (("U24", cp),), ("bx", cp, "E0")); add(mf(BOXD + 4, U24, B3, 0), (), ("bx", cp, "E1"))
            if cp <= 3:
                add(mf(BOXD + 16, U24, B9, 0), (), ("bx", cp, "S0"))
            pos[("lastU24", cp)] = len(main) - 1
        else:
            pos[("lastU", o)] = len(main) - 1
        if o >= 0:
            cp, ph = o // 8, o % 8
            for nm, p_, lim, dls, bop, kr in (("O", 2, 5, (2, 3, 4), BOXOP + 4, KO), ("E", 3, 5, (2, 3, 4), BOXOP, KE), ("S", 4, 3, (4, 5, 6, 7), BOXOP + 8, K3)):
                if ph == p_ and cp <= lim:
                    pos[("far", cp, nm)] = len(main)
                    for dl in dls:
                        if cp + dl <= 7: add(mf(acc(cp + dl), bop, kr + 4 * (dl - dls[0]), v(acc(cp + dl), 4)))
                    pos[("farend", cp, nm)] = len(main) - 1
    N = len(main)
    F = []
    for o in range(-7, 57):
        prev = o - NUB
        after = pos[("lastU", prev)] if prev >= -7 else -1
        F.append(dict(text=f"ds_read_b128 {v(ub(o),4)}, {v(vU)} offset:{64*(o+7)}", after=after,
                      before=max(after + 1, pos[("first", o)] - 6), tag=("U", o), lds=True, chain="U"))
    for cp in range(6):
        after = pos[("lastU24", cp - 1)] if cp else -1
        F.append(dict(text=f"ds_read_b128 {v(U24,4)}, {v(vU)} offset:{432+512*cp}", after=after,
                      before=max(after + 1, pos[("bx", cp, "E0")] - 8), tag=("U24", cp), lds=True))
    first = {}
    for i, (t, _) in enumerate(main):
        for c in range(8):
            if t.split()[1].rstrip(",") == v(acc(c), 4) and c not in first: first[c] = i
    EP = [BOXD + 2 * c for c in range(8)]
    for c in range(8):
        dl = min(first[c], pos[("bx", 0, "O0")])
        F.append(dict(text=f"ds_read_b64 {v(EP[c],2)}, {v(vE)} offset:{512*c}", after=-1, before=max(0, dl - 6) if c > 1 else 0,
                      tag=("e", c), lds=True, chain=("e", c)))
        for k in range(4):
            t = (f"v_lshlrev_b32 {v(acc(c)+k)}, 16, {v(EP[c]+k//2)}" if k % 2 == 0 else
                 f"v_and_b32 {v(acc(c)+k)}, {MASKHI}, {v(EP[c]+k//2)}")
            F.append(dict(text=t, after=-1 if c <= 1 else 1, before=max(0, dl - 1), needs=(("e", c),), chain=("e", c)))
    for cp in range(6):
        for nm, d0, op in (("O", BOXD + 8, BOXOP + 4), ("E", BOXD, BOXOP), ("S", BOXD + 16, BOXOP + 8)):
            if nm == "S" and cp > 3: continue
            after = max(pos[("bx", cp, nm + "0")], pos[("bx", cp, nm + "1")]) + 3
            if cp: after = max(after, pos[("farend", cp - 1, nm)])
            for dd in range(4):
                F.append(dict(text=f"v_cvt_pk_bf16_f32 {v(op+dd)}, {v(d0+dd)}, {v(d0+4+dd)}", after=after,
                              before=pos[("far", cp, nm)] - 1))
    OT = 10; TR = 12
    tail = []
    for c in range(8):
        done = pos[("near", c, 8 * c)]
        ins = [f"v_cvt_pk_bf16_f32 {v(OT)}, {v(acc(c))}, {v(acc(c)+1)}", f"v_cvt_pk_bf16_f32 {v(OT+1)}, {v(acc(c)+2)}, {v(acc(c)+3)}"]
        w = f"ds_write_b64 {v(vE)}, {v(OT,2)} offset:{512*c}"
        if c < 7:
            for x in ins: F.append(dict(text=x, after=done + 4, before=min(N, done + 12), chain="o"))
            F.append(dict(text=w, after=done + 4, before=min(N, done + 13), lds=True, tag=("o", c), chain="o"))
            if c & 1:
                pc = c // 2
                F.append(dict(text="s_nop 0" if O.exp & 2 else "s_barrier", after=done + 8, before=done + 16, needs=(("o", c),), chain="o"))
                for h in range(2):
                    F.append(dict(text=f"ds_read_b64_tr_b16 {v(TR+2*h,2)}, {v(vTR)} offset:{1024*pc+4*EST*h}", after=done + 8, before=done + 18,
                                  lds=True, tag=("tr", pc), chain="s"))
                st = f"buffer_store_dwordx4 {v(TR,4)}, {v(vST)}, {s(sOut,4)}, {'0' if pc == 0 else s(53+pc)} offen"
                if O.exp & 1: st = "s_nop 0"
                ns = O.stagger
                for k in range(ns):
                    p0 = done + 14 + k * (24 // ns)
                    txt = st if ns == 1 else f"s_cmp_lg_u32 {s(sWave)}, {k}\ns_cbranch_scc1 L_nst_{pc}_{k}\n{st}\nL_nst_{pc}_{k}:"
                    F.append(dict(text=txt, after=min(p0, N - 1), before=min(N, p0 + 4), needs=(("tr", pc),), chain="s"))
        else:
            tail += [(x, False) for x in ins] + [(w, True)]
    for f in F:
        if f.get("chain") == "s": f["chain"] = "o"
    F.sort(key=lambda f: (f["after"] if f.get("chain") == "o" else -10))
    extra(F, pos, N)
    schedule(A, L, main, F, per_gap=O.per_gap)
    for x, l in tail:
        if l: L.issue(x)
        else: A(x)

def gen_conv(A, O):
    L = Lgkm(A); ST = Stamper(A, O.stamps)
    ST()
    sT = 52
    A("s_and_b32 s56, s2, 7"); A("s_lshl_b32 s44, s56, 4"); A("s_add_u32 s44, s44, s3")
    A(f"v_and_b32 {v(vL)}, 63, v0"); A(f"v_and_b32 {v(vI)}, 15, v0"); A(f"v_bfe_u32 {v(vG)}, v0, 4, 2")
    A("v_lshrrev_b32 v4, 6, v0"); A("v_readfirstlane_b32 s45, v4")
    A(f"s_mov_b32 s40, {f32bits(L_HI)}"); A(f"s_mov_b32 s41, {f32bits(L_LO)}")
    A("s_lshl_b32 s46, s44, 3"); A("s_add_u32 s46, s46, s45")
    A("s_lshl_b32 s47, s46, 8"); A("s_lshl_b32 s48, s46, 1"); A("s_lshl_b32 s49, s44, 4")
    A(f"v_lshl_add_u32 v4, {v(vL)}, 2, s47")
    A("v_mov_b32 v5, s48")
    A("s_waitcnt lgkmcnt(0)")
    A("s_load_dword s50, s[36:37], 0")
    for d, k in ((24, "ldt"), (8, "lar"), (12, "aim"), (16, "cre"), (20, "cim"), (28, "dsk")): srd_fin(A, d, k)
    A("buffer_load_ushort v15, v5, s[24:27], 0 offen")
    for k, d in enumerate((8, 12, 16, 20)): A(f"buffer_load_dword {v(16+k)}, v4, {s(d,4)}, 0 offen nt")
    A("buffer_load_ushort v14, v5, s[28:31], 0 offen")
    for d, k in ((4, "x"), (32, "out")): srd_fin(A, d, k)
    srd_fin(A, 36, "ws", size=WS_SIZE)
    vXC, vSL = 9, 11
    A(f"v_lshlrev_b32 {v(vXC)}, 13, v0"); A(f"v_add_u32 {v(vXC)}, s49, {v(vXC)}")
    A("s_lshl_b32 s57, s3, 7"); A("s_lshl_b32 s58, s45, 4"); A("s_add_u32 s57, s57, s58"); A("s_lshl_b32 s57, s57, 11")
    A("s_lshl_b32 s58, s56, 8"); A("s_add_u32 s57, s57, s58")
    A(f"v_lshrrev_b32 {v(vSL)}, 1, {v(vL)}"); A(f"v_lshlrev_b32 {v(vSL)}, 11, {v(vSL)}")
    A(f"v_and_b32 v10, 1, {v(vL)}"); A(f"v_lshl_add_u32 {v(vSL)}, v10, 7, {v(vSL)}"); A(f"v_add_u32 {v(vSL)}, s57, {v(vSL)}")
    A("s_mov_b32 s53, 4096")
    def slab():
        if O.exp & 8: A("buffer_load_ushort v148, v5, s[24:27], 0 offen"); return
        A("s_mov_b32 exec_hi, 0"); A(f"buffer_load_dword v148, {v(vSL)}, s[4:7], 0 offen{' nt' if O.slab_nt else ''}"); A("s_mov_b32 exec_hi, -1")
    if O.slab_early: slab()
    if O.code_pf:
        A("s_cmp_lg_u32 s45, 7"); A("s_cbranch_scc1 L_conv_nocp"); A("s_cmp_gt_u32 s3, 1"); A("s_cbranch_scc1 L_conv_nocp")
        code_prefetch(A, "conv", 60, 149, 150, "L_conv_kg", 2)
        A("L_conv_nocp:")
    A(f"s_mul_i32 s57, s45, {TST}"); A(f"s_add_u32 s57, s57, {TBASE}")
    for k in range(4): A(f"v_mov_b32 {v(64+k)}, 0")
    A(f"v_lshl_add_u32 v10, {v(vL)}, 4, s57")
    for k in range(4): A(f"ds_write_b128 v10, v[64:67] offset:{1024*k}")
    vSH = 4
    A(f"v_lshlrev_b32 {v(vSH)}, 3, {v(vG)}"); A(f"v_sub_u32 {v(vSH)}, {v(vSH)}, {v(vI)}")
    A(f"v_add_u32 {v(vSH)}, 15, {v(vSH)}"); A(f"v_min_u32 {v(vSH)}, 31, {v(vSH)}")
    for k, (lo, hi) in enumerate(((6, 10), (3, 5), (4, 12), (5, 11))): band(A, BAND + 4 * k, vSH, lo, hi, 0x3f80, 5, 6, 7, 43)
    band(A, KC, vSH, 12, 13, 0xffff, 5, 6, 7, 43)
    table_addresses(A, 57)
    A(f"v_mov_b32 {v(AD_D)}, 0"); A(f"v_writelane_b32 {v(AD_D)}, -1, 0")
    A("s_mov_b32 s58, 0"); A("s_mov_b32 s59, 1")
    vRow, vOp, vU, vE = 5, 6, 7, 8
    A(f"s_mul_i32 s54, s45, {KST}")
    if O.addtid: A("s_mov_b32 m0, s54")
    A(f"v_lshl_add_u32 {v(vRow)}, {v(vL)}, 3, s54")
    A(f"v_mul_u32_u24 {v(vOp)}, 528, {v(vI)}")
    A(f"v_and_b32 v10, 1, {v(vG)}"); A(f"v_lshl_add_u32 {v(vOp)}, v10, 8, {v(vOp)}")
    A(f"v_lshrrev_b32 v10, 1, {v(vG)}"); A(f"v_lshl_add_u32 {v(vOp)}, v10, 4, {v(vOp)}")
    A(f"v_add_u32 {v(vOp)}, s54, {v(vOp)}")
    A(f"s_mul_i32 s51, s45, {UST}")
    A(f"v_lshlrev_b32 v10, 5, {v(vI)}")
    A(f"v_lshl_add_u32 {v(vU)}, {v(vG)}, 4, v10"); A(f"v_add3_u32 {v(vU)}, {v(vU)}, s51, 32")
    A(f"s_mul_i32 s54, s45, {EST}"); A(f"s_add_u32 s54, s54, {EBASE}")
    A(f"v_lshl_add_u32 {v(vE)}, {v(vG)}, 3, v10"); A(f"v_add_u32 {v(vE)}, s54, {v(vE)}")
    A("s_waitcnt lgkmcnt(0)")
    tag_from_epoch(A, 50, sT)
    base = 1 if O.slab_early else 0
    if O.code_pf:
        A("s_cmp_lg_u32 s45, 7"); A("s_cbranch_scc1 L_conv_w1"); A("s_cmp_gt_u32 s3, 1"); A("s_cbranch_scc1 L_conv_w1")
        A(f"s_waitcnt vmcnt({base+2})"); A("s_branch L_conv_kg")
        A("L_conv_w1:")
    A(f"s_waitcnt vmcnt({base})")
    A("L_conv_kg:")
    if not O.slab_early: slab()
    A("s_cmp_lg_u32 s45, 0"); A("s_cbranch_scc1 L_conv_noack")
    A("s_lshl_b32 s50, s44, 2"); A(f"s_add_u32 s50, s50, {WS_ACK}")
    A("v_mov_b32 v10, s50"); A(f"v_mov_b32 v12, {s(sT)}"); A("s_mov_b64 exec, 1")
    A("buffer_store_dword v12, v10, s[36:39], 0 offen sc1")
    A("s_mov_b64 exec, -1")
    A("L_conv_noack:")
    ST(); ST.cyc0(62)
    K = Asm(); LK = Lgkm(K)
    D, mf2 = kgen(K, LK, O, vRow, vOp, 40, 41)
    ktables(K, LK, D, mf2, 42, O.exp & 32)
    n = len(K.lines); step = n // 16; cntx = 0
    xl = [f"buffer_load_dwordx4 {v(XR+4*rr,4)}, {v(vXC)}, s[4:7], {'0' if rr < 2 else 's53'} offen offset:{2048*(rr&1)}" for rr in range(4)]
    masked = False
    for i, ln in enumerate(K.lines):
        if ln.startswith("CYC"): ST.cyc1(62)
        else: A(ln)
        if ln.startswith("s_mov_b32 exec"): masked = not ln.endswith("-1")
        if i % step == step - 1:
            assert not masked
            j = i // step + 1 - 2 * O.xcol_at
            if j == 0: A("s_waitcnt vmcnt(0)")
            if 0 <= j < 8 and j % 2 == 0: A(xl[j // 2] if not O.exp & 4 else "s_nop 0"); cntx += 1
    assert cntx == 4
    L.q = LK.q
    ST(L); ST.cyc1(62)
    PX, EPK = 176, 208
    A("s_mov_b32 s46, 0x05040100"); A("s_mov_b32 s47, 0x07060302")
    vW, vPo = 4, 6
    A(f"v_lshlrev_b32 {v(vW)}, 3, v0"); A(f"v_add_u32 v5, {EBASE}, {v(vW)}")
    A(f"v_lshlrev_b32 {v(vPo)}, 4, v0"); A(f"v_add_u32 {v(vPo)}, {WS_STATS}, {v(vPo)}")
    A("v_mov_b32 v12, 0"); A("v_mov_b32 v13, 0"); A(f"v_lshl_add_u32 v10, {v(vL)}, 3, s51")
    A("s_mov_b32 s53, 8192")
    A("s_waitcnt vmcnt(0)")
    GR = 144
    gl = [f"buffer_load_dwordx4 {v(GR,4)}, {v(vPo)}, s[36:39], 0 offen sc1", f"buffer_load_dwordx4 {v(GR+4,4)}, {v(vPo)}, s[36:39], s53 offen sc1"]
    for x in gl: A(x)
    for c in range(8):
        for a_ in range(2):
            A(f"v_perm_b32 {v(EPK+2*c+a_)}, {v(XR+8*a_+4+(c>>1))}, {v(XR+8*a_+(c>>1))}, {s(46+(c&1))}")
    L.drain(); A("s_barrier")
    L.issue("ds_write_b64 v10, v[12:13]")
    for c in range(8): L.issue(f"ds_write_b64 v5, {v(EPK+2*c,2)} offset:{c*EST}")
    for c in range(8):
        for rr in range(4):
            src = XR + 4 * rr + (c >> 1); d = PX + 4 * c + rr
            A(f"v_lshlrev_b32 {v(d)}, 16, {v(src)}" if c % 2 == 0 else f"v_and_b32 {v(d)}, {MASKHI}, {v(src)}")
    vTR, vST, vSE = 240, 241, 242
    A(f"v_bfe_u32 v10, v0, 2, 2"); A(f"v_mul_u32_u24 v10, {EST}, v10")
    A("v_lshrrev_b32 v11, 4, v0"); A("v_lshl_add_u32 v10, v11, 5, v10")
    A("v_and_b32 v11, 3, v0"); A("v_lshl_add_u32 v10, v11, 3, v10"); A(f"v_add_u32 {v(vTR)}, {EBASE}, v10")
    A(f"v_lshlrev_b32 v11, 11, v0"); A(f"v_add_u32 {v(vST)}, s49, v11")
    A("s_mov_b32 s54, 0x100000"); A("s_mov_b32 s55, 0x200000")
    A(f"v_and_b32 v10, 7, {v(vL)}"); A("v_lshlrev_b32 v10, 4, v10"); A(f"v_add_u32 {v(vSE)}, {WS_SEL}, v10")
    if O.stagger > 1: A(f"s_lshr_b32 s57, s45, 2" if O.stagger == 2 else f"s_and_b32 s57, s45, {O.stagger-1}")
    ST(L)
    poll_masked(A, "conv", gl, [GR + 3, GR + 7], sT, 43, 8, O.poll_sleep, issued=True)
    ST(L)
    RS, MB, XN, UP = 160, 164, 168, 208
    src = [GR, GR + 1, GR + 4, GR + 5]
    for rr in range(4): A(f"v_and_b32 {v(RS+rr)}, {MASKHI}, {v(src[rr])}")
    for rr in range(4): A(f"v_rcp_f32 {v(RS+rr)}, {v(RS+rr)}")
    for rr in range(4): A(f"v_lshlrev_b32 {v(MB+rr)}, 16, {v(src[rr])}")
    for a_ in range(2): A(f"v_pk_mul_f32 {v(MB+2*a_,2)}, {v(MB+2*a_,2)}, {v(RS+2*a_,2)} neg_lo:[1,0] neg_hi:[1,0]")
    for c in range(8):
        x = XN + 4 * (c & 1)
        for a_ in range(2): A(f"v_pk_fma_f32 {v(x+2*a_,2)}, {v(PX+4*c+2*a_,2)}, {v(RS+2*a_,2)}, {v(MB+2*a_,2)}")
        for a_ in range(2): A(f"v_cvt_pk_bf16_f32 {v(UP+2*c+a_)}, {v(x+2*a_)}, {v(x+2*a_+1)}")
        L.issue(f"ds_write_b64 {v(vW)}, {v(UP+2*c,2)} offset:{c*UST+512}")
    L.drain(); A("s_barrier")
    ST(L); ST.cyc0(62)
    SEL = 244
    selload = f"buffer_load_dwordx4 {v(SEL,4)}, {v(vSE)}, s[36:39], 0 offen sc1"
    def extra(F, pos, N):
        a0 = pos[("first", 38)]
        F.append(dict(text=selload, after=a0, before=a0 + 3))
    convloop(A, L, O, vU, vE, vTR, vST, 32, 57, extra)
    isel = A.lines.index(selload)
    later = [x for x in A.lines[isel+1:] if x.startswith("buffer_")]
    assert all("s55 offen" in x for x in later) or O.exp, later
    L.drain()
    A("s_waitcnt vmcnt(1)")
    ST(L); ST.cyc1(62)
    A("s_barrier")
    TR = 12
    for h in range(2): L.issue(f"ds_read_b64_tr_b16 {v(TR+2*h,2)}, {v(vTR)} offset:{1024*3+4*EST*h}", "tr")
    YR = 16
    A("s_lshl_b32 s43, s44, 11"); A(f"s_add_u32 s43, s43, {WS_Y}"); A(f"v_lshl_add_u32 v9, {v(vL)}, 4, s43")
    yl = [f"buffer_load_dwordx4 {v(YR+4*k,4)}, v9, s[36:39], 0 offen offset:{1024*k} sc1" for k in range(2)]
    A(f"v_cmp_ne_u32 vcc, {s(sT)}, {v(SEL+3)}")
    A("s_cbranch_vccz L_conv_selok")
    poll(A, "sel", [selload], [SEL + 3], sT, 43, 11, O.poll_sleep)
    A("L_conv_selok:")
    A("s_cmp_lg_u32 s45, 0"); A("s_cbranch_scc1 L_conv_noy")
    for x in yl: A(x)
    A("L_conv_noy:")
    for k in range(8): A(f"v_readlane_b32 {s(4+k)}, {v(SEL)}, {k}")
    A("v_add_u32 v11, 1536, v0")
    A("s_mov_b32 s43, 0x300000")
    for k in range(8): A(f"v_cmpx_ne_u32 vcc, {s(4+k)}, v11")
    L.need("tr")
    A("s_nop 3")
    A(f"buffer_store_dwordx4 {v(TR,4)}, {v(vST)}, s[32:35], s43 offen")
    A("s_mov_b64 exec, -1")
    A("s_cmp_eq_u32 s45, 0"); A("s_cbranch_scc1 L_conv_fin")
    A("s_waitcnt vmcnt(1)")
    A("s_barrier"); A("s_branch L_conv_end")
    A("L_conv_fin:")
    A(f"v_bfe_u32 v10, {v(vL)}, 3, 1"); A(f"v_mul_u32_u24 v11, {4*EST}, v10"); A(f"v_lshl_add_u32 v11, {v(SEL)}, 1, v11"); A(f"v_add_u32 v11, {EBASE}, v11")
    for k in range(4): L.issue(f"ds_read_u16 {v(32+k)}, v11 offset:{EST*k}")
    A(f"v_lshlrev_b32 v12, 11, {v(SEL)}"); A("v_lshl_add_u32 v12, v10, 3, v12"); A("v_add_u32 v12, s49, v12")
    A("s_mov_b32 s12, 0x0c0c0400"); A("s_mov_b32 s13, 0x05040100"); A("s_mov_b32 s43, 0")
    A("s_waitcnt vmcnt(1)")
    A("L_conv_y:")
    for k in range(2):
        y = YR + 4 * k
        A(f"v_perm_b32 v13, {v(y+1)}, {v(y)}, s12"); A(f"v_perm_b32 v14, {v(y+3)}, {v(y+2)}, s12")
        A(f"v_perm_b32 {v(24+k)}, v14, v13, s13")
    A(f"v_xor_b32 v24, {s(sT)}, v24"); A(f"v_bitop3_b32 v24, v24, v25, {s(sT)} bitop3:0xf6")
    A("v_cmp_ne_u32 vcc, 0, v24"); A("s_cbranch_vccz L_conv_yok")
    bounded(A, 43, "L_conv_yok")
    for x in yl: A(x)
    A("s_waitcnt vmcnt(0)"); A("s_branch L_conv_y")
    A("L_conv_yok:")
    ST()
    for q in range(2): A(f"v_pk_add_f32 {v(YR+2*q,2)}, {v(YR+2*q,2)}, {v(YR+4+2*q,2)}")
    for sw in ("v_permlane16_swap_b32", "v_permlane32_swap_b32"):
        for k in range(4): A(f"v_mov_b32 {v(YR+4+k)}, {v(YR+k)}")
        for k in range(4): A(f"{sw} {v(YR+k)}, {v(YR+4+k)}")
        for q in range(2): A(f"v_pk_add_f32 {v(YR+2*q,2)}, {v(YR+2*q,2)}, {v(YR+4+2*q,2)}")
    L.drain()
    for k in range(4): A(f"v_lshlrev_b32 {v(32+k)}, 16, {v(32+k)}")
    for k in range(4): A(f"v_fma_f32 {v(YR+k)}, {v(YR+k)}, {v(SEL+1)}, {v(32+k)}")
    A(f"v_cvt_pk_bf16_f32 {v(YR)}, {v(YR)}, {v(YR+1)}"); A(f"v_cvt_pk_bf16_f32 {v(YR+1)}, {v(YR+2)}, {v(YR+3)}")
    A("s_barrier")
    A("s_mov_b64 exec, 0xffff")
    A(f"buffer_store_dwordx2 {v(YR,2)}, v12, s[32:35], 0 offen")
    A("L_conv_end:")
    if O.stamps:
        A("s_waitcnt vmcnt(0)"); ST()
    if O.probe_role == 2: ST.probe(45, "conv", O.probe_j, O.probe_k)
    ST.flush(45, "conv")
    A("s_endpgm")

Opt.slab_nt = 1
Opt.w_nt = 1
def build(O):
    name = NAME + "_kernel"
    A = Asm()
    head(A, name)
    A("s_cmp_ge_u32 s2, 256"); A("s_cbranch_scc1 L_exit")
    if O.stamps: A(f"s_xor_b32 s94, s2, {128 if O.conv_first else 0}")
    A("s_bfe_u32 s3, s2, 0x40003"); A("s_bitcmp1_b32 s2, 7"); A(f"s_cbranch_scc{1 if O.conv_first else 0} L_auxk")
    for d, k in ((8, "lar"), (12, "aim"), (16, "cre"), (20, "cim"), (24, "ldt"), (28, "dsk"), (4, "x"), (32, "out"), (36, "ws")): srd_load(A, d, k)
    A("s_branch L_conv")
    A("L_auxk:")
    for d, k in ((4, "x"), (8, "wr"), (12, "ws"), (16, "wg"), (20, "wu"), (24, "wd")): srd_load(A, d, k)
    A("L_aux_code:")
    gen_aux(A, O)
    A("L_exit:"); A("s_endpgm")
    A(".p2align 6")
    A("L_conv:")
    gen_conv(A, O)
    A("L_code_end:")
    txt = f"; @launch grid=(256,1,1) block=(512,1,1) lds={LDS_TOTAL}\n" + '.amdgcn_target "amdgcn-amd-amdhsa--gfx950"\n' + A.text()
    print("lines", len(A.lines), "auto nops", A.nauto, "lds", LDS_TOTAL, file=sys.stderr)
    return txt + KD.format(name=name, vgpr=256, sgpr=96, acc=256)

if __name__ == "__main__":
    O = Opt()
    for a_ in sys.argv[2:]:
        k, val = a_.split("="); assert hasattr(O, k), k; setattr(O, k, int(val))
    open(sys.argv[1], "w").write(build(O))
```

```python
import re

def v(n, c=1):
    return f"v{n}" if c == 1 else f"v[{n}:{n+c-1}]"
def s(n, c=1):
    return f"s{n}" if c == 1 else f"s[{n}:{n+c-1}]"
def a(n, c=1):
    return f"a{n}" if c == 1 else f"a[{n}:{n+c-1}]"

_REG = re.compile(r"^-?(?:abs\()?\|?([vsa])(?:(\d+)|\[(\d+):(\d+)\])\|?\)?$")
TRANS = ("v_exp_f32", "v_log_f32", "v_rcp_f32", "v_rsq_f32", "v_sqrt_f32", "v_sin_f32", "v_cos_f32",
         "v_rcp_iflag_f32", "v_exp_f16", "v_rcp_f16")

def regs_of(op):
    op = op.strip()
    if op in ("vcc",): return {("s", "vcc")}
    if op in ("vcc_lo", "vcc_hi"): return {("s", "vcc")}
    if op in ("exec", "exec_lo", "exec_hi"): return {("s", "exec")}
    if op == "m0": return {("s", "m0")}
    m = _REG.match(op)
    if not m: return set()
    k = m.group(1)
    if m.group(2) is not None:
        lo = hi = int(m.group(2))
    else:
        lo, hi = int(m.group(3)), int(m.group(4))
    return {(k, i) for i in range(lo, hi + 1)}

class Ins:
    def __init__(self, text):
        self.text = text
        t = text.split(";")[0].strip()
        self.is_label = t.endswith(":")
        self.is_dir = t.startswith(".") and not self.is_label
        self.mn = "" if (self.is_label or self.is_dir or not t) else t.split()[0]
        self.rd = set(); self.wr = set()
        self.mA = self.mB = self.mC = set()
        self.passes = 0
        if not self.mn: return
        rest = t[len(self.mn):].strip()
        ops = []; depth = 0; cur = ""
        for ch in rest:
            if ch == "[": depth += 1
            if ch == "]": depth -= 1
            if ch == "," and depth == 0:
                ops.append(cur.strip()); cur = ""
            else: cur += ch
        if cur.strip(): ops.append(cur.strip())
        mods = ""
        if ops:
            parts = ops[-1].split()
            ops[-1] = parts[0]; mods = " ".join(parts[1:])
        self.ops = ops; self.mods = mods
        mn = self.mn
        R = [regs_of(o) for o in ops]
        self.valu = mn.startswith("v_") and not mn.startswith("v_mfma")
        self.mfma = mn.startswith("v_mfma")
        self.trans = any(mn.startswith(x) for x in TRANS)
        self.dpp = ("dpp" in mn) or any(x in mods for x in ("row_", "quad_perm", "wave_", "row_bcast"))
        self.vmem = mn.startswith(("buffer_", "global_", "flat_"))
        self.ds = mn.startswith("ds_")
        self.salu = mn.startswith("s_")
        U = lambda l: set().union(*l) if l else set()
        if self.mfma:
            self.wr = R[0]; self.mA, self.mB, self.mC = R[1], R[2], R[3]
            self.rd = R[1] | R[2] | R[3]
            self.passes = 8 if "32x32" in mn else 4
        elif self.valu:
            if mn.startswith("v_cmp"):
                self.wr = set(R[0]); self.rd = U(R[1:])
                if mn.startswith("v_cmpx"): self.wr |= {("s", "exec")}
            elif mn.startswith(("v_add_co", "v_sub_co", "v_subrev_co", "v_addc_co", "v_subb_co")):
                self.wr = R[0] | R[1]; self.rd = U(R[2:])
            elif mn.startswith("v_permlane") and "swap" in mn:
                self.wr = R[0] | R[1]; self.rd = R[0] | R[1]
            elif mn.startswith("v_nop"):
                pass
            else:
                self.wr = set(R[0]); self.rd = U(R[1:])
                if mn.startswith(("v_fmac", "v_pk_fmac", "v_writelane", "v_dot2c")) or self.dpp or "sdwa" in mn:
                    self.rd |= R[0]
                if mn.startswith("v_cndmask") and len(ops) == 3: self.rd |= {("s", "vcc")}
        elif self.ds:
            if mn.startswith(("ds_read", "ds_bpermute", "ds_permute", "ds_swizzle")) or "_rtn" in mn:
                self.wr = set(R[0]); self.rd = U(R[1:])
                if "d16" in mn: self.rd |= R[0]
            else:
                self.rd = U(R)
            if "addtid" in mn: self.rd |= {("s", "m0")}
        elif self.vmem:
            self.lds_dma = (" lds" in " " + mods) or ("load_lds" in mn)
            if "load" in mn and not self.lds_dma:
                self.wr = set(R[0]); self.rd = U(R[1:])
                if "d16" in mn: self.rd |= R[0]
            elif "atomic" in mn and "sc0" in mods:
                self.wr = set(R[0]); self.rd = U(R)
            else:
                self.rd = U(R)
            if self.lds_dma: self.rd |= {("s", "m0")}
            self.wide_store = ("store" in mn) and ("x4" in mn or "x3" in mn)
            if self.wide_store:
                self.sdata = R[0] if mn.startswith("buffer_") else R[1]
        elif self.salu:
            if mn.startswith(("s_cmp", "s_cbranch", "s_branch", "s_waitcnt", "s_nop", "s_barrier", "s_endpgm", "s_sleep", "s_setprio", "s_bitcmp")):
                self.rd = U(R)
            else:
                self.wr = set(R[0]) if R else set(); self.rd = U(R[1:])
                if "saveexec" in mn: self.wr |= {("s", "exec")}

    def states(self):
        if not self.mn: return 0
        if self.mn == "s_nop": return int(self.ops[0], 0) + 1
        return 1

def _vonly(S): return {r for r in S if r[0] in "va"}
def _sonly(S): return {r for r in S if r[0] == "s"}

def need(p, c):
    n = 0
    if p.mfma:
        big = 12 if p.passes == 8 else 8
        if c.mfma:
            if p.wr & (c.mA | c.mB): n = max(n, big)
            if p.wr & c.mC and not (p.wr == c.mC and p.passes == c.passes): n = max(n, 10 if p.passes == 8 else 6)
            if p.wr & c.wr and not (p.wr == c.mC): n = max(n, big)
        elif c.valu or c.vmem or c.ds:
            if p.wr & (c.rd | c.wr): n = max(n, big)
            if c.valu and (p.mC & c.wr): n = max(n, 7 if p.passes == 8 else 3)
        return n
    if p.valu:
        pv = _vonly(p.wr); ps = _sonly(p.wr)
        if c.mfma:
            if pv & c.rd: n = max(n, 2)
            if ("s", "exec") in ps: n = max(n, 4)
        if c.valu:
            if p.trans and pv & c.rd: n = max(n, 1)
            if c.dpp and pv & c.rd: n = max(n, 2)
            if c.mn.startswith(("v_readlane", "v_readfirstlane")) and pv & c.rd: n = max(n, 1)
            if c.mn.startswith("v_permlane") and pv & c.rd: n = max(n, 2)
            if ps & c.rd:
                n = max(n, 4 if c.mn.startswith(("v_readlane", "v_writelane")) else 2)
            if ("sdwa" in p.mn or "op_sel" in p.mods and not p.mn.startswith("v_pk_")) and pv & (c.rd | c.wr): n = max(n, 1)
            if ("s", "exec") in ps: n = max(n, 5)
        if p.mn.startswith("v_dot") and c.mn != p.mn and pv & (c.rd | c.wr): n = max(n, 3)
        if c.vmem and ps & c.rd: n = max(n, 5)
        if (c.vmem or c.ds) and p.trans and pv & c.rd: n = max(n, 1)
        return n
    if p.vmem and getattr(p, "wide_store", False):
        if (c.valu or c.mfma) and p.sdata & c.wr: n = max(n, 2)
        elif (c.vmem or c.ds) and p.sdata & c.wr: n = max(n, 1)
    if p.salu and ("s", "m0") in p.wr and ("s", "m0") in c.rd and (c.vmem or c.ds): n = max(n, 1)
    return n

class Asm:
    def __init__(self):
        self.lines = []
    def __call__(self, text):
        for ln in text.split("\n"):
            ln = ln.strip()
            if ln: self.lines.append(ln)
    def raw(self, text):
        self.lines.append(text)
    def ext(self, lst):
        for x in lst: self(x)
    def pad(self):
        out = []; hist = []
        nins = 0
        for ln in self.lines:
            ins = Ins(ln)
            if not ins.mn:
                out.append(ln); continue
            dist = 0; req = 0
            for p in ([] if "nohaz" in ln else reversed(hist)):
                if dist >= 20: break
                r = need(p, ins)
                if r > dist: req = max(req, r - dist)
                dist += p.states()
            while req > 0:
                k = min(req, 16)
                nop = Ins(f"s_nop {k-1}")
                out.append(f"s_nop {k-1} ; auto"); hist.append(nop); req -= k; nins += 1
            out.append(ln); hist.append(ins)
            if len(hist) > 40: hist = hist[-40:]
        self.nauto = nins
        return out
    def text(self):
        res = []
        for ln in self.pad():
            t = ln.split(";")[0].strip()
            if t.endswith(":") or t.startswith("."): res.append(ln)
            else: res.append("    " + ln)
        return "\n".join(res) + "\n"

def interleave(main, fill, ratio=None):
    out = []; n = len(main); m = len(fill); j = 0
    for i, x in enumerate(main):
        out.append(x)
        tgt = (i + 1) * m // n
        while j < tgt:
            out.append(fill[j]); j += 1
    out.extend(fill[j:])
    return out

def f32bits(x):
    import struct
    return "0x%08x" % struct.unpack("<I", struct.pack("<f", x))[0]

KD = """.section .rodata,"a"
.p2align 6
.amdhsa_kernel {name}
  .amdhsa_next_free_vgpr {vgpr}
  .amdhsa_next_free_sgpr {sgpr}
  .amdhsa_accum_offset {acc}
  .amdhsa_group_segment_fixed_size 0
  .amdhsa_kernarg_size 120
  .amdhsa_user_sgpr_count 2
  .amdhsa_user_sgpr_kernarg_segment_ptr 1
  .amdhsa_system_sgpr_workgroup_id_x 1
.end_amdhsa_kernel
"""

class Lgkm:
    def __init__(self, A):
        self.A = A; self.q = []
    def issue(self, text, tag=None):
        self.A(text); self.q.append(tag)
    def need(self, *tags):
        idx = -1
        for t in tags:
            if t in self.q: idx = max(idx, len(self.q) - 1 - self.q[::-1].index(t))
        if idx < 0: return
        n = len(self.q) - 1 - idx
        n = min(n, 15)
        self.A(f"s_waitcnt lgkmcnt({n})")
        self.q = self.q[len(self.q) - n:] if n else []
    def drain(self):
        if self.q:
            self.A("s_waitcnt lgkmcnt(0)"); self.q = []

def schedule(A, L, main, fillers, per_gap=2):
    pend = list(fillers)
    for i, f in enumerate(pend): f["seq"] = i
    def emit(f):
        if f.get("needs"): L.need(*f["needs"])
        if f.get("lds"): L.issue(f["text"], f.get("tag"))
        else: A(f["text"])
    def ready(f, g):
        if f["after"] > g: return False
        ch = f.get("chain")
        if ch is not None:
            for o in pend:
                if o is f: break
                if o.get("chain") == ch: return False
        return True
    for g in range(-1, len(main)):
        if g >= 0:
            text, needs = main[g]
            if needs: L.need(*needs)
            A(text)
        placed = 0
        while True:
            cand = [f for f in pend if ready(f, g)]
            if not cand: break
            cand.sort(key=lambda f: (f["before"], f["seq"]))
            f = cand[0]
            if placed >= per_gap and f["before"] > g + 1: break
            pend.remove(f); emit(f); placed += 1
    assert not pend, pend

def schedule2(A, L, main, fillers, per_gap=2, age=6):
    pend = list(fillers)
    for i, f in enumerate(pend): f["seq"] = i
    when = []
    when.extend([-100] * len(L.q))
    state = dict(g=-1)
    def outstanding(tags): return any(t in L.q for t in tags)
    def wait(tags):
        idx = max(len(L.q) - 1 - L.q[::-1].index(t) for t in tags if t in L.q)
        while idx + 1 < len(L.q) and when[idx + 1] <= state["g"] - age: idx += 1
        n = min(len(L.q) - 1 - idx, 15)
        A(f"s_waitcnt lgkmcnt({n})")
        keep = len(L.q) - n
        del L.q[:keep]; del when[:keep]
    def cost(f): return f.get("cost", 1) + (1 if f.get("needs") and outstanding(f["needs"]) else 0)
    def emit(f):
        if f.get("needs") and outstanding(f["needs"]): wait(f["needs"])
        if f.get("lds"): L.issue(f["text"], f.get("tag")); when.append(state["g"])
        else: A(f["text"])
    def ready(f, g):
        if f["after"] > g: return False
        ch = f.get("chain")
        if ch is not None:
            if f.get("lag") and g < lastpos.get(ch, -100) + f["lag"] and f["before"] > g + 1: return False
            for o in pend:
                if o is f: break
                if o.get("chain") == ch: return False
        return True
    over = 0
    lastpos = {}
    for g in range(-1, len(main)):
        state["g"] = g
        if g >= 0:
            text, needs = main[g]
            if needs and outstanding(needs): wait(needs)
            A(text)
        used = 0
        while True:
            nxt = 1 if g + 1 < len(main) and main[g + 1][1] and outstanding(main[g + 1][1]) else 0
            cand = [f for f in pend if ready(f, g)]
            if not cand: break
            cand.sort(key=lambda f: (f["before"], f["seq"]))
            pick = None
            for f in cand:
                if f["before"] <= g + 1 or g < 0 and f.get("pre") or used + cost(f) + nxt <= per_gap: pick = f; break
            if pick is None: break
            used += cost(pick); pend.remove(pick); emit(pick); lastpos[pick.get("chain")] = g
        if g >= 0 and used + nxt > per_gap: over += used + nxt - per_gap
    assert not pend, pend
    return over
```

```python
import sys
from parts import *

WS_ACK = 2048
WS_STATS = 4096
WS_SEL = 24576
WS_G = 32768
WS_Y = WS_G + 8 * 57344
WS_SIZE = WS_Y + 128 * 2048
WS_STAMP = 128 << 20
SPIN_MAX = 1 << 16
XS = 131072; XST = 1040
KEYS = XS + 9 * XST
CTL = KEYS + 8192
PART = 24512; WDST = 7184
KST = 8448; TBASE = 8 * KST; TST = 3072; PB_E = 2240
UBASE = TBASE + 8 * TST; UST = 4608; XBASE = UBASE + 8 * UST; CNT = XBASE + 32768
EBASE = 0; EST = KST + 64
LDS_TOTAL = max(CTL + 512, CNT + 64)
vL, vI, vG = 1, 2, 3
KN, KE, KO, K3, KC = 16, 84, 96, 108, 124
BAND = 128; ACC = 144; UB = 176; NUB = 6; U24 = 200; BOXD = 204; BOXOP = 228; XR = 224

class Opt:
    stamps = 0
    poll_sleep = 2
    aux_first_sleep = 12
    slab_early = 0
    xcol_at = 8
    xcol_gap = 4
    u_lead = 6
    age = 6
    mlag = 7
    head = 0
    pre_k = 0
    early_k = 8
    early_k2 = 4
    code_pf = 2
    conv_first = 0
    addtid = 1
    n0 = 6
    wd_pf = 0
    y_early = 1
    per_gap = 2
    prio = 3
    exp = 0
    g_first_sleep = 0
    wd_gate = 1
    no_slab = 0
    x_nt = 0
    wd_pf_at = 0
    gate_pub = 1
    wd1 = 28
    sel_first_sleep = 70
    probe_role = 0
    probe_j = 0
    probe_k = 0

class Stamper:
    def __init__(self, A, on, base=70):
        self.A = A; self.on = on; self.n = 0; self.base = base
    def __call__(self, L=None):
        if not self.on: return
        A = self.A
        if L is not None: L.drain()
        A("s_memrealtime s[68:69]"); A("s_waitcnt lgkmcnt(0)"); A(f"s_mov_b32 {s(self.base+self.n)}, s68")
        self.n += 1
    def cyc0(self, r):
        if self.on: self.A(f"s_memtime {s(r,2)}"); self.A("s_waitcnt lgkmcnt(0)")
    def cyc1(self, r):
        if not self.on: return
        A = self.A
        A("s_memtime s[68:69]"); A("s_waitcnt lgkmcnt(0)"); A(f"s_sub_u32 s68, s68, {s(r)}"); A(f"s_add_u32 {s(self.base+self.n)}, s68, {s(self.base)}"); self.n += 1
    def probe(self, sWave, uid, j, k):
        A = self.A
        A(f"s_cmp_lg_u32 {s(sWave)}, 0"); A(f"s_cbranch_scc1 L_noprobe_{uid}")
        A(f"s_sub_u32 s66, {s(self.base+j)}, {s(self.base)}"); A(f"s_mul_i32 s66, s66, {k}"); A("s_min_u32 s66, s66, 20000")
        A("s_memrealtime s[68:69]"); A("s_waitcnt lgkmcnt(0)"); A("s_mov_b32 s67, s68")
        A(f"L_probe_{uid}:")
        A("s_memrealtime s[68:69]"); A("s_waitcnt lgkmcnt(0)"); A("s_sub_u32 s68, s68, s67"); A("s_cmp_lt_u32 s68, s66"); A(f"s_cbranch_scc1 L_probe_{uid}")
        A(f"L_noprobe_{uid}:")
    def flush(self, sWave, uid):
        if not self.on: return
        A = self.A
        A(f"s_and_b32 s68, {s(sWave)}, 3"); A("s_cmp_lg_u32 s68, 0"); A(f"s_cbranch_scc1 L_nostamp_{uid}")
        A("s_mov_b64 exec, -1")
        A(f"s_load_dwordx2 s[64:65], s[0:1], {OFF['ws']}"); A("s_waitcnt lgkmcnt(0)")
        A(f"s_add_u32 s64, s64, {WS_STAMP}"); A("s_addc_u32 s65, s65, 0"); A("s_mov_b32 s66, 0x20000"); A("s_mov_b32 s67, 0x00020000")
        A("v_mov_b32 v2, 0")
        for j in range(self.n): A(f"v_writelane_b32 v2, {s(self.base+j)}, {j}")
        A(f"s_mov_b32 s68, {self.n}"); A("v_writelane_b32 v2, s68, 30")
        A("s_mov_b32 s68, 0x5a5a5a5a"); A("v_writelane_b32 v2, s68, 31")
        A(f"s_lshr_b32 s68, {s(sWave)}, 2"); A("s_lshl_b32 s69, s94, 1"); A("s_add_u32 s68, s68, s69"); A("s_lshl_b32 s68, s68, 7")
        A("v_and_b32 v3, 63, v0"); A("v_lshl_add_u32 v3, v3, 2, s68")
        A("s_mov_b64 exec, 0xffffffff")
        A("buffer_store_dword v2, v3, s[64:67], 0 offen")
        A(f"L_nostamp_{uid}:")

def tag_from_epoch(A, sE, sT):
    A(f"s_mul_i32 {s(sT)}, {s(sE)}, 0x9e3779b1"); A(f"s_add_u32 {s(sT)}, {s(sT)}, 0x7f4a7c15")

def bounded(A, sCnt, out, lim=SPIN_MAX):
    A(f"s_add_u32 {s(sCnt)}, {s(sCnt)}, 1"); A(f"s_cmp_ge_u32 {s(sCnt)}, {lim}"); A(f"s_cbranch_scc1 {out}")

def poll(A, uid, loads, tagregs, sT, sCnt, vT, sleep):
    A(f"s_mov_b32 {s(sCnt)}, 0")
    A(f"L_poll_{uid}:")
    for x in loads: A(x)
    A("s_waitcnt vmcnt(0)")
    A(f"v_xor_b32 {v(vT)}, {s(sT)}, {v(tagregs[0])}")
    for r in tagregs[1:]: A(f"v_bitop3_b32 {v(vT)}, {v(vT)}, {v(r)}, {s(sT)} bitop3:0xf6")
    A(f"v_cmp_ne_u32 vcc, 0, {v(vT)}")
    A(f"s_cbranch_vccz L_polled_{uid}")
    bounded(A, sCnt, f"L_polled_{uid}")
    if sleep: A(f"s_sleep {sleep}")
    A(f"s_branch L_poll_{uid}")
    A(f"L_polled_{uid}:")

def poll_masked(A, uid, loads, tagregs, sT, sCnt, sM, sleep, issued=False):
    n = len(loads)
    if not issued:
        for x in loads: A(x)
    A(f"s_mov_b32 {s(sCnt)}, 0")
    A(f"L_poll_{uid}:")
    A("s_waitcnt vmcnt(0)")
    for k in range(n): A(f"v_cmp_ne_u32 {s(sM+2*k,2)}, {s(sT)}, {v(tagregs[k])}")
    if n == 1: A(f"s_cmp_eq_u64 {s(sM,2)}, 0"); A(f"s_cbranch_scc1 L_polled_{uid}")
    else:
        A(f"s_or_b64 vcc, {s(sM,2)}, {s(sM+2,2)}")
        for k in range(2, n): A(f"s_or_b64 vcc, vcc, {s(sM+2*k,2)}")
        A(f"s_cbranch_scc0 L_polled_{uid}")
    bounded(A, sCnt, f"L_polled_{uid}")
    if sleep: A(f"s_sleep {sleep}")
    for k in range(n):
        A(f"s_mov_b64 exec, {s(sM+2*k,2)}"); A(f"s_cbranch_execz L_ps_{uid}_{k}")
        A(loads[k])
        A(f"L_ps_{uid}_{k}:")
    A("s_mov_b64 exec, -1")
    A(f"s_branch L_poll_{uid}")
    A(f"L_polled_{uid}:")

def lds_count_wait(A, uid, vAddr, off, n, vTmp, sTmp, sCnt, sleep=0):
    A(f"s_mov_b32 {s(sCnt)}, 0")
    A(f"L_lw_{uid}:")
    A(f"ds_read_b32 {v(vTmp)}, {v(vAddr)} offset:{off}")
    bounded(A, sCnt, f"L_lwx_{uid}", SPIN_MAX * 8)
    A("s_waitcnt lgkmcnt(0)")
    A(f"v_readfirstlane_b32 {s(sTmp)}, {v(vTmp)}")
    A(f"s_cmp_ge_u32 {s(sTmp)}, {n}"); A(f"s_cbranch_scc1 L_lwx_{uid}")
    if sleep: A(f"s_sleep {sleep}")
    A(f"s_branch L_lw_{uid}")
    A(f"L_lwx_{uid}:")
    A("s_waitcnt lgkmcnt(0)")

def code_prefetch(A, uid, sP, vA, vD, label, n, back=False):
    A(f"s_getpc_b64 {s(sP,2)}")
    A(f"L_pc_{uid}:")
    if back: A(f"s_sub_u32 {s(sP)}, {s(sP)}, L_pc_{uid}-{label}"); A(f"s_subb_u32 {s(sP+1)}, {s(sP+1)}, 0")
    else: A(f"s_add_u32 {s(sP)}, {s(sP)}, {label}-L_pc_{uid}"); A(f"s_addc_u32 {s(sP+1)}, {s(sP+1)}, 0")
    A(f"s_mov_b32 {s(sP+2)}, L_code_end-{label}"); A(f"s_mov_b32 {s(sP+3)}, 0x00020000")
    A(f"v_lshlrev_b32 {v(vA)}, 7, {v(vL)}")
    for k in range(n):
        if k: A(f"v_add_u32 {v(vA)}, 8192, {v(vA)}")
        A(f"buffer_load_dword {v(vD)}, {v(vA)}, {s(sP,4)}, 0 offen")

def gen_aux(A, O):
    L = Lgkm(A); ST = Stamper(A, O.stamps)
    ST()
    sX, sA, sW, sE, sT, sKH = 50, 30, 31, 28, 29, 44
    A("s_and_b32 s50, s2, 7"); A("s_lshl_b32 s30, s50, 4"); A("s_add_u32 s30, s30, s3"); A("s_and_b32 s44, s3, 1")
    A("s_cmp_ge_u32 s3, 3"); A("s_addc_u32 s38, s3, 0"); A("s_cmp_ge_u32 s3, 10"); A("s_addc_u32 s38, s38, 0")
    A("s_cmp_eq_u32 s3, 14"); A("s_cselect_b32 s38, 3, s38"); A("s_cmp_eq_u32 s3, 15"); A("s_cselect_b32 s38, 11, s38")
    A(f"v_and_b32 {v(vL)}, 63, v0"); A(f"v_and_b32 {v(vI)}, 15, v0"); A(f"v_bfe_u32 {v(vG)}, v0, 4, 2")
    A("v_lshrrev_b32 v29, 6, v0"); A("v_readfirstlane_b32 s31, v29")
    A(f"v_lshlrev_b32 v28, 4, {v(vL)}")
    A("s_lshl_b32 s32, s30, 15"); A("v_lshlrev_b32 v30, 13, v29"); A("v_add3_u32 v30, v30, v28, s32")
    A(f"v_mov_b32 v22, {CTL}"); A("v_mov_b32 v23, 1")
    A("s_cmp_ge_u32 s31, 4"); A("s_cbranch_scc1 L_aux_sinit")
    def g_addresses():
        if O.wd1 < 28: A("v_mov_b32 v246, 0")
        A(f"v_and_b32 v242, 7, {v(vL)}"); A(f"v_lshlrev_b32 v243, 2, v242"); A(f"v_add_u32 v243, {CTL+192}, v243")
        A(f"v_bfe_u32 v241, {v(vL)}, 3, 2"); A("v_mul_u32_u24 v241, 32784, v241")
        A(f"v_lshrrev_b32 v240, 5, {v(vL)}"); A("v_lshl_add_u32 v241, v240, 12, v241")
        A("s_lshr_b32 s48, s31, 2"); A("s_lshl_b32 s48, s48, 10"); A("s_and_b32 s49, s31, 3"); A("s_lshl_b32 s49, s49, 4"); A("s_add_u32 s48, s48, s49")
        A(f"s_add_u32 s48, s48, {PART}"); A("v_add_u32 v241, s48, v241")
        A("s_lshr_b32 s49, s3, 1"); A("s_cmp_eq_u32 s49, 6"); A(f"s_movk_i32 s48, {14336-6*2048}"); A(f"s_cselect_b32 s49, s48, {14336+2048}")
        A("v_mul_u32_u24 v244, s49, v240"); A("v_lshl_add_u32 v244, v242, 4, v244")
        A(f"v_bfe_u32 v240, {v(vL)}, 3, 1"); A("v_lshl_add_u32 v244, v240, 10, v244")
        A("s_mul_i32 s88, s50, 57344"); A(f"s_add_u32 s88, s88, {WS_G}")
        A("s_mul_i32 s48, s44, 28672"); A("s_lshr_b32 s49, s3, 1"); A("s_lshl_b32 s49, s49, 11"); A("s_add_u32 s48, s48, s49")
        A("s_lshl_b32 s49, s31, 7"); A("s_add_u32 s48, s48, s49"); A("s_add_u32 s48, s48, s88"); A("v_add_u32 v244, s48, v244")
        A("v_lshl_add_u32 v242, v242, 6, v241")
        for k in range(4): A(f"s_bfe_u32 {s(84+k)}, {s(sT)}, {hex(8*k | (8 << 16))}")
        A("v_mov_b32 v245, 0xffffff00")
        A("v_cmp_eq_u32 s[90:91], 1, v240")
    if O.prio & 1: A("s_setprio 2")
    A("s_mov_b32 s33, 4096")
    X, W = 32, 64
    A("s_waitcnt lgkmcnt(0)")
    A("s_load_dword s28, s[12:13], 0")
    srd_fin(A, 4, "x"); srd_fin(A, 8, "wr")
    for k in range(8): A(f"buffer_load_dwordx4 {v(X+4*k,4)}, v30, s[4:7], {'0' if k < 4 else 's33'} offen offset:{1024*(k&3)} nt")
    for k in range(2): A(f"buffer_load_dwordx4 {v(W+4*k,4)}, v28, s[8:11], 0 offen offset:{1024*k}")
    srd_fin(A, 12, "ws", size=WS_SIZE); srd_fin(A, 24, "wd")
    A("s_barrier")
    A(f"v_lshlrev_b32 v12, 4, v0"); A(f"v_add_u32 v12, {WS_STATS}, v12")
    RI = 88
    A("v_lshlrev_b32 v13, 3, v0"); A("v_sub_u32 v13, 0x800, v13")
    roff = list(range(8))
    for k in range(8): A(f"v_subrev_u32 {v(RI+k)}, {roff[k]}, v13")
    A("s_mov_b32 s40, 4096"); A("s_mov_b32 s41, 8192"); A("s_mov_b32 s42, 12288"); A(f"s_mov_b32 s45, {MASKHI}")
    A("v_lshrrev_b32 v24, 4, v0"); A("v_lshl_add_u32 v24, v24, 2, v22")
    A(f"v_lshl_add_u32 v25, {v(vI)}, 2, v22")
    A(f"v_and_b32 v26, 31, {v(vL)}"); A("v_lshl_add_u32 v26, v26, 2, v22")
    A(f"v_lshrrev_b32 v27, 5, {v(vL)}"); A("v_lshl_add_u32 v27, v27, 6, v22")
    A("s_lshl_b32 s47, s31, 5"); A(f"s_add_u32 s47, s47, {CTL+64}")
    A(f"v_lshl_add_u32 v31, {v(vL)}, 2, s47")
    A("s_lshl_b32 s32, s30, 5"); A(f"s_add_u32 s32, s32, {WS_STATS}")
    A(f"v_bfe_u32 v11, {v(vL)}, 1, 2"); A("v_lshlrev_b32 v11, 12, v11"); A(f"v_and_b32 v10, 1, {v(vL)}"); A("v_lshl_add_u32 v11, v10, 4, v11")
    A("v_add_u32 v11, s32, v11")
    A("s_and_b32 s32, s31, 1"); A("s_lshl_b32 s32, s32, 6"); A("s_lshr_b32 s33, s31, 1"); A("s_lshl_b32 s33, s33, 4")
    A("s_add_u32 s32, s32, s33"); A(f"s_add_u32 s32, s32, {CTL+320}")
    A(f"v_lshlrev_b32 v10, 5, {v(vG)}"); A("v_add_u32 v10, s32, v10")
    A(f"v_lshl_add_u32 v9, {v(vL)}, 4, v22")
    A("s_mov_b32 s33, 0x3f803f80")
    S1, S2, S3, SW = 72, 76, 80, 84
    A("s_waitcnt vmcnt(2)")
    if O.n0 < 32 and not O.gate_pub: A("s_mov_b64 exec, 1"); A("ds_add_u32 v22, v23 offset:260"); A("s_mov_b64 exec, -1")
    ST()
    def dot(d, x, y, first):
        A(f"v_dot2_f32_bf16 {v(d)}, {x}, {v(y)}, 0" if first else f"v_dot2c_f32_bf16 {v(d)}, {x}, {v(y)}")
    for k in range(8):
        for r in range(4):
            dot(S1 + r, "s33", X + 8 * r + k, k == 0); dot(S2 + r, v(X + 8 * r + k), X + 8 * r + k, k == 0)
    A("s_waitcnt vmcnt(0)")
    for k in range(8):
        for r in range(4): dot(S3 + r, v(W + k), X + 8 * r + k, k == 0)
        dot(SW, "s33", W + k, k == 0)
    A(f"v_mov_b32 {v(SW+1)}, {v(SW)}")
    pairs = [(q + r, q + r + 1) for q in (S1, S2, S3) for r in (0, 2)] + [(SW, SW + 1)]
    for p, q in pairs: A(f"v_permlane32_swap_b32 {v(p)}, {v(q)}")
    for p, q in pairs: A(f"v_add_f32 {v(p)}, {v(p)}, {v(q)}")
    A(f"v_mov_b32 {v(SW+2)}, {v(SW)}")
    R4 = (S1, S2, S3, SW)
    for p in R4: A(f"v_permlane16_swap_b32 {v(p)}, {v(p+2)}")
    for p in R4: A(f"v_add_f32 {v(p)}, {v(p)}, {v(p+2)}")
    for n in (8, 4, 2, 1):
        for p in R4: A(dpp("v_add_f32", p, p, p, f"row_ror:{n}"))
    MEAN, VAR, T, MB, RS = 42, 43, 44, 45, 46
    A(f"v_mul_f32 {v(MEAN)}, {f32bits(1/1024)}, {v(S1)}")
    A(f"v_mul_f32 {v(VAR)}, {f32bits(1/1024)}, {v(S2)}")
    A(f"v_fma_f32 {v(VAR)}, -{v(MEAN)}, {v(MEAN)}, {v(VAR)}")
    A(f"v_max_f32 {v(VAR)}, 0, {v(VAR)}")
    A(f"v_cvt_pk_bf16_f32 {v(MEAN)}, {v(MEAN)}, {v(VAR)}")
    A(f"v_and_b32 {v(VAR)}, {MASKHI}, {v(MEAN)}")
    A(f"v_lshlrev_b32 {v(MB)}, 16, {v(MEAN)}")
    A(f"v_add_f32 {v(VAR)}, {f32bits(1e-5)}, {v(VAR)}")
    A(f"v_cvt_pk_bf16_f32 {v(VAR)}, {v(VAR)}, {v(VAR)}")
    A(f"v_and_b32 {v(VAR)}, {MASKHI}, {v(VAR)}")
    A(f"v_sqrt_f32 {v(VAR)}, {v(VAR)}")
    A(f"v_fma_f32 {v(T)}, -{v(MB)}, {v(SW)}, {v(S3)}")
    A(f"v_cvt_pk_bf16_f32 v60, {v(MB)}, {v(VAR)}")
    A(f"v_and_b32 {v(VAR)}, {MASKHI}, v60")
    A(f"v_rcp_f32 {v(RS)}, {v(VAR)}")
    A("v_mov_b32 v61, v60")
    A("s_waitcnt lgkmcnt(0)")
    tag_from_epoch(A, sE, sT)
    A(f"v_mul_f32 {v(T)}, {v(T)}, {v(RS)}")
    A(f"v_cvt_pk_bf16_f32 v64, {v(T)}, {v(T)}")
    A("v_ashrrev_i32 v65, 31, v64"); A("v_or_b32 v65, 0x80000000, v65"); A("v_xor_b32 v64, v64, v65")
    A("v_permlane32_swap_b32 v60, v61")
    A("v_lshrrev_b32 v64, 16, v64"); A(f"v_mov_b32 v63, {s(sT)}"); A("v_mov_b32 v65, v64")
    A("v_permlane32_swap_b32 v64, v65")
    A("v_lshl_or_b32 v62, v65, 16, v64")
    A("s_mov_b64 exec, 0x10001")
    if True:
        A("ds_write_b128 v10, v[60:63]")
        A("s_mov_b64 exec, 1"); A("ds_add_rtn_u32 v13, v22, v23 offset:264")
        A("s_mov_b64 exec, 0xff"); A("ds_read_b128 v[60:63], v9 offset:320")
        A("s_waitcnt lgkmcnt(0)")
        A("v_readfirstlane_b32 s32, v13"); A("s_cmp_lg_u32 s32, 3"); A("s_cbranch_scc1 L_aux_nopub")
    A("buffer_store_dwordx4 v[60:63], v11, s[12:15], 0 offen sc1")
    if O.gate_pub: A("v_mov_b32 v13, 4"); A("ds_write_b32 v22, v13 offset:260")
    A("L_aux_nopub:")
    A("s_mov_b64 exec, -1")
    ST()
    GR, KY = 64, 80
    g_addresses()
    A("s_lshl_b32 s39, s50, 7"); A(f"s_add_u32 s39, s39, {WS_SEL}")
    A("s_cmp_lg_u32 s3, 14"); A("s_cbranch_scc1 L_aux_cons")
    A("v_lshlrev_b32 v9, 5, v0")
    if O.aux_first_sleep: A(f"s_sleep {O.aux_first_sleep}")
    so = ["0", "s40", "s41", "s42"]
    poll_masked(A, "aux", [f"buffer_load_dwordx4 {v(GR+4*k,4)}, v12, s[12:15], {so[k]} offen sc1" for k in range(4)],
                [GR + 4 * k + 3 for k in range(4)], sT, 43, 52, O.poll_sleep)
    ST()
    for k in range(4): A(f"ds_write_b64 v9, {v(GR+4*k,2)} offset:{8*k}")
    for k in range(4):
        A(f"v_lshl_or_b32 {v(KY+2*k)}, {v(GR+4*k+2)}, 16, {v(RI+2*k)}")
        A(f"v_and_or_b32 {v(KY+2*k+1)}, {v(GR+4*k+2)}, s45, {v(RI+2*k+1)}")
    M1, M2, M3 = 14, 15, 16
    A(f"v_max3_u32 v17, {v(KY)}, {v(KY+1)}, {v(KY+2)}"); A(f"v_max3_u32 v18, {v(KY+3)}, {v(KY+4)}, {v(KY+5)}")
    A(f"v_max3_u32 v17, v17, {v(KY+6)}, {v(KY+7)}"); A("v_max_u32 v17, v17, v18")
    net = [f"v_max_u32 {v(M1)}, {v(KY)}, {v(KY+1)}", f"v_min_u32 {v(M2)}, {v(KY)}, {v(KY+1)}", f"v_mov_b32 {v(M3)}, 0"]
    for k in range(2, 8):
        net += [f"v_med3_u32 {v(M3)}, {v(M2)}, {v(M3)}, {v(KY+k)}", f"v_med3_u32 {v(M2)}, {v(M1)}, {v(M2)}, {v(KY+k)}",
                f"v_max_u32 {v(M1)}, {v(M1)}, {v(KY+k)}"]
    for n in (8, 4, 2, 1):
        A(net.pop(0)); A(net.pop(0)); A(dpp("v_max_u32", 17, 17, 17, f"row_ror:{n}"))
    A("ds_write_b32 v24, v17")
    A("ds_read_b32 v17, v25")
    A.ext(net)
    A("v_mov_b32 v19, 0"); A("s_mov_b32 s43, 0")
    A("L_aux_gm:")
    A("s_waitcnt lgkmcnt(0)")
    A("v_cmp_eq_u32 vcc, 0, v17"); A("s_cbranch_vccz L_aux_gmok")
    A("ds_read_b32 v17, v25")
    bounded(A, 43, "L_aux_gmok", SPIN_MAX * 8); A("s_branch L_aux_gm")
    A("L_aux_gmok:")
    A("s_waitcnt lgkmcnt(0)")
    for n in range(1, 16):
        A(f"v_sub_co_u32_dpp v20, vcc, v17, v17 row_ror:{n} row_mask:0xf bank_mask:0xf")
        A.raw("v_addc_co_u32 v19, vcc, 0, v19, vcc ; nohaz")
    A("v_cmp_eq_u32 vcc, 8, v19"); A("s_ff1_i32_b64 s46, vcc"); A("v_readlane_b32 s46, v17, s46")
    A("v_mov_b32 v18, 1")
    A(f"v_cmp_le_u32 s[48:49], s46, {v(M1)}"); A(f"v_cmp_le_u32 s[52:53], s46, {v(M2)}"); A(f"v_cmp_le_u32 s[54:55], s46, {v(M3)}")
    A("s_bcnt1_i32_b64 s46, s[48:49]"); A("s_bcnt1_i32_b64 s56, s[52:53]")
    A("v_mbcnt_lo_u32_b32 v20, s48, 0"); A("v_mbcnt_lo_u32_b32 v21, s52, 0")
    A("v_mbcnt_hi_u32_b32 v20, s49, v20"); A("v_mbcnt_hi_u32_b32 v21, s53, v21")
    A("s_add_u32 s56, s56, s46"); A("s_lshl_b32 s46, s46, 2"); A("s_add_u32 s46, s46, s47")
    A("v_lshl_add_u32 v20, v20, 2, s47"); A("v_lshl_add_u32 v21, v21, 2, s46")
    A("s_cmp_lg_u64 s[54:55], 0"); A("s_cselect_b32 s56, 9, s56"); A("s_cmp_gt_u32 s56, 8"); A("s_cbranch_scc0 L_aux_fit")
    A("s_mov_b64 s[48:49], 0"); A("s_mov_b64 s[52:53], 0"); A("s_mov_b32 s56, 0"); A("v_mov_b32 v18, 2")
    A("L_aux_fit:")
    A("s_lshl_b32 s56, 0xff, s56"); A("s_and_b32 s56, s56, 0xff"); A("s_mov_b32 s57, 0")
    A("s_mov_b64 exec, s[48:49]"); A(f"ds_write_b32 v20, {v(M1)}")
    A("s_mov_b64 exec, s[52:53]"); A(f"ds_write_b32 v21, {v(M2)}")
    A("s_mov_b64 exec, s[56:57]"); A("ds_write_b32 v31, v18")
    A("s_mov_b64 exec, -1")
    LS = 64
    A("s_mov_b32 s43, 0"); A("v_mov_b32 v20, 0")
    A("L_aux_ls:")
    A("ds_read_b32 v17, v26 offset:64")
    for k in range(4): A(f"ds_read_b128 {v(LS+4*k,4)}, v27 offset:{64+16*k}")
    A("s_waitcnt lgkmcnt(4)")
    A("v_cmp_eq_u32 vcc, 0, v17"); A("s_cbranch_vccz L_aux_lsok")
    A("s_waitcnt lgkmcnt(0)")
    bounded(A, 43, "L_aux_lsok", SPIN_MAX * 8); A("s_branch L_aux_ls")
    A("L_aux_lsok:")
    A("v_cmp_eq_u32 vcc, 2, v17"); A("s_cbranch_vccnz L_aux_slow")
    A("s_cmp_ge_u32 s31, 2"); A("s_cbranch_scc1 L_aux_wd")
    for k in range(16):
        if k % 4 == 0: A(f"s_waitcnt lgkmcnt({3-k//4})")
        A(f"v_cmp_gt_u32 vcc, {v(LS+k)}, v17")
        A.raw("v_addc_co_u32 v20, vcc, 0, v20, vcc ; nohaz")
    A("v_mov_b32 v21, v20"); A("v_permlane32_swap_b32 v20, v21"); A("v_add_u32 v20, v20, v21")
    A("L_aux_sel:")
    A("v_and_b32 v60, 0xfff, v17"); A("v_sub_u32 v60, 0x800, v60")
    A("v_cmp_gt_u32 vcc, 8, v20"); A("s_mov_b32 vcc_hi, 0")
    A("s_cmp_eq_u32 s31, 1"); A("s_cbranch_scc1 L_aux_pf")
    A("v_lshlrev_b32 v15, 2, v60"); A("v_min_u32 v15, 8188, v15"); A("ds_read_b32 v62, v15")
    A(f"v_and_b32 v14, {MASKHI}, v17"); A("v_ashrrev_i32 v15, 31, v14"); A("v_not_b32 v15, v15"); A("v_or_b32 v15, 0x80000000, v15")
    A("v_xor_b32 v14, v14, v15"); A(f"v_and_b32 v14, {MASKHI}, v14")
    A(f"v_mul_f32 v14, {f32bits(-LOG2E)}, v14"); A("v_exp_f32 v14, v14"); A(f"v_mov_b32 v63, {s(sT)}"); A("v_add_f32 v14, 1.0, v14"); A("v_rcp_f32 v14, v14")
    A("v_lshl_add_u32 v21, v20, 4, s39")
    A("v_cvt_pk_bf16_f32 v14, v14, v14"); A(f"v_and_b32 v61, {MASKHI}, v14")
    A("s_mov_b64 exec, vcc")
    A("s_waitcnt lgkmcnt(0)")
    A("buffer_store_dwordx4 v[60:63], v21, s[12:15], 0 offen sc1")
    A("s_mov_b64 exec, 1"); A("ds_add_u32 v22, v23 offset:268"); A("s_mov_b64 exec, -1")
    ST(); ST()
    A("s_branch L_aux_b4")
    A("L_aux_pf:")
    A("v_lshl_add_u32 v21, v20, 2, v22")
    A("s_mov_b64 exec, vcc"); A("ds_write_b32 v21, v60 offset:224"); A("s_mov_b64 exec, -1")
    A(f"v_lshl_add_u32 v21, {v(vG)}, 2, v22"); A("ds_read2_b32 v[14:15], v21 offset0:56 offset1:60")
    A(f"v_lshlrev_b32 v21, 7, {v(vI)}")
    A("s_waitcnt lgkmcnt(0)")
    A("v_lshl_add_u32 v14, v14, 11, v21"); A("v_lshl_add_u32 v15, v15, 11, v21")
    A("buffer_load_dword v16, v14, s[4:7], 0 offen"); A("buffer_load_dword v16, v15, s[4:7], 0 offen")
    A("s_mov_b64 exec, 1"); A("ds_add_u32 v22, v23 offset:268"); A("s_mov_b64 exec, -1")
    A("s_waitcnt vmcnt(0)")
    A("s_branch L_aux_b4")
    A("L_aux_cons:")
    A("s_cmp_ge_u32 s31, 2"); A("s_cbranch_scc1 L_aux_wd")
    A("s_cmp_ge_u32 s3, 14"); A("s_cbranch_scc1 L_aux_nox")
    SE = 60
    A(f"v_and_b32 v14, 7, {v(vL)}"); A("v_lshl_add_u32 v21, v14, 4, s39"); A("v_lshl_add_u32 v15, v14, 2, v22")
    A(f"s_mul_i32 s46, s31, {4*XST}"); A(f"s_add_u32 s46, s46, {XS}"); A("s_lshl_b32 s47, s44, 10"); A("s_lshl_b32 s49, s31, 2")
    if O.sel_first_sleep: A(f"s_sleep {O.sel_first_sleep}")
    A("s_mov_b64 exec, 0xff"); A("s_mov_b32 s43, 0")
    A("L_aux_sp:")
    A(f"buffer_load_dwordx4 {v(SE,4)}, v21, s[12:15], 0 offen sc1")
    A("s_waitcnt vmcnt(0)")
    A(f"v_cmp_ne_u32 vcc, {s(sT)}, {v(SE+3)}"); A("s_cbranch_vccz L_aux_spok")
    bounded(A, 43, "L_aux_spok")
    if O.poll_sleep: A(f"s_sleep {O.poll_sleep}")
    A("s_branch L_aux_sp")
    A("L_aux_spok:")
    A(f"ds_write_b32 v15, {v(SE+2)} offset:192")
    A("s_mov_b64 exec, -1")
    ST.n -= 3; ST()
    for t in range(4):
        A(f"v_readlane_b32 {s(52+t)}, {v(SE)}, s49")
        if t < 3: A("s_add_u32 s49, s49, 1")
    for t in range(4):
        A(f"s_lshl_b32 s48, {s(52+t)}, 11"); A("s_add_u32 s48, s48, s47")
        A(f"s_add_u32 m0, s46, {XST*t}")
        A(f"buffer_load_dwordx4 v28, s[4:7], s48 offen lds")
    A("s_mov_b64 exec, 1"); A("ds_add_u32 v22, v23 offset:268")
    ST()
    A("s_waitcnt vmcnt(0)")
    A("ds_add_u32 v22, v23 offset:272"); A("s_mov_b64 exec, -1")
    ST()
    A("s_branch L_aux_b4")
    A("L_aux_nox:")
    A("s_mov_b64 exec, 1"); A("ds_add_u32 v22, v23 offset:268"); A("s_mov_b64 exec, -1")
    A("s_branch L_aux_b4")
    A("L_aux_wd:")
    WD = 128
    A("s_mul_i32 s46, s50, 448"); A("s_mul_i32 s47, s31, 224"); A("s_add_u32 s46, s46, s47"); A("s_sub_u32 s46, s46, 448")
    A(f"v_lshrrev_b32 v14, 3, {v(vL)}"); A("v_add_u32 v14, s46, v14"); A("v_lshlrev_b32 v14, 11, v14")
    A(f"v_and_b32 v15, 7, {v(vL)}"); A("v_lshl_add_u32 v14, v15, 4, v14"); A("s_lshl_b32 s46, s38, 7"); A("v_add_u32 v14, s46, v14")
    if O.prio & 1: A("s_setprio 0")
    if O.wd_gate: lds_count_wait(A, "wd", 22, 268, 2, 18, 46, 43)
    else: A("s_waitcnt lgkmcnt(0)")
    A("v_mov_b32 v246, v14")
    for i in range(O.wd1):
        A(f"s_mov_b32 s46, {16384*i}")
        A(f"buffer_load_dwordx4 {v(WD+4*i,4)}, v14, s[24:27], s46 offen nt")
    A("s_branch L_aux_b4")
    A("L_aux_sinit:")
    A("v_mov_b32 v96, 0"); A("v_mov_b32 v97, 0"); A(f"v_lshl_add_u32 v98, {v(vL)}, 3, v22")
    A("ds_write_b64 v98, v[96:97]")
    A("v_mov_b32 v96, 0x3f803f80"); A("v_and_b32 v98, 255, v0"); A(f"v_lshlrev_b32 v98, 2, v98"); A(f"v_add_u32 v98, {XS+8*XST}, v98")
    A("ds_write_b32 v98, v96")
    A(f"v_bfe_u32 v96, {v(vL)}, 3, 2"); A(f"v_lshrrev_b32 v97, 5, {v(vL)}"); A("v_lshl_add_u32 v96, v97, 3, v96")
    A("v_mul_u32_u24 v96, 7168, v96")
    A(f"v_lshlrev_b32 v98, 1, {v(vG)}"); A(f"v_and_b32 v94, 7, {v(vL)}"); A("v_xor_b32 v98, v98, v94")
    A("s_mul_i32 s51, s50, 896"); A("s_lshr_b32 s33, s3, 1"); A("s_add_u32 s37, s33, 1"); A("s_cmp_eq_u32 s37, 7"); A("s_cselect_b32 s37, 0, s37")
    A("s_lshl_b32 s33, s33, 7"); A("s_lshl_b32 s37, s37, 7"); A("s_add_u32 s33, s33, s51"); A("s_add_u32 s37, s37, s51")
    A("v_lshl_add_u32 v96, v98, 4, v96"); A("v_add_u32 v97, s37, v96"); A("v_add_u32 v96, s33, v96")
    vDMA = 96
    A("s_sub_u32 s36, s31, 4"); A("s_lshl_b32 s34, s44, 2"); A("s_add_u32 s34, s34, s36"); A(f"s_mul_i32 s34, s34, {128*7168}")
    A("s_lshl_b32 s36, s36, 15")
    A("s_waitcnt lgkmcnt(0)")
    A("s_load_dword s28, s[12:13], 0")
    srd_fin(A, 12, "ws", size=WS_SIZE); srd_fin(A, 16, "wg"); srd_fin(A, 20, "wu")
    A("s_barrier")
    A("s_waitcnt lgkmcnt(0)")
    tag_from_epoch(A, sE, sT)
    ST.n = 1
    A("s_cmp_ge_u32 s3, 14"); A("s_cbranch_scc1 L_aux_idle")
    ST()
    for j in range(32):
        if j == O.n0: lds_count_wait(A, "st", 22, 260, 4, 18, 46, 43, 1)
        ks, mat, h, gh = j >> 3, (j >> 2) & 1, (j >> 1) & 1, j & 1
        A(f"s_add_u32 s35, s34, {(32*ks + 16*gh + 4*h)*7168}")
        A(f"s_add_u32 m0, s36, {16384*mat + 1024*(4*ks+2*h+gh)}")
        if O.exp & 16: A("s_mov_b32 s35, s34")
        A(f"buffer_load_dwordx4 {v(vDMA+mat)}, {s(16+4*mat,4)}, s35 offen{' nt' if O.w_nt else ''} lds")
    ST()
    A(f"v_bfe_u32 v14, {v(vL)}, 2, 3"); A("v_lshrrev_b32 v15, 1, v14"); A("v_lshlrev_b32 v14, 7, v14")
    A(f"v_lshrrev_b32 v13, 5, {v(vL)}"); A("v_lshl_add_u32 v14, v13, 10, v14")
    A(f"v_and_b32 v13, 3, {v(vL)}"); A("v_lshl_add_u32 v14, v13, 3, v14"); A("v_add_u32 v14, s36, v14")
    for ct in range(4):
        A(f"v_xor_b32 v13, {ct}, v15"); A(f"v_lshl_add_u32 {v(24+ct)}, v13, 5, v14")
    A(f"v_min_u32 v20, 8, {v(vI)}"); A(f"v_mul_u32_u24 v20, {XST}, v20"); A(f"v_lshl_add_u32 v20, {v(vG)}, 4, v20")
    A("s_lshr_b32 s35, s36, 7"); A(f"s_add_u32 s35, s35, {XS}"); A("v_add_u32 v20, s35, v20")
    A(f"v_lshlrev_b32 v19, 6, {v(vI)}"); A(f"v_lshl_add_u32 v19, {v(vG)}, 4, v19")
    A("s_lshr_b32 s35, s36, 11"); A("s_add_u32 s35, s35, s36"); A(f"s_add_u32 s35, s35, {PART}"); A("v_add_u32 v19, s35, v19")
    g_addresses()
    XB_, AW, DD = 32, 64, 192
    aw = lambda t, ks: AW + 4 * (ks * 8 + t)
    for ks in range(4):
        A(f"s_waitcnt vmcnt({8*(3-ks)})")
        for t in range(8):
            for h in range(2):
                L.issue(f"ds_read_b64_tr_b16 {v(aw(t,ks)+2*h,2)}, {v(24+(t&3))} offset:{16384*(t>>2)+4096*ks+2048*h}", ("aw", ks, t))
    ST(L); ST()
    lds_count_wait(A, "xs", 22, 272, 2, 18, 46, 43)
    L.q = []
    ST()
    for ks in range(4): L.issue(f"ds_read_b128 {v(XB_+4*ks,4)}, v20 offset:{64*ks}", ("x", ks))
    for t in range(8):
        for ks in range(4):
            L.need(("x", ks))
            A(f"v_mfma_f32_16x16x32_bf16 {v(DD+4*t,4)}, {v(aw(t,ks),4)}, {v(XB_+4*ks,4)}, {v(DD+4*t,4) if ks else 0}")
            if t >= 2 and ks == 3: L.issue(f"ds_write_b128 v19, {v(DD+4*(t-2),4)} offset:{1024*(t-2)}")
    for t in (6, 7): L.issue(f"ds_write_b128 v19, {v(DD+4*t,4)} offset:{1024*t}")
    L.drain()
    A("s_branch L_aux_b4")
    A("L_aux_idle:")
    ST.n = 1
    for _ in range(5): ST()
    g_addresses()
    A("L_aux_b4:")
    ST()
    A("s_barrier")
    A("s_cmp_ge_u32 s3, 14"); A("s_cbranch_scc1 L_aux_noh")
    P, MM = 64, 24
    L.issue(f"ds_read_b32 {v(MM)}, v243")
    L.issue(f"ds_read_b128 {v(P,4)}, v242"); L.issue(f"ds_read_b128 {v(P+8,4)}, v241 offset:512")
    L.issue(f"ds_read_b128 {v(P+4,4)}, v242 offset:2048"); L.issue(f"ds_read_b128 {v(P+12,4)}, v241 offset:2560")
    L.drain()
    A(f"v_and_b32 {v(MM+1)}, {MASKHI}, {v(MM)}"); A(f"v_lshlrev_b32 {v(MM)}, 16, {v(MM)}"); A(f"v_rcp_f32 {v(MM+1)}, {v(MM+1)}")
    for q in range(4):
        A(f"v_pk_fma_f32 {v(P+2*q,2)}, {v(P+8+2*q,2)}, {v(MM,2)}, {v(P+2*q,2)} op_sel:[0,0,0] op_sel_hi:[1,0,1] neg_lo:[1,0,0] neg_hi:[1,0,0]")
    for k in range(4): A(f"v_cndmask_b32 {v(P+8+k)}, {v(P+4+k)}, {v(P+k)}, s[90:91]")
    for k in range(4): A(f"v_cndmask_b32 {v(P+k)}, {v(P+k)}, {v(P+4+k)}, s[90:91]")
    for k in range(4): A(dpp("v_add_f32", P+k, P+8+k, P+k, "row_ror:8"))
    for k in range(4): A(f"v_mov_b32 {v(P+4+k)}, {v(P+k)}")
    for k in range(4): A(f"v_permlane16_swap_b32 {v(P+k)}, {v(P+4+k)}")
    for q in range(2): A(f"v_pk_add_f32 {v(P+2*q,2)}, {v(P+2*q,2)}, {v(P+4+2*q,2)}")
    for q in range(2): A(f"v_pk_mul_f32 {v(P+2*q,2)}, {v(P+2*q,2)}, {v(MM,2)} op_sel:[0,1] op_sel_hi:[1,1]")
    for k in range(4): A(f"v_and_or_b32 {v(P+k)}, {v(P+k)}, v245, {s(84+k)}")
    A("s_mov_b32 exec_lo, 0xffff"); A("s_mov_b32 exec_hi, 0xffff")
    A(f"buffer_store_dwordx4 {v(P,4)}, v244, s[12:15], 0 offen sc1")
    A("s_mov_b64 exec, -1")
    A("L_aux_noh:")
    ST()
    A("s_sub_u32 s47, s31, 2"); A("s_cmp_ge_u32 s47, 2"); A("s_cbranch_scc1 L_aux_nowd")
    A(f"v_and_b32 v14, 7, {v(vL)}"); A("v_mul_u32_u24 v15, 86, v14"); A("v_lshrrev_b32 v15, 8, v15")
    A(f"v_mul_u32_u24 v14, {WDST}, v14"); A(f"v_mul_u32_u24 v15, {32768-3*WDST}, v15"); A("v_add_u32 v14, v14, v15")
    A(f"v_lshrrev_b32 v15, 3, {v(vL)}"); A("v_lshl_add_u32 v14, v15, 4, v14")
    A("s_mul_i32 s46, s47, 3584"); A("v_add_u32 v14, s46, v14")
    if O.wd1 < 28:
        for i in range(O.wd1, 28):
            A(f"s_mov_b32 s46, {16384*i}")
            A(f"buffer_load_dwordx4 {v(WD+4*i,4)}, v246, s[24:27], s46 offen nt")
        A("s_waitcnt vmcnt(0)")
    else:
        A("s_waitcnt vmcnt(1)")
        A("s_cmp_lt_u32 s3, 14"); A("s_cbranch_scc1 L_aux_wd1"); A("s_waitcnt vmcnt(0)"); A("L_aux_wd1:")
    for i in range(28): L.issue(f"ds_write_b128 v14, {v(WD+4*i,4)} offset:{128*i}")
    L.drain()
    A("L_aux_nowd:")
    A(f"v_lshlrev_b32 v10, 7, {v(vG)}")
    A(f"v_bfe_u32 v11, {v(vL)}, 1, 1"); A("v_lshl_add_u32 v10, v11, 6, v10")
    A(f"v_bfe_u32 v11, {v(vL)}, 2, 2"); A("v_lshl_add_u32 v10, v11, 4, v10")
    A(f"v_and_b32 v11, 1, {v(vL)}"); A("v_lshl_add_u32 v10, v11, 3, v10")
    A("s_mul_i32 s46, s31, 86"); A("s_lshr_b32 s46, s46, 8"); A(f"s_mul_i32 s46, s46, {32768-3*WDST}")
    A(f"s_mul_i32 s47, s31, {WDST}"); A("s_add_u32 s46, s46, s47"); A("v_add_u32 v10, s46, v10")
    A("v_lshl_add_u32 v14, v0, 4, s88")
    A(f"v_lshlrev_b32 v15, 3, {v(vL)}"); A(f"v_add_u32 v15, {XS}, v15"); A("s_lshl_b32 s47, s31, 9"); A("v_add_u32 v16, s47, v15")
    for k in range(1, 8): A(f"s_mov_b32 {s(59+k)}, {7168*k}")
    A(f"s_mov_b32 s58, {f32bits(-LOG2E)}"); A("s_mov_b32 s43, 0"); A("v_mov_b32 v17, 0xff")
    ST()
    A("s_barrier")
    ST()
    AWD, HB, GG = 64, 96, 128
    for i in range(14): L.issue(f"ds_read_b64_tr_b16 {v(AWD+2*i,2)}, v10 offset:{512*i}")
    A("s_cmp_eq_u32 s31, 7"); A("s_cbranch_scc1 L_aux_nohp")
    gld = [f"buffer_load_dwordx4 {v(GG+4*k,4)}, v14, s[12:15], {'0' if k == 0 else s(59+k)} offen sc1" for k in range(8)]
    if O.g_first_sleep: A(f"s_sleep {O.g_first_sleep}")
    for x in gld: A(x)
    A("L_aux_gp:")
    A("s_waitcnt vmcnt(0)")
    for k in range(4):
        for a_ in range(4): A(f"v_bitop3_b32 {v(32+4*a_+k)}, {v(GG+8*a_+k)}, {v(GG+8*a_+4+k)}, {s(84+k)} bitop3:0x7e")
    for a_ in range(4): A(f"v_or3_b32 {v(32+4*a_)}, {v(32+4*a_)}, {v(33+4*a_)}, {v(34+4*a_)}")
    for a_ in range(4): A(f"v_bitop3_b32 {v(32+4*a_)}, {v(32+4*a_)}, {v(35+4*a_)}, v17 bitop3:0xa8")
    for a_ in range(4): A(f"v_cmp_ne_u32 {s(4+2*a_,2)}, 0, {v(32+4*a_)}")
    A("s_or_b64 vcc, s[4:5], s[6:7]"); A("s_or_b64 s[32:33], s[8:9], s[10:11]"); A("s_or_b64 vcc, vcc, s[32:33]"); A("s_cbranch_scc0 L_aux_gok")
    bounded(A, 43, "L_aux_gok")
    if O.poll_sleep: A(f"s_sleep {O.poll_sleep}")
    for a_ in range(4):
        A(f"s_mov_b64 exec, {s(4+2*a_,2)}"); A(f"s_cbranch_execz L_aux_gs{a_}")
        A(gld[2*a_]); A(gld[2*a_+1])
        A(f"L_aux_gs{a_}:")
    A("s_mov_b64 exec, -1")
    A("s_branch L_aux_gp")
    A("L_aux_gok:")
    ST()
    gg = lambda j, it: GG + 4 * (2 * j + it)
    for it in range(2):
        for m_ in range(2):
            for q in range(2): A(f"v_pk_add_f32 {v(gg(m_,it)+2*q,2)}, {v(gg(m_,it)+2*q,2)}, {v(gg(m_+2,it)+2*q,2)}")
    for it in range(2):
        for q in range(2): A(f"v_pk_mul_f32 {v(gg(2,it)+2*q,2)}, {v(gg(0,it)+2*q,2)}, s[58:59] op_sel_hi:[1,0]")
    for it in range(2):
        for k in range(4): A(f"v_exp_f32 {v(gg(2,it)+k)}, {v(gg(2,it)+k)}")
        for q in range(2): A(f"v_pk_mul_f32 {v(gg(0,it)+2*q,2)}, {v(gg(0,it)+2*q,2)}, {v(gg(1,it)+2*q,2)}")
    for it in range(2):
        for q in range(2): A(f"v_pk_add_f32 {v(gg(2,it)+2*q,2)}, {v(gg(2,it)+2*q,2)}, 1.0 op_sel_hi:[1,0]")
    for it in range(2):
        for k in range(4): A(f"v_rcp_f32 {v(gg(2,it)+k)}, {v(gg(2,it)+k)}")
    for it in range(2):
        for q in range(2): A(f"v_pk_mul_f32 {v(gg(0,it)+2*q,2)}, {v(gg(0,it)+2*q,2)}, {v(gg(2,it)+2*q,2)}")
        for q in range(2): A(f"v_cvt_pk_bf16_f32 {v(gg(1,it)+q)}, {v(gg(0,it)+2*q)}, {v(gg(0,it)+2*q+1)}")
        A(f"ds_write_b64 v16, {v(gg(1,it),2)} offset:{3584*it}")
    A("L_aux_nohp:")
    A("s_waitcnt lgkmcnt(0)"); L.q = []
    ST()
    A("s_barrier")
    for i in range(14): L.issue(f"ds_read_b64 {v(HB+2*i,2)}, v15 offset:{512*i}", ("hb", i))
    A("s_lshl_b32 s46, s38, 3"); A("s_add_u32 s46, s46, s31"); A("s_lshl_b32 s46, s46, 3"); A("s_add_u32 s46, s46, s50")
    A("s_lshl_b32 s46, s46, 8"); A(f"s_add_u32 s46, s46, {WS_Y}")
    A(f"v_lshlrev_b32 v14, 7, {v(vG)}"); A(f"v_lshl_add_u32 v14, {v(vI)}, 4, v14"); A("v_add_u32 v14, s46, v14")
    DY = 32
    for i in range(7):
        L.need(("hb", 2 * i + 1))
        A(f"v_mfma_f32_16x16x32_bf16 {v(DY,4)}, {v(AWD+4*i,4)}, {v(HB+4*i,4)}, {v(DY,4) if i else 0}")
    for k in range(4): A(f"v_mov_b32_dpp {v(DY+4+k)}, {v(DY+k)} row_ror:8 row_mask:0xf bank_mask:0xf")
    for k in range(4): A(f"v_permlane32_swap_b32 {v(DY+4+k)}, {v(DY+8+k)}")
    for q in range(2): A(f"v_pk_add_f32 {v(DY+2*q,2)}, {v(DY+2*q,2)}, {v(DY+8+2*q,2)}")
    for k in range(4): A(f"v_and_or_b32 {v(DY+k)}, {v(DY+k)}, v245, {s(84+k)}")
    A("s_mov_b64 exec, 0x00ff00ff")
    A(f"buffer_store_dwordx4 {v(DY,4)}, v14, s[12:15], 0 offen sc1")
    A("s_mov_b64 exec, -1")
    ST()
    A("s_lshl_b32 s48, s30, 3"); A("s_add_u32 s48, s48, s31"); A(f"s_cmp_lg_u32 s48, {127*8}"); A("s_cbranch_scc1 L_aux_done")
    A(f"v_lshlrev_b32 v21, 3, {v(vL)}"); A(f"v_add_u32 v21, {WS_ACK}, v21")
    poll(A, "ack", ["buffer_load_dwordx2 v[60:61], v21, s[12:15], 0 offen sc1"], [60, 61], sT, 43, 14, 4)
    A(f"v_mov_b32 v5, {s(sT)}"); A("v_mov_b32 v4, 0"); A("s_mov_b64 exec, 1")
    A("buffer_store_dword v5, v4, s[12:15], 0 offen sc1")
    A("L_aux_done:")
    if O.probe_role == 1: ST.probe(31, "aux", O.probe_j, O.probe_k)
    ST.flush(31, "aux")
    A("s_endpgm")
    A("L_aux_slow:")
    A("s_waitcnt lgkmcnt(0)")
    A("v_lshlrev_b32 v14, 5, v0"); A(f"v_add_u32 v14, {KEYS}, v14")
    A(f"ds_write_b128 v14, {v(KY,4)}"); A(f"ds_write_b128 v14, {v(KY+4,4)} offset:16")
    A("s_waitcnt lgkmcnt(0)")
    A("s_mov_b64 exec, 1"); A("ds_add_u32 v22, v23 offset:256"); A("s_mov_b64 exec, -1")
    lds_count_wait(A, "slow", 22, 256, 4, 18, 46, 43)
    SK = 128
    A(f"v_lshlrev_b32 v14, 4, {v(vL)}"); A(f"v_add_u32 v14, {KEYS}, v14")
    for k in range(8): A(f"ds_read_b128 {v(SK+4*k,4)}, v14 offset:{1024*k}")
    A("s_waitcnt lgkmcnt(0)")
    A("s_cmp_ge_u32 s31, 2"); A("s_cbranch_scc1 L_aux_wd")
    A("s_mov_b32 s46, 0"); A(f"v_mov_b32 v20, {v(vL)}"); A("v_mov_b32 v17, 0")
    A("L_aux_slow2:")
    A(f"v_max3_u32 v14, {v(SK)}, {v(SK+1)}, {v(SK+2)}")
    for k in range(3, 31, 2): A(f"v_max3_u32 v14, v14, {v(SK+k)}, {v(SK+k+1)}")
    A(f"v_max_u32 v14, v14, {v(SK+31)}")
    for n in (8, 4, 2, 1): A(dpp("v_max_u32", 14, 14, 14, f"row_ror:{n}"))
    A("v_mov_b32 v15, v14"); A("v_permlane16_swap_b32 v14, v15"); A("v_max_u32 v14, v14, v15")
    A("v_mov_b32 v15, v14"); A("v_permlane32_swap_b32 v14, v15"); A("v_max_u32 v14, v14, v15")
    A("v_cmp_eq_u32 vcc, s46, v20"); A("v_cndmask_b32 v17, v17, v14, vcc")
    for k in range(32):
        A(f"v_cmp_ne_u32 vcc, v14, {v(SK+k)}"); A(f"v_cndmask_b32 {v(SK+k)}, 0, {v(SK+k)}, vcc")
    A("s_add_u32 s46, s46, 1"); A("s_cmp_lt_u32 s46, 8"); A("s_cbranch_scc1 L_aux_slow2")
    A("s_branch L_aux_sel")

AD_S1, AD_S0, AD_S2, AD_S3, AD_S3A, AD_P, AD_E, AD_D = 160, 161, 162, 163, 164, 165, 168, 169

def table_addresses(A, sTB):
    t = 10
    A(f"v_lshlrev_b32 {v(t)}, 5, {v(vI)}")
    A(f"v_lshl_add_u32 {v(AD_S1)}, {v(vG)}, 9, {v(t)}"); A(f"v_add_u32 {v(AD_S1)}, {s(sTB)}, {v(AD_S1)}"); A(f"v_add_u32 {v(AD_S1)}, {4*(256+16)-4}, {v(AD_S1)}")
    A(f"v_and_b32 {v(t+2)}, 1, {v(vG)}"); A(f"v_lshl_add_u32 {v(AD_S0)}, {v(t+2)}, 4, {v(t)}")
    A(f"v_lshrrev_b32 {v(t+2)}, 1, {v(vG)}"); A(f"v_lshl_add_u32 {v(AD_S0)}, {v(t+2)}, 9, {v(AD_S0)}"); A(f"v_add3_u32 {v(AD_S0)}, {v(AD_S0)}, {s(sTB)}, 64")
    A(f"v_and_b32 {v(t+2)}, 1, {v(vI)}"); A(f"v_lshrrev_b32 {v(t+3)}, 1, {v(vI)}")
    A(f"v_lshlrev_b32 {v(AD_S2)}, 2, {v(t+3)}"); A(f"v_lshl_add_u32 {v(AD_S2)}, {v(vG)}, 6, {v(AD_S2)}")
    A(f"v_mul_u32_u24 {v(t+3)}, 260, {v(t+2)}"); A(f"v_add3_u32 {v(AD_S2)}, {v(AD_S2)}, {v(t+3)}, {s(sTB)}"); A(f"v_add_u32 {v(AD_S2)}, {PB_E-68}, {v(AD_S2)}")
    A(f"v_lshlrev_b32 {v(AD_S3)}, 1, {v(vI)}"); A(f"v_lshl_add_u32 {v(AD_S3)}, {v(vG)}, 7, {v(AD_S3)}")
    A(f"v_lshl_add_u32 {v(AD_S3)}, {v(t+2)}, 2, {v(AD_S3)}"); A(f"v_add_u32 {v(AD_S3)}, {s(sTB)}, {v(AD_S3)}"); A(f"v_add_u32 {v(AD_S3)}, {PB_E+512+256-196}, {v(AD_S3)}")
    A(f"v_mov_b32 {v(AD_S3A)}, {v(AD_S3)}"); A(f"s_add_u32 s43, {s(sTB)}, {PB_E+4*(63-16)}"); A(f"v_writelane_b32 {v(AD_S3A)}, s43, 0")
    A(f"v_lshl_add_u32 {v(t)}, {v(vI)}, 2, {s(sTB)}")
    A(f"v_lshlrev_b32 {v(t+2)}, 5, {v(vG)}"); A(f"v_sub_u32 {v(AD_P)}, {v(t)}, {v(t+2)}"); A(f"v_add_u32 {v(AD_P)}, {4*26}, {v(AD_P)}")
    A(f"v_add_u32 {v(AD_P+1)}, 1024, {v(AD_P)}"); A(f"v_add_u32 {v(AD_P+2)}, 2048, {v(AD_P)}")
    A(f"v_lshlrev_b32 {v(t+2)}, 4, {v(vG)}"); A(f"v_sub_u32 {v(AD_E)}, {v(t)}, {v(t+2)}"); A(f"v_add_u32 {v(AD_E)}, {PB_E+4*13}, {v(AD_E)}")

def kgen(A, L, O, vRow, vOp, sL, sLlo):
    PAR, Wm, CH, T = 16, 20, 32, 64
    BOP, AOP, D = 80, 176, 208
    DT, AL, BE = 76, 72, 74
    late = []
    lo = lambda d, src: f"v_lshlrev_b32 {v(d)}, 16, {v(src)}"
    hi = lambda d, src: f"v_and_b32 {v(d)}, {MASKHI}, {v(src)}"
    E = Asm()
    xs = [(DT, 15, 112), (AL, 116, 114), (AL + 1, 117, 118)]
    A("v_lshlrev_b32 v15, 16, v15"); A(lo(116, PAR)); A(hi(117, PAR))
    seqs = []
    for d, x, t in xs:
        E = Asm(); exp_acc(E, d, x, t, t + 1, sL, sLlo); seqs.append(E.lines)
    for k in range(6):
        for q in seqs: A(q[k])
    A(lo(BE, PAR + 1)); A(hi(BE + 1, PAR + 1))
    A(f"v_cvt_pk_bf16_f32 {v(DT)}, {v(DT)}, {v(DT)}")
    A(f"v_cvt_pk_bf16_f32 {v(T)}, {v(AL)}, {v(AL+1)}")
    A(hi(DT, DT)); A(lo(AL, T)); A(hi(AL + 1, T))
    A(f"v_pk_mul_f32 {v(BE,2)}, {v(BE,2)}, {v(DT,2)} op_sel_hi:[1,0]")
    A(f"v_pk_mul_f32 {v(AL,2)}, {v(AL,2)}, {v(DT,2)} op_sel_hi:[1,0]")
    for md in range(2):
        A(f"v_mul_f32 {v(BE+md)}, 0.15915494, {v(BE+md)}")
        A(f"v_mul_f32 {v(AL+md)}, {f32bits(-LOG2E)}, {v(AL+md)}")
    late += [lo(120, 14), f"v_add_f32 {v(DT+1)}, {v(DT)}, {v(DT)}", "v_add_f32 v120, 1.0, v120", lo(CH, PAR + 2), lo(CH + 1, PAR + 3), hi(CH + 2, PAR + 2), hi(CH + 3, PAR + 3),
             f"v_and_b32 {v(AD_D)}, {v(AD_D)}, v120"]
    for md in range(2): late.append(f"v_pk_mul_f32 {v(CH+2*md,2)}, {v(CH+2*md,2)}, {v(DT,2)} op_sel:[0,1] op_sel_hi:[1,1]")
    for q, p in ((1, 8), (0, 1), (2, 128)):
        out = []
        for md in range(2):
            w = Wm + 4 * q + 2 * md; t = 112 + 2 * md
            if p > 1: out += [f"v_mul_f32 {v(t)}, {f32bits(float(p))}, {v(AL+md)}", f"v_mul_f32 {v(t+1)}, {f32bits(float(p))}, {v(BE+md)}"]
        for md in range(2):
            t = 112 + 2 * md
            out += [f"v_exp_f32 {v(t)}, {v(t if p > 1 else AL+md)}", f"v_fract_f32 {v(t+1)}, {v(t+1 if p > 1 else BE+md)}"]
        for md in range(2):
            w = Wm + 4 * q + 2 * md; t = 112 + 2 * md
            out += [f"v_cos_f32 {v(w)}, {v(t+1)}", f"v_sin_f32 {v(w+1)}, {v(t+1)}"]
        for md in range(2):
            w = Wm + 4 * q + 2 * md; t = 112 + 2 * md
            out.append(f"v_pk_mul_f32 {v(w,2)}, {v(w,2)}, {v(t,2)} op_sel:[0,0] op_sel_hi:[1,0]{' neg_hi:[1,0]' if p == 8 else ''}")
        if p == 8: A.ext(out)
        else: late += out
    A(late.pop(0))
    if O.exp & 32: A("CYC ; mark")
    W1, W8, W128 = Wm, Wm + 4, Wm + 8
    PK = [68, 70]; cnt = [0]
    def put(r, pk):
        if O.addtid:
            L.issue(f"ds_write_addtid_b32 {v(pk)} offset:{528*r}"); L.issue(f"ds_write_addtid_b32 {v(pk+1)} offset:{528*r+256}")
        else:
            L.issue(f"ds_write_b64 {v(vRow)}, {v(pk,2)} offset:{528*r}")
    def row(r, x0):
        pk = PK[cnt[0] & 1]; cnt[0] += 1
        A(f"v_cvt_pk_bf16_f32 {v(pk)}, {v(x0)}, {v(x0+1)}")
        A(f"v_cvt_pk_bf16_f32 {v(pk+1)}, {v(x0+2)}, {v(x0+3)}")
        put(r, pk)
    def mul2(dst, x, w):
        i0 = cmul(dst, x, w, T); i1 = cmul(dst + 2, x + 2, w + 2, T + 2)
        A(i0[0]); A(i1[0]); A(i0[1]); A(i1[1])
    def reads(dst, tag):
        for ks in range(8): L.issue(f"ds_read_b128 {v(dst+4*ks,4)}, {v(vOp)} offset:{32*ks}", (tag, ks))
    def mfma(t, tag, ks):
        L.need((tag, ks), ("B", ks))
        A(f"v_mfma_f32_16x16x32_bf16 {v(D+4*t,4)}, {v(AOP+4*ks,4)}, {v(BOP+4*ks,4)}, {v(D+4*t,4) if ks else 0}")
    BC = 12
    A(f"v_mov_b32 {v(PK[0])}, 0x3f80"); A(f"v_mov_b32 {v(PK[0]+1)}, 0x3f80")
    put(0, PK[0]); cnt[0] += 1
    row(1, W8)
    mul2(BC, W8, W8); row(2, BC)
    for r in range(3, 16):
        mul2(BC, BC, W8); row(r, BC)
        for _ in range(3):
            if late: A(late.pop(0))
    assert not late
    reads(BOP, "B")
    ch = lambda i: CH + 4 * i
    row(0, ch(0))
    for i in range(1, 8):
        mul2(ch(i), ch(i-1), W1); row(i, ch(i))
    for i in range(8):
        mul2(ch(i), ch(i), W128); row(8 + i, ch(i))
    reads(AOP, "A0")
    for r, i in enumerate([0, 2, 4, 6, 0, 2, 4, 6, 0, 4, 0, 4, 0, 4, 0, 4]):
        mul2(ch(i), ch(i), W128); row(r, ch(i))
        if 3 <= r < 11: mfma(0, "A0", r - 3)
    reads(AOP, "A1")
    for r in range(9):
        mul2(ch(0), ch(0), W128); row(r, ch(0))
        if r >= 2: mfma(1, "A1", r - 2)
    mfma(1, "A1", 7)
    if O.exp & 32: A("CYC ; mark")
    reads(AOP, "A2")
    return D, lambda ks: mfma(2, "A2", ks)

def ktables(A, L, D, mf2, sK, MARK=False):
    D0, D1, D2 = D, D + 4, D + 8
    T = 64
    cv = lambda d, lo, hi: A(f"v_cvt_pk_bf16_f32 {v(d)}, {v(lo)}, {v(hi)}")
    t1, t2, t3 = T + 8, T + 9, T + 10
    A(f"v_add_f32 {v(D0)}, {v(D0)}, {v(AD_D)}")
    A(f"v_cndmask_b32 {v(t1)}, {v(D1+1)}, {v(D1)}, s[58:59]")
    A(f"v_cndmask_b32 {v(t2)}, {v(D1+2)}, {v(D1+1)}, s[58:59]")
    A(f"v_cndmask_b32 {v(t3)}, {v(D1+3)}, 0, s[58:59]")
    cv(T+12, D1, D1+1); cv(T+13, D1+2, D1+3)
    mf2(0); mf2(1)
    cv(T, D1, D1); cv(T+1, D1, D1); cv(T+2, t1, D1); cv(T+3, t2, t1)
    mf2(2); mf2(3)
    cv(T+4, t2, t2); cv(T+5, t2, t2); cv(T+6, t3, t2); cv(T+7, t3, t3)
    mf2(4); mf2(5)
    A(f"v_cndmask_b32 {v(T+12)}, {v(T+12)}, 0, s[58:59]")
    A("s_mov_b32 exec_hi, 1")
    L.issue(f"ds_write_b128 {v(AD_S1)}, {v(T,4)} offset:4")
    L.issue(f"ds_write_b128 {v(AD_S1)}, {v(T+4,4)} offset:20")
    L.issue(f"ds_write_b16 {v(AD_S1)}, {v(T)}")
    A("s_mov_b32 exec_hi, -1")
    mf2(6); mf2(7)
    cv(T+8, D0, D0+3); cv(T+9, D0+1, D0); cv(T+10, D0+2, D0+1); cv(T+11, D0+3, D0+2)
    L.issue(f"ds_write_b16 {v(AD_S0)}, {v(T+8)}")
    L.issue(f"ds_write2_b32 {v(AD_S0)}, {v(T+9)}, {v(T+10)} offset0:1 offset1:2")
    L.issue(f"ds_write_b32 {v(AD_S0)}, {v(T+11)} offset:12")
    L.issue(f"ds_write_b16_d16_hi {v(AD_S0)}, {v(T+8)} offset:18")
    A("s_mov_b32 exec_lo, 0")
    L.issue(f"ds_write2_b32 {v(AD_S2)}, {v(T+12)}, {v(T+13)} offset0:0 offset1:8")
    A("s_mov_b32 exec_lo, -1")
    TT = 100
    cv(TT, D2, D2+1); cv(TT+1, D2+2, D2+3); cv(TT+2, D2, D2)
    A("s_mov_b32 exec_hi, 1")
    L.issue(f"ds_write_b16 {v(AD_S3A)}, {v(TT)}")
    A("s_mov_b32 exec_hi, 0")
    L.issue(f"ds_write_b16_d16_hi {v(AD_S3)}, {v(TT)} offset:32")
    L.issue(f"ds_write_b16 {v(AD_S3)}, {v(TT+1)} offset:64")
    L.issue(f"ds_write_b16_d16_hi {v(AD_S3)}, {v(TT+1)} offset:96")
    A("s_mov_b32 exec_hi, -1")
    A(f"v_readlane_b32 {s(sK)}, {v(TT+2)}, 0")
    for dd in range(4): A(f"v_and_b32 {v(KC+dd)}, {s(sK)}, {v(KC+dd)}")

def convloop(A, L, O, vU, vE, vTR, vXA, vST, sOut, sWave, extra, start, early):
    B5, B3, B9, B7 = BAND, BAND + 4, BAND + 8, BAND + 12
    mf = lambda d, x, y, c_: f"v_mfma_f32_16x16x32_bf16 {v(d,4)}, {v(x,4)}, {v(y,4)}, {c_}"
    acc = lambda c: ACC + 4 * c
    main = []; pos = {}
    ub = lambda o: UB + 4 * ((o + 7) % NUB)
    def add(text, needs=(), key=None):
        main.append((text, needs))
        if key: pos[key] = len(main) - 1
    u16 = lambda cp: UB + 8 * (cp & 1)
    u24 = lambda cp: UB + 8 * (cp & 1) + 4
    far = (("O", 5, (2, 3, 4), BOXOP + 4, KO), ("E", 5, (2, 3, 4), BOXOP, KE), ("S", 3, (4, 5, 6, 7), BOXOP + 8, K3))
    for cp in range(7):
        if cp <= 5:
            pos[("bxfirst", cp)] = len(main)
            add(mf(BOXD + 8, u16(cp), B5, 0), (("U16", cp),), ("bx", cp, "O0")); add(mf(BOXD + 12, u16(cp), B3, 0), (), ("bx", cp, "O1"))
            add(mf(BOXD, u24(cp), B5, 0), (("U24", cp),), ("bx", cp, "E0")); add(mf(BOXD + 4, u24(cp), B3, 0), (), ("bx", cp, "E1"))
            if cp <= 3:
                add(mf(acc(cp + 4), KC, u16(cp), v(acc(cp + 4), 4)), (), ("corr", cp))
                add(mf(BOXD + 20, u16(cp), B7, 0), (), ("bx", cp, "S1")); add(mf(BOXD + 16, u24(cp), B9, 0), (), ("bx", cp, "S0"))
            pos[("bxlast", cp)] = len(main) - 1
        if cp == 0:
            for o in range(-7, -7 + O.head):
                pos[("first", o)] = len(main)
                for c in (0, 1): add(mf(acc(c), KN + 4 * (8 * c - o), UB + 16 + 4 * ((o + 7) & 1), v(acc(c), 4)), (("U", o), ("KN", 8 * c - o)), ("near", c, o))
                pos[("lastU", o)] = len(main) - 1
        if cp >= 1:
            q = cp - 1
            for nm, lim, dls, bop, kr in far:
                if q > lim: continue
                pos[("far", q, nm)] = len(main)
                for dl in dls:
                    if q + dl <= 7: add(mf(acc(q + dl), bop, kr + 4 * (dl - dls[0]), v(acc(q + dl), 4)), ((nm, dl),))
                pos[("farend", q, nm)] = len(main) - 1
    P1 = len(main)
    for o in range(-7 + O.head, 57):
        pos[("first", o)] = len(main)
        for c in range(8):
            if 0 <= 8 * c - o <= 16:
                add(mf(acc(c), KN + 4 * (8 * c - o), ub(o), v(acc(c), 4)), (("U", o), ("KN", 8 * c - o)), ("near", c, o))
        pos[("lastU", o)] = len(main) - 1
    N = len(main)
    F = []
    for cp in range(6):
        after = pos[("bxlast", cp - 2)] if cp >= 2 else -1
        dl = max(after + 1, pos[("bxfirst", cp)] - O.u_lead)
        F.append(dict(text=f"ds_read_b128 {v(u16(cp),4)}, {v(vU)} offset:{64*(8*cp+7)}", after=after, before=dl, tag=("U16", cp), lds=True, chain="U1", pre=cp == 0))
        F.append(dict(text=f"ds_read_b128 {v(u24(cp),4)}, {v(vU)} offset:{432+512*cp}", after=after, before=dl, tag=("U24", cp), lds=True, chain="U1", pre=cp == 0))
    def kread(reg, base, o0, step, tag, before, pre=False):
        F.append(dict(text=f"ds_read2_b32 {v(reg,2)}, {v(base)} offset0:{o0+3*step} offset1:{o0+2*step}", after=-1, before=before, tag=tag, lds=True, chain="K", pre=pre))
        F.append(dict(text=f"ds_read2_b32 {v(reg+2,2)}, {v(base)} offset0:{o0+step} offset1:{o0}", after=-1, before=before, tag=tag, lds=True, chain="K", pre=pre))
    firstK = {}
    for i, (t, nd) in enumerate(main):
        for x in nd:
            if x[0] in ("KN", "O", "E", "S") and x not in firstK: firstK[x] = i
    for x, i in sorted(firstK.items(), key=lambda kv: kv[1]):
        b = max(0, i - O.u_lead)
        if x[0] == "KN": kread(KN + 4 * x[1], 12 + x[1] // 8, 32 * (x[1] % 8), 2, x, b)
        else:
            reg, o0, d0 = dict(O=(KO, 64, 2), E=(KE, 0, 2), S=(K3, 128, 4))[x[0]]
            kread(reg + 4 * (x[1] - d0), 15, o0 + 16 * (x[1] - d0), 1, x, b)
    for o in range(-7, -7 + O.head):
        after = pos[("lastU", o - 2)] if o - 2 >= -7 else -1
        F.append(dict(text=f"ds_read_b128 {v(UB+16+4*((o+7)&1),4)}, {v(vU)} offset:{64*(o+7)}", after=after,
                      before=max(after + 1, pos[("first", o)] - O.u_lead), tag=("U", o), lds=True, chain="U"))
    for o in range(-7 + O.head, 57):
        prev = o - NUB
        if prev >= -7 + O.head: after = pos[("lastU", prev)]
        else:
            r = (o + 7) % NUB
            after = pos[("bxlast", 4)] if r < 2 else pos[("bxlast", 5)] if r < 4 else (pos[("lastU", -8 + O.head)] if O.head else -1)
        F.append(dict(text=f"ds_read_b128 {v(ub(o),4)}, {v(vU)} offset:{64*(o+7)}", after=after,
                      before=max(after + 1, pos[("first", o)] - O.u_lead), tag=("U", o), lds=True, chain="U"))
    first = {}
    for i, (t, _) in enumerate(main):
        for c in range(8):
            if t.split()[1].rstrip(",") == v(acc(c), 4) and c not in first: first[c] = i
    for c in range(8):
        t, nd = main[first[c]]
        main[first[c]] = (t[:t.rindex(",")] + ", 0", nd)
    for cp in range(6):
        for nm, d0, op in (("O", BOXD + 8, BOXOP + 4), ("E", BOXD, BOXOP), ("S", BOXD + 16, BOXOP + 8)):
            if nm == "S" and cp > 3: continue
            after = max(pos[("bx", cp, nm + "0")], pos[("bx", cp, nm + "1")]) + O.mlag
            if cp: after = max(after, pos[("farend", cp - 1, nm)])
            before = pos[("far", cp, nm)] - 1
            nx = [pos[k] for k in (("bx", cp + 1, nm + "0"), ("bx", cp + 1, nm + "1")) if k in pos]
            if nx: before = min(before, min(nx))
            after = min(after, before - 1)
            for dd in range(4):
                F.append(dict(text=f"v_cvt_pk_bf16_f32 {v(op+dd)}, {v(d0+dd)}, {v(d0+4+dd)}", after=after, before=before))
    OT, TR, XA, XF = 10, 12, 240, 244
    tail = []
    def addx():
        r = []
        for k in range(4):
            r += [f"v_lshlrev_b32 {v(XF+8)}, 16, {v(TR+k)}", f"v_and_b32 {v(XF+9)}, {MASKHI}, {v(TR+k)}",
                  f"v_pk_add_f32 {v(XF+2*k,2)}, {v(XF+2*k,2)}, {v(XF+8,2)}", f"v_cvt_pk_bf16_f32 {v(TR+k)}, {v(XF+2*k)}, {v(XF+2*k+1)}"]
        return r
    def unpx(): return [f"v_lshlrev_b32 {v(XF+k)}, 16, {v(XA+k//2)}" if k % 2 == 0 else f"v_and_b32 {v(XF+k)}, {MASKHI}, {v(XA+k//2)}" for k in range(8)]
    prev_store = -1
    for c in range(8):
        done = pos[("near", c, 8 * c)]
        ins = [f"v_cvt_pk_bf16_f32 {v(OT)}, {v(acc(c))}, {v(acc(c)+1)}", f"v_cvt_pk_bf16_f32 {v(OT+1)}, {v(acc(c)+2)}, {v(acc(c)+3)}"]
        w = f"ds_write_b64 {v(vE)}, {v(OT,2)} offset:{512*c}"
        if c & 1:
            pc = c // 2
            F.append(dict(text=f"ds_read_b128 {v(XA,4)}, {v(vXA)} offset:{8192*pc}", after=P1 - 8, before=min(N, done + (10 if c == 7 else 0)), lds=True, tag=("xa", pc), chain="s"))
            for q, x in enumerate(unpx()): F.append(dict(text=x, after=-1, before=min(N, done + 10), needs=(("xa", pc),), chain="s", lag=0 if q else 5))
        if c < 7:
            for x in ins: F.append(dict(text=x, after=min(N - 1, done + O.mlag), before=min(N, done + 16), chain="o"))
            F.append(dict(text=w, after=min(N - 1, done + O.mlag), before=min(N, done + 17), lds=True, tag=("o", c), chain="o"))
            if c & 1:
                F.append(dict(text="s_nop 0" if O.exp & 2 else "s_barrier", after=done + 17, before=done + 22, needs=(("o", c),), chain="s"))
                for h in range(2):
                    F.append(dict(text=f"ds_read_b64_tr_b16 {v(TR+2*h,2)}, {v(vTR)} offset:{1024*pc+4*EST*h}", after=done + 10, before=done + 24,
                                  lds=True, tag=("tr", pc), chain="s"))
                lim = min(N - 8, done + 44)
                for q, x in enumerate(addx()): F.append(dict(text=x, after=done + 10, before=lim, needs=(("tr", pc),), chain="s", lag=0 if q else 5))
                st = f"buffer_store_dwordx4 {v(TR,4)}, {v(vST)}, {s(sOut,4)}, {'0' if pc == 0 else s(53+pc)} offen"
                if O.exp & 1: st = "s_nop 0"
                F.append(dict(text=st, after=done + 10, before=lim, chain="s"))
                prev_store = lim - 1
        else:
            tail += [(x, False) for x in ins] + [(w, True)]
    extra(F, pos, N)
    F = [f for f in F if f["text"] not in early]
    ks = [f for f in F if f.get("chain") == "K"][:O.pre_k]
    L.issue("UWRITES", "uw"); A.lines.pop()
    for f in ks: F.remove(f); L.issue(f["text"], f["tag"])
    L.need("uw"); A("s_barrier")
    start()
    if O.exp & 256: F = [f for f in F if not f["text"].startswith("v_")]
    if O.exp & 512: F = [f for f in F if not f["text"].startswith("ds_read_b128")]
    if O.exp & 1024: F = [f for f in F if f["text"].startswith(("ds_read_b128", "v_", "buffer_load"))]
    over = schedule2(A, L, main, F, per_gap=O.per_gap, age=O.age)
    print("loop overflow slots", over, file=sys.stderr)
    for pc in range(3 if not O.exp else 0):
        iw = A.lines.index(f"ds_write_b64 {v(vE)}, {v(OT,2)} offset:{512*(2*pc+1)}")
        it = A.lines.index(f"ds_read_b64_tr_b16 {v(TR,2)}, {v(vTR)} offset:{1024*pc}")
        assert O.exp & 2 or "s_barrier" in A.lines[iw:it]
    convloop.addx = addx
    for x, l in tail:
        if l: L.issue(x)
        else: A(x)

def gen_conv(A, O):
    L = Lgkm(A); ST = Stamper(A, O.stamps)
    ST()
    sT = 52
    A("s_and_b32 s56, s2, 7"); A("s_lshl_b32 s44, s56, 4"); A("s_add_u32 s44, s44, s3")
    A(f"v_and_b32 {v(vL)}, 63, v0"); A(f"v_and_b32 {v(vI)}, 15, v0"); A(f"v_bfe_u32 {v(vG)}, v0, 4, 2")
    A("v_lshrrev_b32 v4, 6, v0"); A("v_readfirstlane_b32 s45, v4")
    A(f"s_mov_b32 s40, {f32bits(L_HI)}"); A(f"s_mov_b32 s41, {f32bits(L_LO)}")
    A("s_lshl_b32 s46, s44, 3"); A("s_add_u32 s46, s46, s45")
    A("s_lshl_b32 s47, s46, 8"); A("s_lshl_b32 s48, s46, 1"); A("s_lshl_b32 s49, s44, 4")
    A(f"v_lshl_add_u32 v4, {v(vL)}, 2, s47")
    A("v_mov_b32 v5, s48")
    A("s_waitcnt lgkmcnt(0)")
    A("s_load_dword s50, s[36:37], 0")
    for d, k in ((24, "ldt"), (8, "lar"), (12, "aim"), (16, "cre"), (20, "cim"), (28, "dsk")): srd_fin(A, d, k)
    A("buffer_load_ushort v15, v5, s[24:27], 0 offen")
    for k, d in enumerate((8, 12, 16, 20)): A(f"buffer_load_dword {v(16+k)}, v4, {s(d,4)}, 0 offen nt")
    A("buffer_load_ushort v14, v5, s[28:31], 0 offen")
    for d, k in ((4, "x"), (32, "out")): srd_fin(A, d, k)
    srd_fin(A, 36, "ws", size=WS_SIZE)
    if O.wd_pf: srd_fin(A, 64, "wd")
    if O.prio & 2:
        A("s_cmp_lt_u32 s45, 4"); A("s_cbranch_scc1 L_conv_p"); A("s_setprio 1"); A("L_conv_p:")
    vXC, vSL = 9, 11
    A(f"v_xor_b32 {v(vXC)}, {v(vL)}, {v(vG)}")
    A("s_lshl_b32 s57, s45, 19"); A("s_add_u32 s57, s57, s49")
    A(f"v_lshl_add_u32 {v(vXC)}, {v(vXC)}, 11, s57")
    A("s_lshl_b32 s57, s3, 7"); A("s_lshl_b32 s58, s45, 4"); A("s_add_u32 s57, s57, s58"); A("s_lshl_b32 s57, s57, 11")
    A("s_lshl_b32 s58, s56, 8"); A("s_add_u32 s57, s57, s58")
    A(f"v_lshrrev_b32 {v(vSL)}, 1, {v(vL)}"); A(f"v_lshlrev_b32 {v(vSL)}, 11, {v(vSL)}")
    A(f"v_and_b32 v10, 1, {v(vL)}"); A(f"v_lshl_add_u32 {v(vSL)}, v10, 7, {v(vSL)}"); A(f"v_add_u32 {v(vSL)}, s57, {v(vSL)}")
    A("s_mov_b32 s53, 4096"); A("s_mov_b32 s54, 8192"); A("s_mov_b32 s55, 12288")
    def slab():
        if O.no_slab: return
        A("s_mov_b32 exec_hi, 0"); A(f"buffer_load_dword v170, {v(vSL)}, s[4:7], 0 offen{' nt' if O.slab_nt else ''}"); A("s_mov_b32 exec_hi, -1")
    if O.slab_early: slab()
    A(f"s_mul_i32 s57, s45, {TST}"); A(f"s_add_u32 s57, s57, {TBASE}")
    A(f"s_mul_i32 s51, s45, {UST}"); A(f"s_add_u32 s51, s51, {UBASE}")
    for k in range(4): A(f"v_mov_b32 {v(64+k)}, 0")
    A(f"v_lshl_add_u32 v10, {v(vL)}, 4, s57")
    for k in range(3): A(f"ds_write_b128 v10, v[64:67] offset:{1024*k}")
    A(f"v_lshl_add_u32 v10, {v(vL)}, 3, s51"); A("ds_write_b64 v10, v[64:65]")
    vSH = 4
    A(f"v_lshlrev_b32 {v(vSH)}, 3, {v(vG)}"); A(f"v_sub_u32 {v(vSH)}, {v(vSH)}, {v(vI)}")
    A(f"v_add_u32 {v(vSH)}, 15, {v(vSH)}"); A(f"v_min_u32 {v(vSH)}, 31, {v(vSH)}")
    for k, (lo, hi) in enumerate(((6, 10), (3, 5), (4, 12), (5, 11))): band(A, BAND + 4 * k, vSH, lo, hi, 0x3f80, 5, 6, 7, 43)
    band(A, KC, vSH, 12, 13, 0xffff, 5, 6, 7, 43)
    table_addresses(A, 57)
    A(f"v_mov_b32 {v(AD_D)}, 0"); A(f"v_writelane_b32 {v(AD_D)}, -1, 0")
    A("s_mov_b32 s58, 0"); A("s_mov_b32 s59, 1")
    vRow, vOp, vU, vE = 5, 6, 7, 8
    A(f"s_mul_i32 s42, s45, {KST}")
    if O.addtid: A("s_mov_b32 m0, s42")
    A("s_mov_b32 s60, s42"); A("s_lshl_b32 s61, s45, 12"); A(f"s_add_u32 s61, s61, {XBASE}")
    A(f"v_lshl_add_u32 {v(vRow)}, {v(vL)}, 3, s42")
    A(f"v_mul_u32_u24 {v(vOp)}, 528, {v(vI)}")
    A(f"v_and_b32 v10, 1, {v(vG)}"); A(f"v_lshl_add_u32 {v(vOp)}, v10, 8, {v(vOp)}")
    A(f"v_lshrrev_b32 v10, 1, {v(vG)}"); A(f"v_lshl_add_u32 {v(vOp)}, v10, 4, {v(vOp)}")
    A(f"v_add_u32 {v(vOp)}, s42, {v(vOp)}")
    A(f"v_lshlrev_b32 v10, 5, {v(vI)}")
    A(f"v_lshl_add_u32 {v(vU)}, {v(vG)}, 4, v10"); A(f"v_add3_u32 {v(vU)}, {v(vU)}, s51, 32")
    A(f"s_mul_i32 s42, s45, {EST}"); A(f"s_add_u32 s42, s42, {EBASE}")
    A(f"v_lshl_add_u32 {v(vE)}, {v(vG)}, 3, v10"); A(f"v_add_u32 {v(vE)}, s42, {v(vE)}")
    A("s_waitcnt lgkmcnt(0)")
    tag_from_epoch(A, 50, sT)
    base = 1 if O.slab_early and not O.no_slab else 0
    A(f"s_waitcnt vmcnt({base})")
    A("L_conv_kg:")
    if not O.slab_early: slab()
    A("s_cmp_lg_u32 s45, 4"); A("s_cbranch_scc1 L_conv_noack")
    A("s_lshl_b32 s50, s44, 2"); A(f"s_add_u32 s50, s50, {WS_ACK}")
    A("v_mov_b32 v10, s50"); A(f"v_mov_b32 v12, {s(sT)}"); A("s_mov_b64 exec, 1")
    A("buffer_store_dword v12, v10, s[36:39], 0 offen sc1")
    A("s_mov_b64 exec, -1")
    A("L_conv_noack:")
    ST(); ST.cyc0(62)
    K = Asm(); LK = Lgkm(K)
    D, mf2 = kgen(K, LK, O, vRow, vOp, 40, 41)
    ktables(K, LK, D, mf2, 42, O.exp & 32)
    def wdpf(dst):
        A("s_mul_i32 s46, s56, 448"); A("s_mul_i32 s47, s3, 28"); A("s_add_u32 s46, s46, s47"); A("s_lshl_b32 s46, s46, 11")
        A("s_mul_i32 s47, s45, 7168"); A("s_add_u32 s46, s46, s47")
        A(f"v_lshl_add_u32 v10, {v(vL)}, 7, s46")
        A("s_mov_b32 exec_hi, 0xffffff"); A(f"buffer_load_dword {v(dst)}, v10, s[64:67], 0 offen{' nt' if O.wd_pf == 2 else ''}"); A("s_mov_b32 exec_hi, -1")
    n = len(K.lines); step = n // 32; cntx = 0
    masked = False
    for i, ln in enumerate(K.lines):
        if ln.startswith("CYC"): ST.cyc1(62)
        else: A(ln)
        if ln.startswith("s_mov_b32 exec"): masked = not ln.endswith("-1")
        if i % step == step - 1:
            if O.wd_pf and O.wd_pf_at == i // step + 1:
                assert not masked
                wdpf(171)
            j = i // step + 1 - O.xcol_at
            if j >= 0 and j % O.xcol_gap == 0 and cntx < 4:
                assert not masked
                if j == 0 and not O.no_slab: A("s_waitcnt vmcnt(0)")
                A(f"s_mov_b32 s43, {cntx*64*2048}"); A(f"s_add_u32 m0, s61, {1024*cntx}")
                if not O.exp & 4: A(f"buffer_load_dwordx4 {v(vXC)}, s[4:7], s43 offen{' nt' if O.x_nt else ''} lds")
                cntx += 1
                if O.addtid: A("s_mov_b32 m0, s60")
    assert cntx == 4, cntx
    L.q = LK.q
    ST(L); ST.cyc1(62)
    if O.exp & 64: A("s_branch L_conv_end")
    PX, UP, GR, RS, MB, RAW = 176, 208, 144, 160, 164, 224
    vW, vPo = 6, 9
    A(f"v_lshlrev_b32 {v(vW)}, 3, v0"); A(f"v_add_u32 {v(vW)}, {UBASE+512}, {v(vW)}")
    A("v_and_b32 v12, 1, v0"); A("v_lshlrev_b32 v12, 13, v12"); A("v_lshrrev_b32 v13, 1, v0"); A("v_lshl_add_u32 v12, v13, 4, v12")
    A(f"v_add_u32 {v(vPo)}, {WS_STATS}, v12")
    gl = [f"buffer_load_dwordx4 {v(GR+4*k,4)}, {v(vPo)}, s[36:39], {'s53' if k else '0'} offen sc1" for k in range(2)]
    A("v_bfe_u32 v13, v0, 2, 2"); A("v_lshlrev_b32 v13, 4, v13"); A("v_lshl_add_u32 v12, v0, 6, v13"); A(f"v_add_u32 v12, {XBASE}, v12")
    A("s_waitcnt vmcnt(0)")
    for x in gl: A(x)
    for rr in range(4):
        if rr: A(f"v_xor_b32 v13, {16*rr}, v12")
        L.issue(f"ds_read_b128 {v(RAW+4*rr,4)}, {v(13 if rr else 12)}", ("raw", rr))
    vTR, vST, vSE, vXA = 4, 5, 254, 255
    A(f"v_bfe_u32 v10, v0, 2, 2"); A(f"v_mul_u32_u24 v10, {EST}, v10")
    A("v_lshrrev_b32 v11, 4, v0"); A("v_lshl_add_u32 v10, v11, 5, v10")
    A("v_and_b32 v11, 3, v0"); A(f"v_lshl_add_u32 {v(vTR)}, v11, 3, v10")
    A(f"v_lshlrev_b32 v11, 11, v0"); A(f"v_add_u32 {v(vST)}, s49, v11")
    A("s_mov_b32 s54, 0x100000"); A("s_mov_b32 s55, 0x200000")
    A(f"v_and_b32 v10, 7, {v(vL)}"); A("v_lshlrev_b32 v10, 4, v10"); A("s_lshl_b32 s43, s56, 7"); A(f"s_add_u32 s43, s43, {WS_SEL}"); A(f"v_add_u32 {v(vSE)}, s43, v10")
    A(f"v_xor_b32 v10, v0, {v(vG)}"); A("v_lshlrev_b32 v10, 4, v10"); A(f"v_add_u32 {v(vXA)}, {XBASE}, v10")
    for k in range(3): A(f"v_mov_b32 {v(12+k)}, {v(AD_P+k)}")
    A(f"v_mov_b32 v15, {v(AD_E)}")
    early = []
    for reg, o0, nn in ((KO, 64, 3), (KE, 0, 3), (K3, 128, 4)):
        for k in range(nn):
            o = o0 + 16 * k
            early += [f"ds_read2_b32 {v(reg+4*k,2)}, v15 offset0:{o+3} offset1:{o+2}", f"ds_read2_b32 {v(reg+4*k+2,2)}, v15 offset0:{o+1} offset1:{o}"]
    for k in (7, 15, 6, 14, 5, 13, 4, 12, 3, 11, 2, 10, 1, 9, 0, 8, 16):
        o = 32 * (k % 8)
        early += [f"ds_read2_b32 {v(KN+4*k,2)}, {v(12+k//8)} offset0:{o+6} offset1:{o+4}", f"ds_read2_b32 {v(KN+4*k+2,2)}, {v(12+k//8)} offset0:{o+2} offset1:{o}"]
    early = early[:O.early_k + O.early_k2]
    todo = list(early)
    L.drain()
    for rr in range(4):
        for c in range(8):
            src = RAW + 4 * rr + (c >> 1); d = PX + 4 * c + rr
            A(f"v_lshlrev_b32 {v(d)}, 16, {v(src)}" if c % 2 == 0 else f"v_and_b32 {v(d)}, {MASKHI}, {v(src)}")
            if (8 * rr + c + 1) * O.early_k // 32 > (8 * rr + c) * O.early_k // 32: L.issue(todo.pop(0))
    ST(L)
    poll_masked(A, "conv", gl, [GR + 3, GR + 7], sT, 43, 8, O.poll_sleep, issued=True)
    ST(L)
    src = [GR, GR + 1, GR + 4, GR + 5]
    for rr in range(4): A(f"v_and_b32 {v(RS+rr)}, {MASKHI}, {v(src[rr])}")
    for rr in range(4):
        A(f"v_rcp_f32 {v(RS+rr)}, {v(RS+rr)}")
        if todo: L.issue(todo.pop(0))
    for rr in range(4):
        A(f"v_lshlrev_b32 {v(MB+rr)}, 16, {v(src[rr])}")
        if todo: L.issue(todo.pop(0))
    assert not todo
    for a_ in range(2): A(f"v_pk_mul_f32 {v(MB+2*a_,2)}, {v(MB+2*a_,2)}, {v(RS+2*a_,2)} neg_lo:[1,0] neg_hi:[1,0]")
    for c in range(8):
        x = PX + 4 * c
        for a_ in range(2): A(f"v_pk_fma_f32 {v(x+2*a_,2)}, {v(x+2*a_,2)}, {v(RS+2*a_,2)}, {v(MB+2*a_,2)}")
        for a_ in range(2): A(f"v_cvt_pk_bf16_f32 {v(UP+2*c+a_)}, {v(x+2*a_)}, {v(x+2*a_+1)}")
        L.issue(f"ds_write_b64 {v(vW)}, {v(UP+2*c,2)} offset:{c*UST}")
    if O.wd_pf and not O.wd_pf_at: wdpf(9)
    def start():
        if O.stamps: ST(L); ST.cyc0(62)
    SEL, TR, YR, XA, XB2 = K3, 12, 16, 44, 48
    selload = f"buffer_load_dwordx4 {v(SEL,4)}, {v(vSE)}, s[36:39], 0 offen sc1"
    def extra(F, pos, N):
        a0 = pos[("first", 36)]
        F.append(dict(text=selload, after=a0, before=a0 + 3))
    convloop(A, L, O, vU, vE, vTR, vXA, vST, 32, 57, extra, start, early)
    isel = A.lines.index(selload)
    later = [x for x in A.lines[isel+1:] if x.startswith("buffer_")]
    L.drain()
    A(f"s_waitcnt vmcnt({len(later)})")
    ST(L); ST.cyc1(62)
    A("s_barrier")
    for h in range(2): L.issue(f"ds_read_b64_tr_b16 {v(TR+2*h,2)}, {v(vTR)} offset:{1024*3+4*EST*h}", "tr")
    A("s_lshl_b32 s43, s44, 11"); A(f"s_add_u32 s43, s43, {WS_Y}"); A(f"v_lshl_add_u32 v9, {v(vL)}, 4, s43")
    yl = [f"buffer_load_dwordx4 {v(YR+4*k,4)}, v9, s[36:39], 0 offen offset:{1024*k} sc1" for k in range(2)]
    A(f"v_cmp_ne_u32 vcc, {s(sT)}, {v(SEL+3)}")
    A("s_cbranch_vccz L_conv_selok")
    poll(A, "sel", [selload], [SEL + 3], sT, 43, 11, O.poll_sleep)
    A("L_conv_selok:")
    if O.y_early:
        A("s_cmp_lg_u32 s45, 0"); A("s_cbranch_scc1 L_conv_noy")
        for x in yl: A(x)
        A("L_conv_noy:")
    for k in range(8): A(f"v_readlane_b32 {s(4+k)}, {v(SEL)}, {k}")
    A("v_add_u32 v11, 1536, v0")
    A("s_mov_b32 s43, 0x300000")
    L.need("tr")
    A.ext(convloop.addx())
    for k in range(8): A(f"v_cmpx_ne_u32 vcc, {s(4+k)}, v11")
    A("s_nop 3")
    A(f"buffer_store_dwordx4 {v(TR,4)}, {v(vST)}, s[32:35], s43 offen")
    A("s_mov_b64 exec, -1")
    A("s_cmp_eq_u32 s45, 0"); A("s_cbranch_scc1 L_conv_fin")
    A("s_waitcnt vmcnt(1)")
    A("s_barrier"); A("s_branch L_conv_end")
    A("L_conv_fin:")
    if not O.y_early:
        for x in yl: A(x)
    A(f"v_bfe_u32 v10, {v(vL)}, 3, 1"); A(f"v_mul_u32_u24 v11, {4*EST}, v10"); A(f"v_lshl_add_u32 v11, {v(SEL)}, 1, v11"); A(f"v_add_u32 v11, {EBASE}, v11")
    for k in range(4): L.issue(f"ds_read_u16 {v(36+k)}, v11 offset:{EST*k}")
    A(f"v_bfe_u32 v11, {v(SEL)}, 4, 2"); A(f"v_xor_b32 v11, v11, {v(SEL)}"); A("v_lshlrev_b32 v11, 4, v11"); A("v_lshl_add_u32 v11, v10, 3, v11")
    A(f"v_add_u32 v11, {XBASE}, v11"); L.issue(f"ds_read_b64 {v(XA,2)}, v11")
    A(f"v_lshlrev_b32 v12, 11, {v(SEL)}"); A("v_lshl_add_u32 v12, v10, 3, v12"); A("v_add_u32 v12, s49, v12")
    A("s_mov_b32 s12, 0x0c0c0400"); A("s_mov_b32 s13, 0x05040100"); A("s_mov_b32 s43, 0")
    A(f"s_waitcnt vmcnt({1 if O.y_early else 0})")
    A("L_conv_y:")
    for k in range(2):
        y = YR + 4 * k
        A(f"v_perm_b32 v13, {v(y+1)}, {v(y)}, s12"); A(f"v_perm_b32 v14, {v(y+3)}, {v(y+2)}, s12")
        A(f"v_perm_b32 {v(32+k)}, v14, v13, s13")
    A(f"v_xor_b32 v32, {s(sT)}, v32"); A(f"v_bitop3_b32 v32, v32, v33, {s(sT)} bitop3:0xf6")
    A("v_cmp_ne_u32 vcc, 0, v32"); A("s_cbranch_vccz L_conv_yok")
    bounded(A, 43, "L_conv_yok")
    A("s_mov_b64 exec, vcc")
    for x in yl: A(x)
    A("s_mov_b64 exec, -1")
    A("s_waitcnt vmcnt(0)"); A("s_branch L_conv_y")
    A("L_conv_yok:")
    ST()
    for q in range(2): A(f"v_pk_add_f32 {v(YR+2*q,2)}, {v(YR+2*q,2)}, {v(YR+4+2*q,2)}")
    for sw in ("v_permlane16_swap_b32", "v_permlane32_swap_b32"):
        for k in range(4): A(f"v_mov_b32 {v(YR+4+k)}, {v(YR+k)}")
        for k in range(4): A(f"{sw} {v(YR+k)}, {v(YR+4+k)}")
        for q in range(2): A(f"v_pk_add_f32 {v(YR+2*q,2)}, {v(YR+2*q,2)}, {v(YR+4+2*q,2)}")
    L.drain()
    for k in range(4): A(f"v_lshlrev_b32 {v(36+k)}, 16, {v(36+k)}")
    for k in range(2): A(f"v_lshlrev_b32 {v(XB2+2*k)}, 16, {v(XA+k)}"); A(f"v_and_b32 {v(XB2+2*k+1)}, {MASKHI}, {v(XA+k)}")
    for k in range(2): A(f"v_pk_add_f32 {v(36+2*k,2)}, {v(36+2*k,2)}, {v(XB2+2*k,2)}")
    for k in range(4): A(f"v_fma_f32 {v(YR+k)}, {v(YR+k)}, {v(SEL+1)}, {v(36+k)}")
    A(f"v_cvt_pk_bf16_f32 {v(YR)}, {v(YR)}, {v(YR+1)}"); A(f"v_cvt_pk_bf16_f32 {v(YR+1)}, {v(YR+2)}, {v(YR+3)}")
    A("s_barrier")
    A("s_mov_b64 exec, 0xffff")
    A(f"buffer_store_dwordx2 {v(YR,2)}, v12, s[32:35], 0 offen")
    A("L_conv_end:")
    if O.stamps:
        A("s_waitcnt vmcnt(0)"); ST()
    if O.probe_role == 2: ST.probe(45, "conv", O.probe_j, O.probe_k)
    ST.flush(45, "conv")
    A("s_endpgm")

Opt.slab_nt = 1
Opt.w_nt = 1
def build(O):
    name = NAME + "_kernel"
    A = Asm()
    head(A, name)
    A("s_cmp_ge_u32 s2, 256"); A("s_cbranch_scc1 L_exit")
    if O.stamps: A(f"s_xor_b32 s94, s2, {128 if O.conv_first else 0}")
    A("s_bfe_u32 s3, s2, 0x40003")
    if O.code_pf:
        A("v_readfirstlane_b32 s4, v0"); A(f"s_cmp_ge_u32 s3, {O.code_pf}"); A("s_cbranch_scc1 L_nocp"); A("s_cmp_lt_u32 s4, 448"); A("s_cbranch_scc1 L_nocp")
        A(f"v_and_b32 {v(vL)}, 63, v0")
        code_prefetch(A, "all", 4, 172, 173, "L_auxk", 3)
        A("L_nocp:")
    A("s_bitcmp1_b32 s2, 7"); A(f"s_cbranch_scc{1 if O.conv_first else 0} L_auxk")
    for d, k in ((8, "lar"), (12, "aim"), (16, "cre"), (20, "cim"), (24, "ldt"), (28, "dsk"), (4, "x"), (32, "out"), (36, "ws")): srd_load(A, d, k)
    if O.wd_pf: srd_load(A, 64, "wd")
    A("s_branch L_conv")
    A("L_auxk:")
    if O.exp & 64: A("s_endpgm")
    for d, k in ((4, "x"), (8, "wr"), (12, "ws"), (16, "wg"), (20, "wu"), (24, "wd")): srd_load(A, d, k)
    A("L_aux_code:")
    gen_aux(A, O)
    A("L_exit:"); A("s_endpgm")
    A(".p2align 6")
    A("L_conv:")
    gen_conv(A, O)
    A("L_code_end:")
    txt = f"; @launch grid=(256,1,1) block=(512,1,1) lds={LDS_TOTAL}\n" + '.amdgcn_target "amdgcn-amd-amdhsa--gfx950"\n' + A.text()
    print("lines", len(A.lines), "auto nops", A.nauto, "lds", LDS_TOTAL, file=sys.stderr)
    return txt + KD.format(name=name, vgpr=256, sgpr=96, acc=256)

if __name__ == "__main__":
    O = Opt()
    for a_ in sys.argv[2:]:
        k, val = a_.split("="); assert hasattr(O, k), k; setattr(O, k, int(val))
    open(sys.argv[1], "w").write(build(O))
```

```python
import sys
from parts import *

WS_ACK = 2048
WS_STATS = 4096
WS_SEL = 24576
WS_G = 32768
WS_Y = WS_G + 8 * 57344
WS_SIZE = WS_Y + 128 * 2048
WS_STAMP = 128 << 20
SPIN_MAX = 1 << 16
XS = 131072; XST = 1040
KEYS = XS + 9 * XST
CTL = KEYS + 8192
PART = 24512; WDST = 7184
KST = 8448; TBASE = 8 * KST; TST = 3072; PB_E = 2240
UBASE = TBASE + 8 * TST; UST = 4608; EBASE = UBASE + 8 * UST; EST = 4160; CNT = EBASE + 8 * EST
LDS_TOTAL = max(CTL + 512, CNT + 64)
vL, vI, vG = 1, 2, 3
KN, KE, KO, K3, KC = 16, 84, 96, 108, 124
BAND = 128; ACC = 144; UB = 176; NUB = 6; U24 = 200; BOXD = 204; BOXOP = 228; XR = 240

class Opt:
    stamps = 0
    poll_sleep = 2
    aux_first_sleep = 28
    sel_first_sleep = 86
    g_first_sleep = 3
    n0 = 8
    wd_early = 12
    xcol_at = 12
    xcol_gap = 3
    code_pf = 2
    addtid = 1
    per_gap = 2
    u_lead = 6
    age = 6
    mlag = 7
    head = 0
    pre_k = 0
    early_k = 8
    early_k2 = 4
    prio = 3
    row_nt = 0
    w_nt = 1
    wd_nt = 1
    par_nt = 1
    exp = 0
    probe_role = 0
    probe_j = 0
    probe_k = 0

class Stamper:
    def __init__(self, A, on, base=72):
        self.A = A; self.on = on; self.n = 0; self.base = base
    def __call__(self, L=None):
        if not self.on: return
        A = self.A
        if L is not None: L.drain()
        A("s_memrealtime s[92:93]"); A("s_waitcnt lgkmcnt(0)"); A(f"s_mov_b32 {s(self.base+self.n)}, s92")
        self.n += 1; assert self.n <= 16
    def cyc0(self, r):
        if self.on: self.A(f"s_memtime {s(r,2)}"); self.A("s_waitcnt lgkmcnt(0)")
    def cyc1(self, r):
        if not self.on: return
        A = self.A
        A("s_memtime s[92:93]"); A("s_waitcnt lgkmcnt(0)"); A(f"s_sub_u32 s92, s92, {s(r)}"); A(f"s_add_u32 {s(self.base+self.n)}, s92, {s(self.base)}"); self.n += 1
    def probe(self, sWave, uid, j, k):
        A = self.A
        A(f"s_cmp_lg_u32 {s(sWave)}, 0"); A(f"s_cbranch_scc1 L_noprobe_{uid}")
        A(f"s_sub_u32 s90, {s(self.base+j)}, {s(self.base)}"); A(f"s_mul_i32 s90, s90, {k}"); A("s_min_u32 s90, s90, 20000")
        A("s_memrealtime s[92:93]"); A("s_waitcnt lgkmcnt(0)"); A("s_mov_b32 s91, s92")
        A(f"L_probe_{uid}:")
        A("s_memrealtime s[92:93]"); A("s_waitcnt lgkmcnt(0)"); A("s_sub_u32 s92, s92, s91"); A("s_cmp_lt_u32 s92, s90"); A(f"s_cbranch_scc1 L_probe_{uid}")
        A(f"L_noprobe_{uid}:")
    def flush(self, sWave, uid):
        if not self.on: return
        A = self.A
        A(f"s_and_b32 s92, {s(sWave)}, 3"); A("s_cmp_lg_u32 s92, 0"); A(f"s_cbranch_scc1 L_nostamp_{uid}")
        A("s_mov_b64 exec, -1")
        A(f"s_load_dwordx2 s[88:89], s[0:1], {OFF['ws']}"); A("s_waitcnt lgkmcnt(0)")
        A(f"s_add_u32 s88, s88, {WS_STAMP}"); A("s_addc_u32 s89, s89, 0"); A("s_mov_b32 s90, 0x20000"); A("s_mov_b32 s91, 0x00020000")
        A("v_mov_b32 v2, 0")
        for j in range(self.n): A(f"v_writelane_b32 v2, {s(self.base+j)}, {j}")
        A(f"s_mov_b32 s92, {self.n}"); A("v_writelane_b32 v2, s92, 30")
        A("s_mov_b32 s92, 0x5a5a5a5a"); A("v_writelane_b32 v2, s92, 31")
        A(f"s_lshr_b32 s92, {s(sWave)}, 2"); A("s_lshl_b32 s93, s2, 1"); A("s_add_u32 s92, s92, s93"); A("s_lshl_b32 s92, s92, 7")
        A("v_and_b32 v3, 63, v0"); A("v_lshl_add_u32 v3, v3, 2, s92")
        A("s_mov_b64 exec, 0xffffffff")
        A("buffer_store_dword v2, v3, s[88:91], 0 offen")
        A(f"L_nostamp_{uid}:")

PX_, PLAR, PAIM, PCRE, PCIM, PLDT, PDSK, PWR, PWG, PWU, PWD, POUT, PWS = 4, 6, 8, 10, 12, 14, 16, 22, 24, 26, 28, 30, 34
sW = 56
def mk_srd(A, d, p, size):
    A(f"s_mov_b64 {s(d,2)}, {s(p,2)}"); A(f"s_mov_b32 {s(d+2)}, {size}"); A(f"s_mov_b32 {s(d+3)}, 0x00020000")
def signal(A, vAddr, vOne, off):
    A("s_mov_b64 exec, 1"); A(f"ds_add_u32 {v(vAddr)}, {v(vOne)} offset:{off}"); A("s_mov_b64 exec, -1")

def tag_from_epoch(A, sE, sT):
    A(f"s_mul_i32 {s(sT)}, {s(sE)}, 0x9e3779b1"); A(f"s_add_u32 {s(sT)}, {s(sT)}, 0x7f4a7c15")

def bounded(A, sCnt, out, lim=SPIN_MAX):
    A(f"s_add_u32 {s(sCnt)}, {s(sCnt)}, 1"); A(f"s_cmp_ge_u32 {s(sCnt)}, {lim}"); A(f"s_cbranch_scc1 {out}")

def poll(A, uid, loads, tagregs, sT, sCnt, vT, sleep):
    A(f"s_mov_b32 {s(sCnt)}, 0")
    A(f"L_poll_{uid}:")
    for x in loads: A(x)
    A("s_waitcnt vmcnt(0)")
    A(f"v_xor_b32 {v(vT)}, {s(sT)}, {v(tagregs[0])}")
    for r in tagregs[1:]: A(f"v_bitop3_b32 {v(vT)}, {v(vT)}, {v(r)}, {s(sT)} bitop3:0xf6")
    A(f"v_cmp_ne_u32 vcc, 0, {v(vT)}")
    A(f"s_cbranch_vccz L_polled_{uid}")
    bounded(A, sCnt, f"L_polled_{uid}")
    if sleep: A(f"s_sleep {sleep}")
    A(f"s_branch L_poll_{uid}")
    A(f"L_polled_{uid}:")

def poll_masked(A, uid, loads, tagregs, sT, sCnt, sM, sleep, issued=False):
    n = len(loads)
    if not issued:
        for x in loads: A(x)
    A(f"s_mov_b32 {s(sCnt)}, 0")
    A(f"L_poll_{uid}:")
    A("s_waitcnt vmcnt(0)")
    for k in range(n): A(f"v_cmp_ne_u32 {s(sM+2*k,2)}, {s(sT)}, {v(tagregs[k])}")
    if n == 1: A(f"s_cmp_eq_u64 {s(sM,2)}, 0"); A(f"s_cbranch_scc1 L_polled_{uid}")
    else:
        A(f"s_or_b64 vcc, {s(sM,2)}, {s(sM+2,2)}")
        for k in range(2, n): A(f"s_or_b64 vcc, vcc, {s(sM+2*k,2)}")
        A(f"s_cbranch_scc0 L_polled_{uid}")
    bounded(A, sCnt, f"L_polled_{uid}")
    if sleep: A(f"s_sleep {sleep}")
    for k in range(n):
        A(f"s_mov_b64 exec, {s(sM+2*k,2)}"); A(f"s_cbranch_execz L_ps_{uid}_{k}")
        A(loads[k])
        A(f"L_ps_{uid}_{k}:")
    A("s_mov_b64 exec, -1")
    A(f"s_branch L_poll_{uid}")
    A(f"L_polled_{uid}:")

def lds_count_wait(A, uid, vAddr, off, n, vTmp, sTmp, sCnt, sleep=0):
    A(f"s_mov_b32 {s(sCnt)}, 0")
    A(f"L_lw_{uid}:")
    A(f"ds_read_b32 {v(vTmp)}, {v(vAddr)} offset:{off}")
    bounded(A, sCnt, f"L_lwx_{uid}", SPIN_MAX * 8)
    A("s_waitcnt lgkmcnt(0)")
    A(f"v_readfirstlane_b32 {s(sTmp)}, {v(vTmp)}")
    A(f"s_cmp_ge_u32 {s(sTmp)}, {n}"); A(f"s_cbranch_scc1 L_lwx_{uid}")
    if sleep: A(f"s_sleep {sleep}")
    A(f"s_branch L_lw_{uid}")
    A(f"L_lwx_{uid}:")
    A("s_waitcnt lgkmcnt(0)")

def code_prefetch(A, uid, sP, vA, vD, label, n, back=False):
    A(f"s_getpc_b64 {s(sP,2)}")
    A(f"L_pc_{uid}:")
    if back: A(f"s_sub_u32 {s(sP)}, {s(sP)}, L_pc_{uid}-{label}"); A(f"s_subb_u32 {s(sP+1)}, {s(sP+1)}, 0")
    else: A(f"s_add_u32 {s(sP)}, {s(sP)}, {label}-L_pc_{uid}"); A(f"s_addc_u32 {s(sP+1)}, {s(sP+1)}, 0")
    A(f"s_mov_b32 {s(sP+2)}, L_code_end-{label}"); A(f"s_mov_b32 {s(sP+3)}, 0x00020000")
    A(f"v_lshlrev_b32 {v(vA)}, 7, {v(vL)}")
    for k in range(n):
        if k: A(f"v_add_u32 {v(vA)}, 8192, {v(vA)}")
        A(f"buffer_load_dword {v(vD)}, {v(vA)}, {s(sP,4)}, 0 offen")

sX, sA, sE, sT, sKH, sNT, sLINE = 57, 58, 59, 60, 61, 62, 63
sGB, sTB, sM, sO1, sO2 = 64, 65, 70, 30, 31
C_GATE, C_PUB, C_WD, C_XS, C_PP, C_SLOW, C_ISS, C_TAG, C_FREE, C_GP = 260, 264, 268, 272, 276, 256, 280, 284, 288, 292

def aux_entry(A, O):
    A(f"s_and_b32 {s(sX)}, s2, 7"); A(f"s_lshl_b32 {s(sA)}, {s(sX)}, 4"); A(f"s_add_u32 {s(sA)}, {s(sA)}, s3")
    A(f"s_cmp_ge_u32 {s(sW)}, 4"); A("s_cbranch_scc1 L_aux_sinit")
    A(f"s_lshl_b32 s36, {s(sA)}, 2"); A(f"s_add_u32 s36, s36, {s(sW)}"); A("s_lshl_b32 s36, s36, 13"); A("s_add_u32 s36, s36, 4096")
    A(f"v_lshlrev_b32 v28, 4, {v(vL)}"); A("v_add_u32 v30, s36, v28")
    A("s_waitcnt lgkmcnt(0)")
    for k in range(2): A(f"global_load_dwordx4 {v(64+4*k,4)}, v28, {s(PWR,2)} offset:{1024*k}")
    for k in range(8): A(f"global_load_dwordx4 {v(32+4*k,4)}, v30, {s(PX_,2)} offset:{1024*k-4096}{' nt' if O.row_nt else ''}")
    A(f"s_load_dword {s(sE)}, {s(PWS,2)}, 0")

def tile_map(A):
    A(f"s_and_b32 {s(sKH)}, s3, 1"); A("s_lshr_b32 s6, s3, 1")
    A(f"s_add_u32 s7, {s(sX)}, 3"); A("s_and_b32 s7, s7, 7")
    A("s_cmp_eq_u32 s7, 7"); A("s_cselect_b32 s8, 7, 6")
    A("s_add_u32 s9, s6, 1"); A("s_cmp_eq_u32 s9, s8"); A("s_cselect_b32 s9, 0, s9")
    A("s_cmp_ge_u32 s9, s7"); A("s_addc_u32 s9, s9, 0")
    A("s_cmp_ge_u32 s6, s7"); A("s_addc_u32 s10, s6, 0")
    A("s_cmp_eq_u32 s7, 7"); A(f"s_cselect_b32 {s(sNT)}, 0, 1")
    A("s_cmp_lt_u32 s6, s8"); A(f"s_cselect_b32 {s(sNT)}, 2, {s(sNT)}"); A("s_cselect_b32 s10, s10, s7")
    A("s_cselect_b32 s11, 0, s6"); A("s_and_b32 s11, s11, 1")
    A("s_cmp_ge_u32 s3, 3"); A(f"s_addc_u32 {s(sLINE)}, s3, 0"); A("s_cmp_ge_u32 s3, 10"); A(f"s_addc_u32 {s(sLINE)}, {s(sLINE)}, 0")
    A("s_sub_u32 s12, s6, s8"); A("s_cmp_eq_u32 s12, 1"); A(f"s_cselect_b32 {s(sLINE)}, s3, {s(sLINE)}")
    A(f"s_lshl_b32 s13, {s(sKH)}, 3"); A("s_add_u32 s13, s13, 3"); A("s_cmp_eq_u32 s12, 0"); A(f"s_cselect_b32 {s(sLINE)}, s13, {s(sLINE)}")
    A(f"s_mul_i32 {s(sGB)}, {s(sX)}, 57344"); A(f"s_add_u32 {s(sGB)}, {s(sGB)}, {WS_G}")

def gen_aux(A, O):
    L = Lgkm(A); ST = Stamper(A, O.stamps)
    def common_init():
        A(f"v_and_b32 {v(vI)}, 15, v0"); A(f"v_bfe_u32 {v(vG)}, v0, 4, 2")
        A(f"v_mov_b32 v22, {CTL}"); A("v_mov_b32 v23, 1")
        mk_srd(A, 40, PWS, WS_SIZE)
        tile_map(A)
    def tagbytes():
        for k in range(4): A(f"s_bfe_u32 {s(sTB+k)}, {s(sT)}, {hex(8*k | (8 << 16))}")
    if O.prio & 1: A("s_setprio 2")
    if O.stamps: A(f"s_mov_b32 s72, s95"); ST.n = 1
    X, W = 32, 64
    mk_srd(A, 36, PX_, SIZE["x"]); mk_srd(A, 52, PWD, SIZE["wd"])
    common_init()
    A("s_barrier")
    A(f"s_lshl_b32 s6, {s(sA)}, 5"); A(f"s_add_u32 s6, s6, {WS_STATS}")
    A(f"v_bfe_u32 v11, {v(vL)}, 1, 2"); A("v_lshlrev_b32 v11, 12, v11"); A(f"v_and_b32 v10, 1, {v(vL)}"); A("v_lshl_add_u32 v11, v10, 4, v11")
    A("v_add_u32 v11, s6, v11")
    A(f"s_and_b32 s6, {s(sW)}, 1"); A("s_lshl_b32 s6, s6, 6"); A(f"s_lshr_b32 s7, {s(sW)}, 1"); A("s_lshl_b32 s7, s7, 4")
    A("s_add_u32 s6, s6, s7"); A(f"s_add_u32 s6, s6, {CTL+320}")
    A(f"v_lshlrev_b32 v10, 5, {v(vG)}"); A("v_add_u32 v10, s6, v10")
    A(f"v_lshl_add_u32 v9, {v(vL)}, 4, v22")
    A("s_mov_b32 s8, 0x3f803f80")
    S1, S2, S3, SW = 72, 76, 80, 84
    def dot(d, x, y, first):
        A(f"v_dot2_f32_bf16 {v(d)}, {x}, {v(y)}, 0" if first else f"v_dot2c_f32_bf16 {v(d)}, {x}, {v(y)}")
    A("s_waitcnt vmcnt(8)")
    for k in range(8): dot(SW + (k & 1), "s8", W + k, k < 2)
    for r in range(4):
        A(f"s_waitcnt vmcnt({6-2*r})")
        if r == 3: ST()
        for k in range(8):
            x = X + 8 * r + k
            dot(S1 + r, "s8", x, k == 0); dot(S2 + r, v(x), x, k == 0); dot(S3 + r, v(W + k), x, k == 0)
        if r == 0: A(f"v_add_f32 {v(SW)}, {v(SW)}, {v(SW+1)}")
        if r == 1: A(f"v_mov_b32 {v(SW+1)}, {v(SW)}")
    pairs = [(SW, SW + 1)] + [(q + r, q + r + 1) for r in (0, 2) for q in (S1, S2, S3)]
    for p, q in pairs: A(f"v_permlane32_swap_b32 {v(p)}, {v(q)}")
    for p, q in pairs: A(f"v_add_f32 {v(p)}, {v(p)}, {v(q)}")
    A(f"v_mov_b32 {v(SW+2)}, {v(SW)}")
    R4 = (S1, S2, S3, SW)
    for p in R4: A(f"v_permlane16_swap_b32 {v(p)}, {v(p+2)}")
    for p in R4: A(f"v_add_f32 {v(p)}, {v(p)}, {v(p+2)}")
    for n in (8, 4, 2, 1):
        for p in R4: A(dpp("v_add_f32", p, p, p, f"row_ror:{n}"))
    MEAN, VAR, T, MB, RS = 42, 43, 44, 45, 46
    A("s_waitcnt lgkmcnt(0)")
    tag_from_epoch(A, sE, sT)
    A(f"v_mul_f32 {v(MEAN)}, {f32bits(1/1024)}, {v(S1)}")
    A(f"v_mul_f32 {v(VAR)}, {f32bits(1/1024)}, {v(S2)}")
    A(f"v_fma_f32 {v(VAR)}, -{v(MEAN)}, {v(MEAN)}, {v(VAR)}")
    A(f"v_max_f32 {v(VAR)}, 0, {v(VAR)}")
    A(f"v_cvt_pk_bf16_f32 {v(MEAN)}, {v(MEAN)}, {v(VAR)}")
    A(f"v_and_b32 {v(VAR)}, {MASKHI}, {v(MEAN)}")
    A(f"v_lshlrev_b32 {v(MB)}, 16, {v(MEAN)}")
    A(f"v_add_f32 {v(VAR)}, {f32bits(1e-5)}, {v(VAR)}")
    A(f"v_cvt_pk_bf16_f32 {v(VAR)}, {v(VAR)}, {v(VAR)}")
    A(f"v_and_b32 {v(VAR)}, {MASKHI}, {v(VAR)}")
    A(f"v_sqrt_f32 {v(VAR)}, {v(VAR)}")
    A(f"v_fma_f32 {v(T)}, -{v(MB)}, {v(SW)}, {v(S3)}")
    A(f"v_cvt_pk_bf16_f32 v60, {v(MB)}, {v(VAR)}")
    A(f"v_and_b32 {v(VAR)}, {MASKHI}, v60")
    A(f"v_rcp_f32 {v(RS)}, {v(VAR)}")
    A("v_mov_b32 v61, v60")
    A(f"v_mul_f32 {v(T)}, {v(T)}, {v(RS)}")
    A(f"v_cvt_pk_bf16_f32 v64, {v(T)}, {v(T)}")
    A("v_ashrrev_i32 v65, 31, v64"); A("v_or_b32 v65, 0x80000000, v65"); A("v_xor_b32 v64, v64, v65")
    A("v_permlane32_swap_b32 v60, v61")
    A("v_lshrrev_b32 v64, 16, v64"); A(f"v_mov_b32 v63, {s(sT)}"); A("v_mov_b32 v65, v64")
    A("v_permlane32_swap_b32 v64, v65")
    A("v_lshl_or_b32 v62, v65, 16, v64")
    A("s_mov_b64 exec, 0x10001")
    A("ds_write_b128 v10, v[60:63]")
    A("s_mov_b64 exec, 1"); A(f"ds_add_rtn_u32 v13, v22, v23 offset:{C_PUB}")
    A("s_mov_b64 exec, 0xff"); A("ds_read_b128 v[60:63], v9 offset:320")
    A("s_waitcnt lgkmcnt(0)")
    A("v_readfirstlane_b32 s6, v13"); A("s_cmp_lg_u32 s6, 3"); A("s_cbranch_scc1 L_aux_nopub")
    A("buffer_store_dwordx4 v[60:63], v11, s[40:43], 0 offen sc1")
    A(f"ds_write_b32 v22, v63 offset:{C_TAG}"); A(f"ds_write_b32 v22, v23 offset:{C_GATE}")
    A("L_aux_nopub:")
    A("s_mov_b64 exec, -1")
    ST()
    tagbytes()
    A(f"s_cmp_lg_u32 {s(sA)}, {4*16+14}"); A("s_cbranch_scc1 L_aux_cons")
    GR, KY, RI = 64, 80, 88
    A(f"v_lshlrev_b32 v12, 4, v0"); A(f"v_add_u32 v12, {WS_STATS}, v12")
    A("v_lshlrev_b32 v13, 3, v0"); A("v_sub_u32 v13, 0x800, v13")
    for k in range(8): A(f"v_subrev_u32 {v(RI+k)}, {k}, v13")
    A("s_mov_b32 s6, 4096"); A("s_mov_b32 s7, 8192"); A("s_mov_b32 s8, 12288"); A(f"s_mov_b32 s9, {MASKHI}")
    A("v_lshrrev_b32 v24, 4, v0"); A("v_lshl_add_u32 v24, v24, 2, v22")
    A(f"v_lshl_add_u32 v25, {v(vI)}, 2, v22")
    A(f"v_and_b32 v26, 31, {v(vL)}"); A("v_lshl_add_u32 v26, v26, 2, v22")
    A(f"v_lshrrev_b32 v27, 5, {v(vL)}"); A("v_lshl_add_u32 v27, v27, 6, v22")
    A(f"s_lshl_b32 s10, {s(sW)}, 5"); A(f"s_add_u32 s10, s10, {CTL+64}")
    A(f"v_lshl_add_u32 v31, {v(vL)}, 2, s10")
    A("v_lshlrev_b32 v9, 5, v0")
    if O.aux_first_sleep: A(f"s_sleep {O.aux_first_sleep}")
    so = ["0", "s6", "s7", "s8"]
    poll_masked(A, "aux", [f"buffer_load_dwordx4 {v(GR+4*k,4)}, v12, s[40:43], {so[k]} offen sc1" for k in range(4)],
                [GR + 4 * k + 3 for k in range(4)], sT, 11, 12, O.poll_sleep)
    ST()
    for k in range(4):
        A(f"v_lshl_or_b32 {v(KY+2*k)}, {v(GR+4*k+2)}, 16, {v(RI+2*k)}")
        A(f"v_and_or_b32 {v(KY+2*k+1)}, {v(GR+4*k+2)}, s9, {v(RI+2*k+1)}")
    M1, M2, M3 = 14, 15, 16
    A(f"v_max3_u32 v17, {v(KY)}, {v(KY+1)}, {v(KY+2)}"); A(f"v_max3_u32 v18, {v(KY+3)}, {v(KY+4)}, {v(KY+5)}")
    A(f"v_max3_u32 v17, v17, {v(KY+6)}, {v(KY+7)}"); A("v_max_u32 v17, v17, v18")
    net = [f"v_max_u32 {v(M1)}, {v(KY)}, {v(KY+1)}", f"v_min_u32 {v(M2)}, {v(KY)}, {v(KY+1)}", f"v_mov_b32 {v(M3)}, 0"]
    for k in range(2, 8):
        net += [f"v_med3_u32 {v(M3)}, {v(M2)}, {v(M3)}, {v(KY+k)}", f"v_med3_u32 {v(M2)}, {v(M1)}, {v(M2)}, {v(KY+k)}",
                f"v_max_u32 {v(M1)}, {v(M1)}, {v(KY+k)}"]
    for n in (8, 4, 2, 1):
        A(net.pop(0)); A(net.pop(0)); A(dpp("v_max_u32", 17, 17, 17, f"row_ror:{n}"))
    A("ds_write_b32 v24, v17")
    A("ds_read_b32 v17, v25")
    for k in range(4): A(f"ds_write_b64 v9, {v(GR+4*k,2)} offset:{8*k}")
    A.ext(net)
    A("v_mov_b32 v19, 0"); A("s_mov_b32 s11, 0")
    A("s_waitcnt lgkmcnt(4)")
    A("L_aux_gm:")
    A("v_cmp_eq_u32 vcc, 0, v17"); A("s_cbranch_vccz L_aux_gmok")
    A("ds_read_b32 v17, v25")
    A("s_waitcnt lgkmcnt(0)")
    bounded(A, 11, "L_aux_gmok", SPIN_MAX * 8); A("s_branch L_aux_gm")
    A("L_aux_gmok:")
    ST()
    for n in range(1, 16):
        A(f"v_sub_co_u32_dpp v20, vcc, v17, v17 row_ror:{n} row_mask:0xf bank_mask:0xf")
        A.raw("v_addc_co_u32 v19, vcc, 0, v19, vcc ; nohaz")
    A("v_cmp_eq_u32 vcc, 8, v19"); A("s_ff1_i32_b64 s12, vcc"); A("v_readlane_b32 s12, v17, s12")
    A("v_mov_b32 v18, 1")
    A(f"v_cmp_le_u32 s[14:15], s12, {v(M1)}"); A(f"v_cmp_le_u32 s[16:17], s12, {v(M2)}"); A(f"v_cmp_le_u32 s[18:19], s12, {v(M3)}")
    A("s_bcnt1_i32_b64 s12, s[14:15]"); A("s_bcnt1_i32_b64 s20, s[16:17]")
    A("v_mbcnt_lo_u32_b32 v20, s14, 0"); A("v_mbcnt_lo_u32_b32 v21, s16, 0")
    A("v_mbcnt_hi_u32_b32 v20, s15, v20"); A("v_mbcnt_hi_u32_b32 v21, s17, v21")
    A("s_add_u32 s20, s20, s12"); A("s_lshl_b32 s12, s12, 2"); A("s_add_u32 s12, s12, s10")
    A("v_lshl_add_u32 v20, v20, 2, s10"); A("v_lshl_add_u32 v21, v21, 2, s12")
    A("s_cmp_lg_u64 s[18:19], 0"); A("s_cselect_b32 s20, 9, s20"); A("s_cmp_gt_u32 s20, 8"); A("s_cbranch_scc0 L_aux_fit")
    A("s_mov_b64 s[14:15], 0"); A("s_mov_b64 s[16:17], 0"); A("s_mov_b32 s20, 0"); A("v_mov_b32 v18, 2")
    A("L_aux_fit:")
    A("s_lshl_b32 s20, 0xff, s20"); A("s_and_b32 s20, s20, 0xff"); A("s_mov_b32 s21, 0")
    A("s_mov_b64 exec, s[14:15]"); A(f"ds_write_b32 v20, {v(M1)}")
    A("s_mov_b64 exec, s[16:17]"); A(f"ds_write_b32 v21, {v(M2)}")
    A("s_mov_b64 exec, s[20:21]"); A("ds_write_b32 v31, v18")
    A("s_mov_b64 exec, -1")
    LS = 64
    A("s_mov_b32 s11, 0"); A("v_mov_b32 v20, 0")
    A("L_aux_ls:")
    A("ds_read_b32 v17, v26 offset:64")
    for k in range(4): A(f"ds_read_b128 {v(LS+4*k,4)}, v27 offset:{64+16*k}")
    A("s_waitcnt lgkmcnt(4)")
    A("v_cmp_eq_u32 vcc, 0, v17"); A("s_cbranch_vccz L_aux_lsok")
    A("s_waitcnt lgkmcnt(0)")
    bounded(A, 11, "L_aux_lsok", SPIN_MAX * 8); A("s_branch L_aux_ls")
    A("L_aux_lsok:")
    A("v_cmp_eq_u32 vcc, 2, v17"); A("s_cbranch_vccnz L_aux_slow")
    A(f"s_cmp_ge_u32 {s(sW)}, 2"); A("s_cbranch_scc1 L_aux_wd")
    A(f"s_cmp_eq_u32 {s(sW)}, 1"); A("s_cbranch_scc1 L_aux_nox")
    A("v_and_b32 v60, 0xfff, v17"); A("v_sub_u32 v60, 0x800, v60")
    A("v_lshlrev_b32 v15, 2, v60"); A("ds_read_b32 v62, v15")
    for k in range(16):
        if k % 4 == 0: A(f"s_waitcnt lgkmcnt({4-k//4})")
        A(f"v_cmp_gt_u32 vcc, {v(LS+k)}, v17")
        A.raw("v_addc_co_u32 v20, vcc, 0, v20, vcc ; nohaz")
    sig = [f"v_and_b32 v14, {MASKHI}, v17", "v_ashrrev_i32 v15, 31, v14", "v_not_b32 v15, v15", "v_or_b32 v15, 0x80000000, v15",
           "v_xor_b32 v14, v14, v15", f"v_and_b32 v14, {MASKHI}, v14", f"v_mul_f32 v14, {f32bits(-LOG2E)}, v14", "v_exp_f32 v14, v14",
           f"v_mov_b32 v63, {s(sT)}", "v_add_f32 v14, 1.0, v14", "v_rcp_f32 v14, v14"]
    A("v_mov_b32 v21, v20"); A(sig[0]); A(sig[1]); A("v_permlane32_swap_b32 v20, v21"); A(sig[2]); A("v_add_u32 v20, v20, v21")
    A.ext(sig[3:])
    A("L_aux_sel:")
    A("v_cmp_gt_u32 vcc, 8, v20"); A("v_lshlrev_b32 v21, 4, v20"); A(f"v_add_u32 v21, {WS_SEL}, v21")
    A("v_cvt_pk_bf16_f32 v14, v14, v14"); A(f"v_and_b32 v61, {MASKHI}, v14")
    A("s_mov_b32 exec_lo, vcc_lo"); A("s_mov_b32 exec_hi, 0")
    A("s_waitcnt lgkmcnt(0)")
    A("buffer_store_dwordx4 v[60:63], v21, s[40:43], 0 offen sc1")
    A("s_mov_b64 exec, -1")
    ST()
    A("L_aux_nox:")
    signal(A, 22, 23, C_WD)
    A("s_branch L_aux_b4")
    A("L_aux_cons:")
    A(f"s_cmp_ge_u32 {s(sW)}, 2"); A("s_cbranch_scc1 L_aux_wd")
    A(f"s_cmp_eq_u32 {s(sNT)}, 0"); A("s_cbranch_scc1 L_aux_nox")
    SE = 60
    A(f"v_and_b32 v14, 7, {v(vL)}"); A("v_lshlrev_b32 v21, 4, v14"); A(f"v_add_u32 v21, {WS_SEL}, v21"); A("v_lshl_add_u32 v15, v14, 2, v22")
    A(f"s_mul_i32 s6, {s(sW)}, {4*XST}"); A(f"s_add_u32 s6, s6, {XS}"); A(f"s_lshl_b32 s7, {s(sKH)}, 10"); A(f"s_lshl_b32 s9, {s(sW)}, 2")
    if O.sel_first_sleep: A(f"s_sleep {O.sel_first_sleep}")
    A("s_mov_b64 exec, 0xff"); A("s_mov_b32 s11, 0")
    A("L_aux_sp:")
    A(f"buffer_load_dwordx4 {v(SE,4)}, v21, s[40:43], 0 offen sc1")
    A("s_waitcnt vmcnt(0)")
    A(f"v_cmp_ne_u32 vcc, {s(sT)}, {v(SE+3)}"); A("s_cbranch_vccz L_aux_spok")
    bounded(A, 11, "L_aux_spok")
    if O.poll_sleep: A(f"s_sleep {O.poll_sleep}")
    A("s_branch L_aux_sp")
    A("L_aux_spok:")
    A(f"v_lshl_add_u32 {v(SE)}, {v(SE)}, 11, s7")
    A(f"ds_write_b32 v15, {v(SE+2)} offset:192")
    A("s_mov_b64 exec, -1")
    ST.n -= 3; ST()
    for t in range(4):
        A(f"v_readlane_b32 {s(12+t)}, {v(SE)}, s9")
        if t < 3: A("s_add_u32 s9, s9, 1")
    for t in range(4):
        A(f"s_add_u32 m0, s6, {XST*t}")
        A(f"buffer_load_dwordx4 v28, s[36:39], {s(12+t)} offen lds")
    A("s_mov_b64 exec, 1"); A(f"ds_add_u32 v22, v23 offset:{C_WD}")
    ST()
    A("s_waitcnt vmcnt(0)")
    A(f"ds_add_u32 v22, v23 offset:{C_XS}"); A("s_mov_b64 exec, -1")
    ST()
    A("s_branch L_aux_b4")
    A("L_aux_wd:")
    A(f"s_mul_i32 s6, {s(sX)}, {448*2048}"); A(f"s_lshl_b32 s7, {s(sLINE)}, 7"); A("s_add_u32 s6, s6, s7")
    A(f"s_and_b32 s7, {s(sW)}, 1"); A("s_lshl_b32 s8, s7, 14"); A("s_add_u32 s6, s6, s8")
    A(f"v_lshrrev_b32 v14, 3, {v(vL)}"); A(f"v_and_b32 v15, 7, {v(vL)}"); A(f"v_xor_b32 v15, v15, {v(vG)}")
    A("s_lshl_b32 s8, s7, 2"); A("v_xor_b32 v15, s8, v15")
    A("v_lshlrev_b32 v14, 11, v14"); A("v_lshl_add_u32 v14, v15, 4, v14"); A("v_add_u32 v14, s6, v14")
    A("s_lshl_b32 s7, s7, 10")
    if O.prio & 1: A("s_setprio 0")
    WD = 128
    def wd(lo, hi):
        for i in range(lo, hi):
            A(f"s_mov_b32 s6, {32768*i}")
            A(f"buffer_load_dwordx4 {v(WD+4*i,4)}, v14, s[52:55], s6 offen{' nt' if O.wd_nt else ''}")
    A(f"v_lshl_add_u32 v20, {v(vL)}, 4, s7"); A("v_add_u32 v21, 0x10000, v20")
    if O.wd_early:
        A(f"s_and_b32 s8, {s(sLINE)}, 7"); A("s_cmp_eq_u32 s8, 3"); A(f"s_cselect_b32 s8, {s(sNT)}, 0"); A("s_cmp_lg_u32 s8, 1"); A("s_cbranch_scc1 L_aux_wdl")
        lds_count_wait(A, "iss", 22, C_ISS, 4, 18, 8, 11, 1)
        wd(0, O.wd_early)
        lds_count_wait(A, "wd2", 22, C_WD, 2, 18, 8, 11)
        A("s_branch L_aux_wdr")
        A("L_aux_wdl:")
    lds_count_wait(A, "wd", 22, C_WD, 2, 18, 8, 11)
    wd(0, O.wd_early)
    A("L_aux_wdr:")
    wd(O.wd_early, 28)
    lds_count_wait(A, "gp", 22, C_GP, 4, 18, 8, 11, 1)
    for i in range(28):
        if i % 4 == 0: A(f"s_waitcnt vmcnt({24-i})")
        A(f"ds_write_b128 {v(20+(i>>4))}, {v(WD+4*i,4)} offset:{32768*((i>>3)&1) + 2048*(i&7)}")
    A("s_waitcnt lgkmcnt(0)")
    A("s_branch L_aux_b5")
    A("L_aux_sinit:")
    ST.n = 0
    if O.stamps: A(f"s_mov_b32 s72, s95"); ST.n = 1
    A(f"v_mov_b32 v98, {CTL}"); A("v_mov_b32 v96, 0"); A("v_mov_b32 v97, 0"); A(f"v_lshl_add_u32 v98, {v(vL)}, 3, v98")
    A("ds_write_b64 v98, v[96:97]")
    A("v_mov_b32 v96, 0x3f803f80"); A("v_and_b32 v98, 255, v0"); A(f"v_lshlrev_b32 v98, 2, v98"); A(f"v_add_u32 v98, {XS+8*XST}, v98")
    A("ds_write_b32 v98, v96")
    A("s_waitcnt lgkmcnt(0)")
    common_init()
    A("s_cmp_eq_u32 s11, 1"); A(f"s_cselect_b64 s[44:45], {s(PWU,2)}, {s(PWG,2)}"); A(f"s_mov_b32 s46, {SIZE['wg']}"); A("s_mov_b32 s47, 0x00020000")
    mk_srd(A, 48, PWU, SIZE["wu"])
    A(f"s_lshl_b32 s12, {s(sKH)}, 1"); A("s_add_u32 s13, s12, s11"); A("s_mul_i32 s13, s13, 14336"); A(f"s_lshl_b32 {s(sO1)}, s10, 11"); A(f"s_add_u32 {s(sO1)}, {s(sO1)}, s13")
    A("s_add_u32 s13, s12, 1"); A("s_mul_i32 s13, s13, 14336"); A(f"s_lshl_b32 {s(sO2)}, s9, 11"); A(f"s_add_u32 {s(sO2)}, {s(sO2)}, s13")
    A(f"v_bfe_u32 v96, {v(vL)}, 3, 2"); A(f"v_lshrrev_b32 v97, 5, {v(vL)}"); A("v_lshl_add_u32 v96, v97, 3, v96")
    A("v_mul_u32_u24 v96, 7168, v96")
    A(f"v_lshlrev_b32 v98, 1, {v(vG)}"); A(f"v_and_b32 v94, 7, {v(vL)}"); A("v_xor_b32 v98, v98, v94")
    A(f"s_mul_i32 s12, {s(sX)}, 896"); A("s_lshl_b32 s10, s10, 7"); A("s_lshl_b32 s9, s9, 7"); A("s_add_u32 s10, s10, s12"); A("s_add_u32 s9, s9, s12")
    A("v_lshl_add_u32 v96, v98, 4, v96"); A("v_add_u32 v97, s9, v96"); A("v_add_u32 v96, s10, v96")
    sRG, sRW = 32, 33
    A(f"s_sub_u32 {s(sRG)}, {s(sW)}, 4"); A(f"s_lshl_b32 {s(sRW)}, {s(sKH)}, 2"); A(f"s_add_u32 {s(sRW)}, {s(sRW)}, {s(sRG)}"); A(f"s_mul_i32 {s(sRW)}, {s(sRW)}, {128*7168}")
    A(f"s_lshl_b32 {s(sRG)}, {s(sRG)}, 15")
    A("s_barrier")
    def gate(uid):
        lds_count_wait(A, uid, 22, C_GATE, 1, 18, 8, 11, 1)
        A(f"ds_read_b32 v18, v22 offset:{C_TAG}"); A("s_waitcnt lgkmcnt(0)"); A(f"v_readfirstlane_b32 {s(sT)}, v18")
    A(f"s_cmp_eq_u32 {s(sNT)}, 0"); A("s_cbranch_scc1 L_aux_idle")
    ST()
    assert O.n0 <= 16
    def dma(j):
        o, ks, h, gh = j >> 4, (j >> 2) & 3, (j >> 1) & 1, j & 1
        A(f"s_add_u32 s6, {s(sRW)}, {(32*ks + 16*gh + 4*h)*7168}")
        A(f"s_add_u32 m0, {s(sRG)}, {16384*(1-o) + 1024*(4*ks+2*h+gh)}")
        A(f"buffer_load_dwordx4 {v(96+o)}, {s(44+4*o,4)}, s6 offen{' nt' if O.w_nt else ''} lds")
    for j in range(O.n0): dma(j)
    gate("st")
    for j in range(O.n0, 16): dma(j)
    A(f"s_cmp_eq_u32 {s(sNT)}, 1"); A("s_cbranch_scc1 L_aux_one1")
    for j in range(16, 32): dma(j)
    A("L_aux_one1:")
    signal(A, 22, 23, C_ISS)
    ST()
    tagbytes()
    A(f"v_bfe_u32 v14, {v(vL)}, 2, 3"); A("v_lshrrev_b32 v15, 1, v14"); A("v_lshlrev_b32 v14, 7, v14")
    A(f"v_lshrrev_b32 v13, 5, {v(vL)}"); A("v_lshl_add_u32 v14, v13, 10, v14")
    A(f"v_and_b32 v13, 3, {v(vL)}"); A("v_lshl_add_u32 v14, v13, 3, v14"); A(f"v_add_u32 v14, {s(sRG)}, v14")
    for ct in range(4):
        A(f"v_xor_b32 v13, {ct}, v15"); A(f"v_lshl_add_u32 {v(24+ct)}, v13, 5, v14")
    A(f"v_min_u32 v20, 8, {v(vI)}"); A(f"v_mul_u32_u24 v20, {XST}, v20"); A(f"v_lshl_add_u32 v20, {v(vG)}, 4, v20")
    A(f"s_lshr_b32 s6, {s(sRG)}, 7"); A(f"s_add_u32 s6, s6, {XS}"); A("v_add_u32 v20, s6, v20")
    A(f"v_lshlrev_b32 v19, 6, {v(vI)}"); A(f"v_lshl_add_u32 v19, {v(vG)}, 4, v19")
    A(f"s_lshr_b32 s6, {s(sRG)}, 11"); A(f"s_add_u32 s6, s6, {s(sRG)}"); A(f"s_add_u32 s6, s6, {PART}"); A("v_add_u32 v19, s6, v19")
    A(f"v_and_b32 v242, 7, {v(vL)}"); A(f"v_lshl_add_u32 v243, v242, 2, v22")
    A(f"v_bfe_u32 v241, {v(vL)}, 3, 2"); A("v_mul_u32_u24 v241, 32784, v241")
    A(f"v_lshrrev_b32 v240, 5, {v(vL)}"); A("v_lshl_add_u32 v241, v240, 12, v241")
    A(f"s_lshr_b32 s6, {s(sRG)}, 11"); A(f"s_add_u32 s6, s6, {PART}"); A("v_add_u32 v241, s6, v241")
    A(f"s_sub_u32 s6, {s(sO2)}, {s(sO1)}"); A("v_mul_i32_i24 v244, s6, v240"); A("v_lshl_add_u32 v244, v242, 4, v244")
    A(f"v_bfe_u32 v240, {v(vL)}, 4, 1"); A("v_lshl_add_u32 v244, v240, 9, v244")
    A(f"v_bfe_u32 v240, {v(vL)}, 3, 1"); A("v_lshl_add_u32 v244, v240, 10, v244")
    A(f"s_lshr_b32 s6, {s(sRG)}, 8"); A(f"s_add_u32 s6, s6, {s(sO1)}"); A(f"s_add_u32 s6, s6, {s(sGB)}"); A("v_add_u32 v244, s6, v244")
    A("v_lshl_add_u32 v242, v242, 6, v241")
    A("v_mov_b32 v245, 0xffffff00")
    A(f"v_cmp_eq_u32 {s(sM,2)}, 1, v240")
    XB_, AW, DD = 32, 64, 192
    aw = lambda t, ks: AW + 4 * (ks * 8 + t)
    def trs(o, ks):
        for t in range(4 * o, 4 * o + 4):
            for h in range(2): A(f"ds_read_b64_tr_b16 {v(aw(t,ks)+2*h,2)}, {v(24+(t&3))} offset:{16384*(1-o)+4096*ks+2048*h}")
    A(f"s_cmp_eq_u32 {s(sNT)}, 1"); A("s_cbranch_scc1 L_aux_one2")
    for o in range(2):
        for ks in range(4):
            A(f"s_waitcnt vmcnt({28-16*o-4*ks})"); trs(o, ks)
    A("s_branch L_aux_two2")
    A("L_aux_one2:")
    for ks in range(4):
        A(f"s_waitcnt vmcnt({12-4*ks})"); trs(0, ks)
    A("L_aux_two2:")
    A("s_waitcnt lgkmcnt(0)")
    ST(); ST()
    lds_count_wait(A, "xs", 22, C_XS, 2, 18, 8, 11)
    ST()
    P, MM = 64, 24
    L.issue(f"ds_read_b32 v28, v243 offset:192")
    for ks in range(4): L.issue(f"ds_read_b128 {v(XB_+4*ks,4)}, v20 offset:{64*ks}", ("x", ks))
    def mm(t):
        for ks in range(4):
            L.need(("x", ks))
            A(f"v_mfma_f32_16x16x32_bf16 {v(DD+4*t,4)}, {v(aw(t,ks),4)}, {v(XB_+4*ks,4)}, {v(DD+4*t,4) if ks else 0}")
    wr = lambda t: A(f"ds_write_b128 v19, {v(DD+4*t,4)} offset:{1024*t}")
    for t in range(4):
        mm(t)
        if t == 0 and O.exp & 8192: ST.n -= 2; ST(); ST.n += 1
        if t >= 2: wr(t - 2)
    A(f"s_cmp_eq_u32 {s(sNT)}, 1"); A("s_cbranch_scc1 L_aux_one3")
    for t in range(4, 8):
        mm(t); wr(t - 2)
    wr(6); wr(7)
    A("s_branch L_aux_two3")
    A("L_aux_one3:")
    A("s_nop 7")
    wr(2); wr(3)
    A("L_aux_two3:")
    signal(A, 22, 23, C_PP)
    A(f"v_and_b32 {v(MM+1)}, {MASKHI}, v28"); A(f"v_lshlrev_b32 {v(MM)}, 16, v28"); A(f"v_rcp_f32 {v(MM+1)}, {v(MM+1)}")
    ST()
    lds_count_wait(A, "pp", 22, C_PP, 4, 18, 8, 11)
    L.q = []
    for u in range(2):
        b = P + 16 * u
        L.issue(f"ds_read_b128 {v(b,4)}, v242 offset:{1024*u}", u); L.issue(f"ds_read_b128 {v(b+8,4)}, v241 offset:{512+1024*u}", u)
        L.issue(f"ds_read_b128 {v(b+4,4)}, v242 offset:{2048+1024*u}", u); L.issue(f"ds_read_b128 {v(b+12,4)}, v241 offset:{2560+1024*u}", u)
    A(f"s_cmp_eq_u32 {s(sNT)}, 1"); A("s_cselect_b32 s6, 0, -1")
    for u in range(2):
        b = P + 16 * u
        L.need(u)
        for q in range(4):
            A(f"v_pk_fma_f32 {v(b+2*q,2)}, {v(b+8+2*q,2)}, {v(MM,2)}, {v(b+2*q,2)} op_sel:[0,0,0] op_sel_hi:[1,0,1] neg_lo:[1,0,0] neg_hi:[1,0,0]")
        for k in range(4): A(f"v_cndmask_b32 {v(b+8+k)}, {v(b+4+k)}, {v(b+k)}, {s(sM,2)}")
        for k in range(4): A(f"v_cndmask_b32 {v(b+k)}, {v(b+k)}, {v(b+4+k)}, {s(sM,2)}")
        for k in range(4): A(dpp("v_add_f32", b+k, b+8+k, b+k, "row_ror:8"))
    for k in range(4): A(f"v_permlane16_swap_b32 {v(P+k)}, {v(P+16+k)}")
    for q in range(2): A(f"v_pk_add_f32 {v(P+2*q,2)}, {v(P+2*q,2)}, {v(P+16+2*q,2)}")
    for q in range(2): A(f"v_pk_mul_f32 {v(P+2*q,2)}, {v(P+2*q,2)}, {v(MM,2)} op_sel:[0,1] op_sel_hi:[1,1]")
    for k in range(4): A(f"v_and_or_b32 {v(P+k)}, {v(P+k)}, v245, {s(sTB+k)}")
    A("s_mov_b32 exec_hi, s6")
    A(f"buffer_store_dwordx4 {v(P,4)}, v244, s[40:43], 0 offen sc1")
    signal(A, 22, 23, C_GP)
    ST()
    A("s_branch L_aux_b5")
    A("L_aux_idle:")
    ST.n = 1
    for _ in range(7): ST()
    gate("id")
    tagbytes()
    signal(A, 22, 23, C_GP)
    A("s_branch L_aux_b5")
    A("L_aux_b4:")
    ST.n -= 2; ST(); ST()
    A("L_aux_b5:")
    A(f"v_bfe_u32 v11, {v(vL)}, 1, 1"); A(f"v_bfe_u32 v10, {v(vL)}, 2, 2"); A("v_lshl_add_u32 v10, v11, 2, v10"); A(f"v_lshl_add_u32 v10, {v(vG)}, 3, v10")
    A("v_bfe_u32 v11, v10, 1, 3"); A(f"v_xor_b32 v11, {s(sW)}, v11"); A("v_lshlrev_b32 v10, 7, v10"); A("v_lshl_add_u32 v10, v11, 4, v10")
    A(f"v_and_b32 v11, 1, {v(vL)}"); A("v_lshl_add_u32 v10, v11, 3, v10"); A("v_add_u32 v11, 0x10000, v10")
    A(f"v_lshl_add_u32 v14, v0, 4, {s(sGB)}")
    A(f"v_lshlrev_b32 v15, 3, {v(vL)}"); A(f"v_add_u32 v15, {XS}, v15"); A(f"s_lshl_b32 s6, {s(sW)}, 9"); A("v_add_u32 v16, s6, v15")
    for k in range(1, 8): A(f"s_mov_b32 {s(20+k)}, {7168*k}")
    A(f"s_mov_b32 s18, {f32bits(-LOG2E)}"); A("s_mov_b32 s16, 0"); A("v_mov_b32 v17, 0xff"); A("v_mov_b32 v245, 0xffffff00")
    A(f"s_lshl_b32 s6, {s(sLINE)}, 3"); A(f"s_add_u32 s6, s6, {s(sW)}"); A("s_lshl_b32 s6, s6, 3"); A(f"s_add_u32 s6, s6, {s(sX)}")
    A("s_lshl_b32 s6, s6, 8"); A(f"s_add_u32 s6, s6, {WS_Y}")
    A(f"v_lshlrev_b32 v12, 7, {v(vG)}"); A(f"v_lshl_add_u32 v12, {v(vI)}, 4, v12"); A("v_add_u32 v12, s6, v12")
    ST()
    A("s_barrier")
    ST()
    AWD, HB, GG = 64, 96, 128
    for i in range(14): L.issue(f"ds_read_b64_tr_b16 {v(AWD+2*i,2)}, {v(10+(i>>3))} offset:{32768*((i>>2)&1)+4096*(i&3)}")
    A(f"s_cmp_eq_u32 {s(sW)}, 7"); A("s_cbranch_scc1 L_aux_nohp")
    gld = [f"buffer_load_dwordx4 {v(GG+4*k,4)}, v14, s[40:43], {'0' if k == 0 else s(20+k)} offen sc1" for k in range(8)]
    if O.g_first_sleep: A(f"s_sleep {O.g_first_sleep}")
    for x in gld: A(x)
    A("L_aux_gp:")
    A("s_waitcnt vmcnt(0)")
    for k in range(4):
        for a_ in range(4): A(f"v_bitop3_b32 {v(32+4*a_+k)}, {v(GG+8*a_+k)}, {v(GG+8*a_+4+k)}, {s(sTB+k)} bitop3:0x7e")
    for a_ in range(4): A(f"v_or3_b32 {v(32+4*a_)}, {v(32+4*a_)}, {v(33+4*a_)}, {v(34+4*a_)}")
    for a_ in range(4): A(f"v_bitop3_b32 {v(32+4*a_)}, {v(32+4*a_)}, {v(35+4*a_)}, v17 bitop3:0xa8")
    for a_ in range(4): A(f"v_cmp_ne_u32 {s(6+2*a_,2)}, 0, {v(32+4*a_)}")
    A("s_or_b64 vcc, s[6:7], s[8:9]"); A("s_or_b64 s[14:15], s[10:11], s[12:13]"); A("s_or_b64 vcc, vcc, s[14:15]"); A("s_cbranch_scc0 L_aux_gok")
    bounded(A, 16, "L_aux_gok")
    if O.poll_sleep: A(f"s_sleep {O.poll_sleep}")
    for a_ in range(4):
        A(f"s_mov_b64 exec, {s(6+2*a_,2)}"); A(f"s_cbranch_execz L_aux_gs{a_}")
        A(gld[2*a_]); A(gld[2*a_+1])
        A(f"L_aux_gs{a_}:")
    A("s_mov_b64 exec, -1")
    A("s_branch L_aux_gp")
    A("L_aux_gok:")
    ST()
    gg = lambda j, it: GG + 4 * (2 * j + it)
    for it in range(2):
        for q in range(2): A(f"v_pk_add_f32 {v(gg(0,it)+2*q,2)}, {v(gg(0,it)+2*q,2)}, {v(gg(2,it)+2*q,2)}")
    for it in range(2):
        for q in range(2): A(f"v_pk_mul_f32 {v(gg(2,it)+2*q,2)}, {v(gg(0,it)+2*q,2)}, s[18:19] op_sel_hi:[1,0]")
    for it in range(2):
        for k in range(4): A(f"v_exp_f32 {v(gg(2,it)+k)}, {v(gg(2,it)+k)}")
        for q in range(2): A(f"v_pk_add_f32 {v(gg(1,it)+2*q,2)}, {v(gg(1,it)+2*q,2)}, {v(gg(3,it)+2*q,2)}")
    for it in range(2):
        for q in range(2): A(f"v_pk_add_f32 {v(gg(2,it)+2*q,2)}, {v(gg(2,it)+2*q,2)}, 1.0 op_sel_hi:[1,0]")
    for it in range(2):
        for k in range(4): A(f"v_rcp_f32 {v(gg(2,it)+k)}, {v(gg(2,it)+k)}")
        for q in range(2): A(f"v_pk_mul_f32 {v(gg(0,it)+2*q,2)}, {v(gg(0,it)+2*q,2)}, {v(gg(1,it)+2*q,2)}")
    for it in range(2):
        for q in range(2): A(f"v_pk_mul_f32 {v(gg(0,it)+2*q,2)}, {v(gg(0,it)+2*q,2)}, {v(gg(2,it)+2*q,2)}")
        for q in range(2): A(f"v_cvt_pk_bf16_f32 {v(gg(1,it)+q)}, {v(gg(0,it)+2*q)}, {v(gg(0,it)+2*q+1)}")
        A(f"ds_write_b64 v16, {v(gg(1,it),2)} offset:{3584*it}")
    A("L_aux_nohp:")
    A("s_waitcnt lgkmcnt(0)"); L.q = []
    ST()
    A("s_barrier")
    for i in range(7): L.issue(f"ds_read2st64_b64 {v(HB+4*i,4)}, v15 offset0:{2*i} offset1:{2*i+1}", ("hb", i))
    DY = 32
    for i in range(7):
        L.need(("hb", i))
        A(f"v_mfma_f32_16x16x32_bf16 {v(DY,4)}, {v(AWD+4*i,4)}, {v(HB+4*i,4)}, {v(DY,4) if i else 0}")
    for k in range(4): A(f"v_mov_b32_dpp {v(DY+4+k)}, {v(DY+k)} row_ror:8 row_mask:0xf bank_mask:0xf")
    for k in range(4): A(f"v_permlane32_swap_b32 {v(DY+4+k)}, {v(DY+8+k)}")
    for q in range(2): A(f"v_pk_add_f32 {v(DY+2*q,2)}, {v(DY+2*q,2)}, {v(DY+8+2*q,2)}")
    for k in range(4): A(f"v_and_or_b32 {v(DY+k)}, {v(DY+k)}, v245, {s(sTB+k)}")
    A("s_mov_b64 exec, 0x00ff00ff")
    A(f"buffer_store_dwordx4 {v(DY,4)}, v12, s[40:43], 0 offen sc1")
    A("s_mov_b64 exec, -1")
    ST()
    A(f"s_lshl_b32 s6, {s(sA)}, 3"); A(f"s_add_u32 s6, s6, {s(sW)}"); A(f"s_cmp_lg_u32 s6, {(4*16+15)*8}"); A("s_cbranch_scc1 L_aux_done")
    A(f"v_lshlrev_b32 v21, 3, {v(vL)}"); A(f"v_add_u32 v21, {WS_ACK}, v21")
    poll(A, "ack", ["buffer_load_dwordx2 v[60:61], v21, s[40:43], 0 offen sc1"], [60, 61], sT, 11, 14, 4)
    A(f"v_mov_b32 v5, {s(sT)}"); A("v_mov_b32 v4, 0"); A("s_mov_b64 exec, 1")
    A("buffer_store_dword v5, v4, s[40:43], 0 offen sc1")
    A("L_aux_done:")
    if O.probe_role == 1: ST.probe(sW, "aux", O.probe_j, O.probe_k)
    ST.flush(sW, "aux")
    A("s_endpgm")
    A("L_aux_slow:")
    A("s_waitcnt lgkmcnt(0)")
    A("v_lshlrev_b32 v14, 5, v0"); A(f"v_add_u32 v14, {KEYS}, v14")
    A(f"ds_write_b128 v14, {v(KY,4)}"); A(f"ds_write_b128 v14, {v(KY+4,4)} offset:16")
    signal(A, 22, 23, C_SLOW)
    A(f"s_cmp_ge_u32 {s(sW)}, 2"); A("s_cbranch_scc1 L_aux_wd")
    A(f"s_cmp_eq_u32 {s(sW)}, 1"); A("s_cbranch_scc1 L_aux_nox")
    lds_count_wait(A, "slow", 22, C_SLOW, 4, 18, 8, 11)
    SK = 128
    A(f"v_lshlrev_b32 v14, 4, {v(vL)}"); A(f"v_add_u32 v14, {KEYS}, v14")
    for k in range(8): A(f"ds_read_b128 {v(SK+4*k,4)}, v14 offset:{1024*k}")
    A("s_waitcnt lgkmcnt(0)")
    A("s_mov_b32 s8, 0"); A(f"v_mov_b32 v20, {v(vL)}"); A("v_mov_b32 v17, 1")
    A("L_aux_slow2:")
    A(f"v_max3_u32 v14, {v(SK)}, {v(SK+1)}, {v(SK+2)}")
    for k in range(3, 31, 2): A(f"v_max3_u32 v14, v14, {v(SK+k)}, {v(SK+k+1)}")
    A(f"v_max_u32 v14, v14, {v(SK+31)}")
    for n in (8, 4, 2, 1): A(dpp("v_max_u32", 14, 14, 14, f"row_ror:{n}"))
    A("v_mov_b32 v15, v14"); A("v_permlane16_swap_b32 v14, v15"); A("v_max_u32 v14, v14, v15")
    A("v_mov_b32 v15, v14"); A("v_permlane32_swap_b32 v14, v15"); A("v_max_u32 v14, v14, v15")
    A("v_cmp_eq_u32 vcc, s8, v20"); A("v_cndmask_b32 v17, v17, v14, vcc")
    for k in range(32):
        A(f"v_cmp_ne_u32 vcc, v14, {v(SK+k)}"); A(f"v_cndmask_b32 {v(SK+k)}, 0, {v(SK+k)}, vcc")
    A("s_add_u32 s8, s8, 1"); A("s_cmp_lt_u32 s8, 8"); A("s_cbranch_scc1 L_aux_slow2")
    A("v_and_b32 v60, 0xfff, v17"); A("v_sub_u32 v60, 0x800, v60")
    A("v_lshlrev_b32 v15, 2, v60"); A("ds_read_b32 v62, v15")
    A.ext(sig)
    A("s_branch L_aux_sel")

AD_S1, AD_S0, AD_S2, AD_S3, AD_S3A, AD_P, AD_E, AD_D = 160, 161, 162, 163, 164, 165, 168, 169

def table_addresses(A, sTB):
    t = 10
    A(f"v_lshlrev_b32 {v(t)}, 5, {v(vI)}")
    A(f"v_lshl_add_u32 {v(AD_S1)}, {v(vG)}, 9, {v(t)}"); A(f"v_add_u32 {v(AD_S1)}, {s(sTB)}, {v(AD_S1)}"); A(f"v_add_u32 {v(AD_S1)}, {4*(256+16)-4}, {v(AD_S1)}")
    A(f"v_and_b32 {v(t+2)}, 1, {v(vG)}"); A(f"v_lshl_add_u32 {v(AD_S0)}, {v(t+2)}, 4, {v(t)}")
    A(f"v_lshrrev_b32 {v(t+2)}, 1, {v(vG)}"); A(f"v_lshl_add_u32 {v(AD_S0)}, {v(t+2)}, 9, {v(AD_S0)}"); A(f"v_add3_u32 {v(AD_S0)}, {v(AD_S0)}, {s(sTB)}, 64")
    A(f"v_and_b32 {v(t+2)}, 1, {v(vI)}"); A(f"v_lshrrev_b32 {v(t+3)}, 1, {v(vI)}")
    A(f"v_lshlrev_b32 {v(AD_S2)}, 2, {v(t+3)}"); A(f"v_lshl_add_u32 {v(AD_S2)}, {v(vG)}, 6, {v(AD_S2)}")
    A(f"v_mul_u32_u24 {v(t+3)}, 260, {v(t+2)}"); A(f"v_add3_u32 {v(AD_S2)}, {v(AD_S2)}, {v(t+3)}, {s(sTB)}"); A(f"v_add_u32 {v(AD_S2)}, {PB_E-68}, {v(AD_S2)}")
    A(f"v_lshlrev_b32 {v(AD_S3)}, 1, {v(vI)}"); A(f"v_lshl_add_u32 {v(AD_S3)}, {v(vG)}, 7, {v(AD_S3)}")
    A(f"v_lshl_add_u32 {v(AD_S3)}, {v(t+2)}, 2, {v(AD_S3)}"); A(f"v_add_u32 {v(AD_S3)}, {s(sTB)}, {v(AD_S3)}"); A(f"v_add_u32 {v(AD_S3)}, {PB_E+512+256-196}, {v(AD_S3)}")
    A(f"v_mov_b32 {v(AD_S3A)}, {v(AD_S3)}"); A(f"s_add_u32 s54, {s(sTB)}, {PB_E+4*(63-16)}"); A(f"v_writelane_b32 {v(AD_S3A)}, s54, 0")
    A(f"v_lshl_add_u32 {v(t)}, {v(vI)}, 2, {s(sTB)}")
    A(f"v_lshlrev_b32 {v(t+2)}, 5, {v(vG)}"); A(f"v_sub_u32 {v(AD_P)}, {v(t)}, {v(t+2)}"); A(f"v_add_u32 {v(AD_P)}, {4*26}, {v(AD_P)}")
    A(f"v_add_u32 {v(AD_P+1)}, 1024, {v(AD_P)}"); A(f"v_add_u32 {v(AD_P+2)}, 2048, {v(AD_P)}")
    A(f"v_lshlrev_b32 {v(t+2)}, 4, {v(vG)}"); A(f"v_sub_u32 {v(AD_E)}, {v(t)}, {v(t+2)}"); A(f"v_add_u32 {v(AD_E)}, {PB_E+4*13}, {v(AD_E)}")

def kgen(A, L, O, vRow, vOp, sL, sLlo):
    PAR, Wm, CH, T = 16, 20, 32, 64
    BOP, AOP, D = 80, 176, 208
    DT, AL, BE = 76, 72, 74
    late = []
    lo = lambda d, src: f"v_lshlrev_b32 {v(d)}, 16, {v(src)}"
    hi = lambda d, src: f"v_and_b32 {v(d)}, {MASKHI}, {v(src)}"
    A("v_lshlrev_b32 v15, 16, v15"); A(lo(116, PAR)); A(hi(117, PAR))
    seqs = []
    for d, x, t in [(DT, 15, 112), (AL, 116, 114), (AL + 1, 117, 118)]:
        E = Asm(); exp_acc(E, d, x, t, t + 1, sL, sLlo); seqs.append(E.lines)
    for k in range(6):
        for q in seqs: A(q[k])
    A(lo(BE, PAR + 1)); A(hi(BE + 1, PAR + 1))
    A(f"v_cvt_pk_bf16_f32 {v(DT)}, {v(DT)}, {v(DT)}")
    A(f"v_cvt_pk_bf16_f32 {v(T)}, {v(AL)}, {v(AL+1)}")
    A(hi(DT, DT)); A(lo(AL, T)); A(hi(AL + 1, T))
    A(f"v_pk_mul_f32 {v(BE,2)}, {v(BE,2)}, {v(DT,2)} op_sel_hi:[1,0]")
    A(f"v_pk_mul_f32 {v(AL,2)}, {v(AL,2)}, {v(DT,2)} op_sel_hi:[1,0]")
    for md in range(2):
        A(f"v_mul_f32 {v(BE+md)}, 0.15915494, {v(BE+md)}")
        A(f"v_mul_f32 {v(AL+md)}, {f32bits(-LOG2E)}, {v(AL+md)}")
    late += [lo(120, 14), f"v_add_f32 {v(DT+1)}, {v(DT)}, {v(DT)}", "v_add_f32 v120, 1.0, v120", lo(CH, PAR + 2), lo(CH + 1, PAR + 3), hi(CH + 2, PAR + 2), hi(CH + 3, PAR + 3),
             f"v_and_b32 {v(AD_D)}, {v(AD_D)}, v120"]
    for md in range(2): late.append(f"v_pk_mul_f32 {v(CH+2*md,2)}, {v(CH+2*md,2)}, {v(DT,2)} op_sel:[0,1] op_sel_hi:[1,1]")
    for q, p in ((1, 8), (0, 1), (2, 128)):
        out = []
        for md in range(2):
            w = Wm + 4 * q + 2 * md; t = 112 + 2 * md
            if p > 1: out += [f"v_mul_f32 {v(t)}, {f32bits(float(p))}, {v(AL+md)}", f"v_mul_f32 {v(t+1)}, {f32bits(float(p))}, {v(BE+md)}"]
        for md in range(2):
            t = 112 + 2 * md
            out += [f"v_exp_f32 {v(t)}, {v(t if p > 1 else AL+md)}", f"v_fract_f32 {v(t+1)}, {v(t+1 if p > 1 else BE+md)}"]
        for md in range(2):
            w = Wm + 4 * q + 2 * md; t = 112 + 2 * md
            out += [f"v_cos_f32 {v(w)}, {v(t+1)}", f"v_sin_f32 {v(w+1)}, {v(t+1)}"]
        for md in range(2):
            w = Wm + 4 * q + 2 * md; t = 112 + 2 * md
            out.append(f"v_pk_mul_f32 {v(w,2)}, {v(w,2)}, {v(t,2)} op_sel:[0,0] op_sel_hi:[1,0]{' neg_hi:[1,0]' if p == 8 else ''}")
        if p == 8: A.ext(out)
        else: late += out
    A(late.pop(0))
    if O.exp & 32: A("CYC ; mark")
    W1, W8, W128 = Wm, Wm + 4, Wm + 8
    PK = [68, 70]; cnt = [0]
    def put(r, pk):
        if O.addtid:
            L.issue(f"ds_write_addtid_b32 {v(pk)} offset:{528*r}"); L.issue(f"ds_write_addtid_b32 {v(pk+1)} offset:{528*r+256}")
        else:
            L.issue(f"ds_write_b64 {v(vRow)}, {v(pk,2)} offset:{528*r}")
    def row(r, x0):
        pk = PK[cnt[0] & 1]; cnt[0] += 1
        A(f"v_cvt_pk_bf16_f32 {v(pk)}, {v(x0)}, {v(x0+1)}")
        A(f"v_cvt_pk_bf16_f32 {v(pk+1)}, {v(x0+2)}, {v(x0+3)}")
        put(r, pk)
    def mul2(dst, x, w):
        i0 = cmul(dst, x, w, T); i1 = cmul(dst + 2, x + 2, w + 2, T + 2)
        A(i0[0]); A(i1[0]); A(i0[1]); A(i1[1])
    def reads(dst, tag):
        for ks in range(8): L.issue(f"ds_read_b128 {v(dst+4*ks,4)}, {v(vOp)} offset:{32*ks}", (tag, ks))
    def mfma(t, tag, ks):
        L.need((tag, ks), ("B", ks))
        A(f"v_mfma_f32_16x16x32_bf16 {v(D+4*t,4)}, {v(AOP+4*ks,4)}, {v(BOP+4*ks,4)}, {v(D+4*t,4) if ks else 0}")
    BC = 12
    A(f"v_mov_b32 {v(PK[0])}, 0x3f80"); A(f"v_mov_b32 {v(PK[0]+1)}, 0x3f80")
    put(0, PK[0]); cnt[0] += 1
    row(1, W8)
    mul2(BC, W8, W8); row(2, BC)
    for r in range(3, 16):
        mul2(BC, BC, W8); row(r, BC)
        for _ in range(3):
            if late: A(late.pop(0))
    assert not late
    reads(BOP, "B")
    ch = lambda i: CH + 4 * i
    row(0, ch(0))
    for i in range(1, 8):
        mul2(ch(i), ch(i-1), W1); row(i, ch(i))
    for i in range(8):
        mul2(ch(i), ch(i), W128); row(8 + i, ch(i))
    reads(AOP, "A0")
    for r, i in enumerate([0, 2, 4, 6, 0, 2, 4, 6, 0, 4, 0, 4, 0, 4, 0, 4]):
        mul2(ch(i), ch(i), W128); row(r, ch(i))
        if 3 <= r < 11: mfma(0, "A0", r - 3)
    reads(AOP, "A1")
    for r in range(9):
        mul2(ch(0), ch(0), W128); row(r, ch(0))
        if r >= 2: mfma(1, "A1", r - 2)
    mfma(1, "A1", 7)
    if O.exp & 32: A("CYC ; mark")
    reads(AOP, "A2")
    return D, lambda ks: mfma(2, "A2", ks)

def ktables(A, L, D, mf2, sK, MARK=False):
    D0, D1, D2 = D, D + 4, D + 8
    T = 64
    cv = lambda d, lo, hi: A(f"v_cvt_pk_bf16_f32 {v(d)}, {v(lo)}, {v(hi)}")
    t1, t2, t3 = T + 8, T + 9, T + 10
    A(f"v_add_f32 {v(D0)}, {v(D0)}, {v(AD_D)}")
    A(f"v_cndmask_b32 {v(t1)}, {v(D1+1)}, {v(D1)}, s[62:63]")
    A(f"v_cndmask_b32 {v(t2)}, {v(D1+2)}, {v(D1+1)}, s[62:63]")
    A(f"v_cndmask_b32 {v(t3)}, {v(D1+3)}, 0, s[62:63]")
    cv(T+12, D1, D1+1); cv(T+13, D1+2, D1+3)
    mf2(0); mf2(1)
    cv(T, D1, D1); cv(T+1, D1, D1); cv(T+2, t1, D1); cv(T+3, t2, t1)
    mf2(2); mf2(3)
    cv(T+4, t2, t2); cv(T+5, t2, t2); cv(T+6, t3, t2); cv(T+7, t3, t3)
    mf2(4); mf2(5)
    A(f"v_cndmask_b32 {v(T+12)}, {v(T+12)}, 0, s[62:63]")
    A("s_mov_b32 exec_hi, 1")
    L.issue(f"ds_write_b128 {v(AD_S1)}, {v(T,4)} offset:4")
    L.issue(f"ds_write_b128 {v(AD_S1)}, {v(T+4,4)} offset:20")
    L.issue(f"ds_write_b16 {v(AD_S1)}, {v(T)}")
    A("s_mov_b32 exec_hi, -1")
    mf2(6); mf2(7)
    cv(T+8, D0, D0+3); cv(T+9, D0+1, D0); cv(T+10, D0+2, D0+1); cv(T+11, D0+3, D0+2)
    L.issue(f"ds_write_b16 {v(AD_S0)}, {v(T+8)}")
    L.issue(f"ds_write2_b32 {v(AD_S0)}, {v(T+9)}, {v(T+10)} offset0:1 offset1:2")
    L.issue(f"ds_write_b32 {v(AD_S0)}, {v(T+11)} offset:12")
    L.issue(f"ds_write_b16_d16_hi {v(AD_S0)}, {v(T+8)} offset:18")
    A("s_mov_b32 exec_lo, 0")
    L.issue(f"ds_write2_b32 {v(AD_S2)}, {v(T+12)}, {v(T+13)} offset0:0 offset1:8")
    A("s_mov_b32 exec_lo, -1")
    TT = 100
    cv(TT, D2, D2+1); cv(TT+1, D2+2, D2+3); cv(TT+2, D2, D2)
    A("s_mov_b32 exec_hi, 1")
    L.issue(f"ds_write_b16 {v(AD_S3A)}, {v(TT)}")
    A("s_mov_b32 exec_hi, 0")
    L.issue(f"ds_write_b16_d16_hi {v(AD_S3)}, {v(TT)} offset:32")
    L.issue(f"ds_write_b16 {v(AD_S3)}, {v(TT+1)} offset:64")
    L.issue(f"ds_write_b16_d16_hi {v(AD_S3)}, {v(TT+1)} offset:96")
    A("s_mov_b32 exec_hi, -1")
    A(f"v_readlane_b32 {s(sK)}, {v(TT+2)}, 0")
    for dd in range(4): A(f"v_and_b32 {v(KC+dd)}, {s(sK)}, {v(KC+dd)}")

def convloop(A, L, O, vU, vE, vTR, vST, sOut, sWave, extra, start, early):
    B5, B3, B9, B7 = BAND, BAND + 4, BAND + 8, BAND + 12
    mf = lambda d, x, y, c_: f"v_mfma_f32_16x16x32_bf16 {v(d,4)}, {v(x,4)}, {v(y,4)}, {c_}"
    acc = lambda c: ACC + 4 * c
    main = []; pos = {}
    ub = lambda o: UB + 4 * ((o + 7) % NUB)
    def add(text, needs=(), key=None):
        main.append((text, needs))
        if key: pos[key] = len(main) - 1
    u16 = lambda cp: UB + 8 * (cp & 1)
    u24 = lambda cp: UB + 8 * (cp & 1) + 4
    far = (("O", 5, (2, 3, 4), BOXOP + 4, KO), ("E", 5, (2, 3, 4), BOXOP, KE), ("S", 3, (4, 5, 6, 7), BOXOP + 8, K3))
    for cp in range(7):
        if cp <= 5:
            pos[("bxfirst", cp)] = len(main)
            add(mf(BOXD + 8, u16(cp), B5, 0), (("U16", cp),), ("bx", cp, "O0")); add(mf(BOXD + 12, u16(cp), B3, 0), (), ("bx", cp, "O1"))
            add(mf(BOXD, u24(cp), B5, 0), (("U24", cp),), ("bx", cp, "E0")); add(mf(BOXD + 4, u24(cp), B3, 0), (), ("bx", cp, "E1"))
            if cp <= 3:
                add(mf(acc(cp + 4), KC, u16(cp), v(acc(cp + 4), 4)), (), ("corr", cp))
                add(mf(BOXD + 20, u16(cp), B7, 0), (), ("bx", cp, "S1")); add(mf(BOXD + 16, u24(cp), B9, 0), (), ("bx", cp, "S0"))
            pos[("bxlast", cp)] = len(main) - 1
        if cp == 0:
            for o in range(-7, -7 + O.head):
                pos[("first", o)] = len(main)
                for c in (0, 1): add(mf(acc(c), KN + 4 * (8 * c - o), UB + 16 + 4 * ((o + 7) & 1), v(acc(c), 4)), (("U", o), ("KN", 8 * c - o)), ("near", c, o))
                pos[("lastU", o)] = len(main) - 1
        if cp >= 1:
            q = cp - 1
            for nm, lim, dls, bop, kr in far:
                if q > lim: continue
                pos[("far", q, nm)] = len(main)
                for dl in dls:
                    if q + dl <= 7: add(mf(acc(q + dl), bop, kr + 4 * (dl - dls[0]), v(acc(q + dl), 4)), ((nm, dl),))
                pos[("farend", q, nm)] = len(main) - 1
    P1 = len(main)
    for o in range(-7 + O.head, 57):
        pos[("first", o)] = len(main)
        for c in range(8):
            if 0 <= 8 * c - o <= 16:
                add(mf(acc(c), KN + 4 * (8 * c - o), ub(o), v(acc(c), 4)), (("U", o), ("KN", 8 * c - o)), ("near", c, o))
        pos[("lastU", o)] = len(main) - 1
    N = len(main)
    F = []
    for cp in range(6):
        after = pos[("bxlast", cp - 2)] if cp >= 2 else -1
        dl = max(after + 1, pos[("bxfirst", cp)] - O.u_lead)
        F.append(dict(text=f"ds_read_b128 {v(u16(cp),4)}, {v(vU)} offset:{64*(8*cp+7)}", after=after, before=dl, tag=("U16", cp), lds=True, chain="U1", pre=cp == 0))
        F.append(dict(text=f"ds_read_b128 {v(u24(cp),4)}, {v(vU)} offset:{432+512*cp}", after=after, before=dl, tag=("U24", cp), lds=True, chain="U1", pre=cp == 0))
    def kread(reg, base, o0, step, tag, before, pre=False):
        F.append(dict(text=f"ds_read2_b32 {v(reg,2)}, {v(base)} offset0:{o0+3*step} offset1:{o0+2*step}", after=-1, before=before, tag=tag, lds=True, chain="K", pre=pre))
        F.append(dict(text=f"ds_read2_b32 {v(reg+2,2)}, {v(base)} offset0:{o0+step} offset1:{o0}", after=-1, before=before, tag=tag, lds=True, chain="K", pre=pre))
    firstK = {}
    for i, (t, nd) in enumerate(main):
        for x in nd:
            if x[0] in ("KN", "O", "E", "S") and x not in firstK: firstK[x] = i
    for x, i in sorted(firstK.items(), key=lambda kv: kv[1]):
        b = max(0, i - O.u_lead)
        if x[0] == "KN": kread(KN + 4 * x[1], 12 + x[1] // 8, 32 * (x[1] % 8), 2, x, b)
        else:
            reg, o0, d0 = dict(O=(KO, 64, 2), E=(KE, 0, 2), S=(K3, 128, 4))[x[0]]
            kread(reg + 4 * (x[1] - d0), 15, o0 + 16 * (x[1] - d0), 1, x, b)
    for o in range(-7, -7 + O.head):
        after = pos[("lastU", o - 2)] if o - 2 >= -7 else -1
        F.append(dict(text=f"ds_read_b128 {v(UB+16+4*((o+7)&1),4)}, {v(vU)} offset:{64*(o+7)}", after=after,
                      before=max(after + 1, pos[("first", o)] - O.u_lead), tag=("U", o), lds=True, chain="U"))
    for o in range(-7 + O.head, 57):
        prev = o - NUB
        if prev >= -7 + O.head: after = pos[("lastU", prev)]
        else:
            r = (o + 7) % NUB
            after = pos[("bxlast", 4)] if r < 2 else pos[("bxlast", 5)] if r < 4 else (pos[("lastU", -8 + O.head)] if O.head else -1)
        F.append(dict(text=f"ds_read_b128 {v(ub(o),4)}, {v(vU)} offset:{64*(o+7)}", after=after,
                      before=max(after + 1, pos[("first", o)] - O.u_lead), tag=("U", o), lds=True, chain="U"))
    first = {}
    for i, (t, _) in enumerate(main):
        for c in range(8):
            if t.split()[1].rstrip(",") == v(acc(c), 4) and c not in first: first[c] = i
    EP = [XR + 2 * c for c in range(8)]
    for c in sorted(range(8), key=lambda c: first[c]):
        F.append(dict(text=f"ds_read_b64 {v(EP[c],2)}, {v(vE)} offset:{512*c}", after=-1, before=max(0, first[c] - 9), tag=("e", c), lds=True, chain=("e", c), pre=first[c] < 6))
        for k in range(4):
            t = (f"v_lshlrev_b32 {v(acc(c)+k)}, 16, {v(EP[c]+k//2)}" if k % 2 == 0 else f"v_and_b32 {v(acc(c)+k)}, {MASKHI}, {v(EP[c]+k//2)}")
            F.append(dict(text=t, after=-1, before=max(0, first[c] - 1), needs=(("e", c),), chain=("e", c), lag=0 if k else 4))
    for cp in range(6):
        for nm, d0, op in (("O", BOXD + 8, BOXOP + 4), ("E", BOXD, BOXOP), ("S", BOXD + 16, BOXOP + 8)):
            if nm == "S" and cp > 3: continue
            after = max(pos[("bx", cp, nm + "0")], pos[("bx", cp, nm + "1")]) + O.mlag
            if cp: after = max(after, pos[("farend", cp - 1, nm)])
            before = pos[("far", cp, nm)] - 1
            nx = [pos[k] for k in (("bx", cp + 1, nm + "0"), ("bx", cp + 1, nm + "1")) if k in pos]
            if nx: before = min(before, min(nx))
            after = min(after, before - 1)
            for dd in range(4):
                F.append(dict(text=f"v_cvt_pk_bf16_f32 {v(op+dd)}, {v(d0+dd)}, {v(d0+4+dd)}", after=after, before=before))
    OT, TR = 10, 12
    tail = []
    for c in range(8):
        done = pos[("near", c, 8 * c)]
        ins = [f"v_cvt_pk_bf16_f32 {v(OT)}, {v(acc(c))}, {v(acc(c)+1)}", f"v_cvt_pk_bf16_f32 {v(OT+1)}, {v(acc(c)+2)}, {v(acc(c)+3)}"]
        w = f"ds_write_b64 {v(vE)}, {v(OT,2)} offset:{512*c}"
        if c < 7:
            for x in ins: F.append(dict(text=x, after=min(N - 1, done + O.mlag), before=min(N, done + 12), chain="o"))
            F.append(dict(text=w, after=min(N - 1, done + O.mlag), before=min(N, done + 13), lds=True, tag=("o", c), chain="o"))
            if c & 1:
                pc = c // 2
                F.append(dict(text="s_nop 0" if O.exp & 2 else "s_barrier", after=done + 13, before=done + 17, needs=(("o", c),), chain="s"))
                for h in range(2):
                    F.append(dict(text=f"ds_read_b64_tr_b16 {v(TR+2*h,2)}, {v(vTR)} offset:{1024*pc+4*EST*h}", after=done + 13, before=done + 19,
                                  lds=True, tag=("tr", pc), chain="s"))
                st = f"buffer_store_dwordx4 {v(TR,4)}, {v(vST)}, {s(sOut,4)}, {'0' if pc == 0 else s(sWave+pc)} offen"
                if O.exp & 1: st = "s_nop 0"
                F.append(dict(text=st, after=done + 13, before=min(N, done + 28), needs=(("tr", pc),), chain="s", lag=5))
        else:
            tail += [(x, False) for x in ins] + [(w, True)]
    extra(F, pos, N)
    F = [f for f in F if f["text"] not in early]
    ks = [f for f in F if f.get("chain") == "K"][:O.pre_k]
    L.issue("UWRITES", "uw"); A.lines.pop()
    for f in ks: F.remove(f); L.issue(f["text"], f["tag"])
    L.need("uw"); A("s_barrier")
    start()
    if O.exp & 256: F = [f for f in F if not f["text"].startswith("v_")]
    if O.exp & 512: F = [f for f in F if not f["text"].startswith("ds_read_b128")]
    if O.exp & 1024: F = [f for f in F if f["text"].startswith(("ds_read_b128", "v_", "buffer_load"))]
    over = schedule2(A, L, main, F, per_gap=O.per_gap, age=O.age)
    print("loop overflow slots", over, file=sys.stderr)
    for pc in range(3 if not O.exp else 0):
        iw = A.lines.index(f"ds_write_b64 {v(vE)}, {v(OT,2)} offset:{512*(2*pc+1)}")
        it = A.lines.index(f"ds_read_b64_tr_b16 {v(TR,2)}, {v(vTR)} offset:{1024*pc}")
        assert O.exp & 2 or "s_barrier" in A.lines[iw:it]
    return tail

sCG, sCB, sTc = 57, 58, 60

def conv_entry(A, O):
    A("s_and_b32 s59, s2, 7"); A(f"s_lshl_b32 {s(sCG)}, s59, 4"); A(f"s_add_u32 {s(sCG)}, {s(sCG)}, s3")
    A(f"s_lshl_b32 s36, {s(sCG)}, 3"); A(f"s_add_u32 s36, s36, {s(sW)}")
    A("s_lshl_b32 s37, s36, 8"); A("s_lshl_b32 s36, s36, 1")
    A(f"v_lshl_add_u32 v4, {v(vL)}, 2, s37"); A("v_mov_b32 v5, s36"); A("v_mov_b32 v6, 0")
    A("s_waitcnt lgkmcnt(0)")
    nt = " nt" if O.par_nt else ""
    A(f"global_load_ushort v15, v5, {s(PLDT,2)}")
    for k, p in enumerate((PLAR, PAIM, PCRE, PCIM)): A(f"global_load_dword {v(16+k)}, v4, {s(p,2)}{nt}")
    A(f"global_load_ushort v14, v5, {s(PDSK,2)}")
    A(f"global_load_dword v175, v6, {s(PWS,2)}")

def gen_conv(A, O):
    L = Lgkm(A); ST = Stamper(A, O.stamps)
    sT = sTc
    if O.stamps: A("s_mov_b32 s72, s95"); ST.n = 1
    A(f"v_and_b32 {v(vI)}, 15, v0"); A(f"v_bfe_u32 {v(vG)}, v0, 4, 2")
    A("s_getpc_b64 s[36:37]"); A("L_pc_band:")
    A("s_add_u32 s36, s36, L_bands-L_pc_band"); A("s_addc_u32 s37, s37, 0"); A("s_mov_b32 s38, 5120"); A("s_mov_b32 s39, 0x00020000")
    A(f"v_lshlrev_b32 v10, 4, {v(vL)}"); A("s_mov_b32 s53, 4096")
    for k in range(4): A(f"buffer_load_dwordx4 {v(BAND+4*k,4)}, v10, s[36:39], 0 offen offset:{1024*k}")
    A(f"buffer_load_dwordx4 {v(KC,4)}, v10, s[36:39], s53 offen")
    mk_srd(A, 36, PX_, SIZE["x"]); mk_srd(A, 40, PWS, WS_SIZE); mk_srd(A, 44, POUT, SIZE["out"])
    A(f"s_mov_b32 s48, {f32bits(L_HI)}"); A(f"s_mov_b32 s49, {f32bits(L_LO)}"); A(f"s_lshl_b32 {s(sCB)}, {s(sCG)}, 4")
    if O.prio & 2:
        A(f"s_cmp_lt_u32 {s(sW)}, 4"); A("s_cbranch_scc1 L_conv_p"); A("s_setprio 1"); A("L_conv_p:")
    vXC, vSL = 9, 11
    A(f"v_lshlrev_b32 {v(vXC)}, 13, v0"); A(f"v_add_u32 {v(vXC)}, {s(sCB)}, {v(vXC)}")
    A("s_lshl_b32 s6, s3, 7"); A(f"s_lshl_b32 s7, {s(sW)}, 4"); A("s_add_u32 s6, s6, s7"); A("s_lshl_b32 s6, s6, 11")
    A("s_lshl_b32 s7, s59, 8"); A("s_add_u32 s6, s6, s7")
    A(f"v_lshrrev_b32 {v(vSL)}, 1, {v(vL)}"); A(f"v_lshlrev_b32 {v(vSL)}, 11, {v(vSL)}")
    A(f"v_and_b32 v10, 1, {v(vL)}"); A(f"v_lshl_add_u32 {v(vSL)}, v10, 7, {v(vSL)}"); A(f"v_add_u32 {v(vSL)}, s6, {v(vSL)}")
    A(f"s_mul_i32 s6, {s(sW)}, {TST}"); A(f"s_add_u32 s6, s6, {TBASE}")
    A(f"s_mul_i32 s7, {s(sW)}, {UST}"); A(f"s_add_u32 s7, s7, {UBASE}")
    for k in range(4): A(f"v_mov_b32 {v(64+k)}, 0")
    A(f"v_lshl_add_u32 v10, {v(vL)}, 4, s6")
    for k in range(3): A(f"ds_write_b128 v10, v[64:67] offset:{1024*k}")
    A(f"v_lshl_add_u32 v10, {v(vL)}, 3, s7"); A("ds_write_b64 v10, v[64:65]")
    table_addresses(A, 6)
    A(f"v_mov_b32 {v(AD_D)}, 0"); A(f"v_writelane_b32 {v(AD_D)}, -1, 0")
    A("s_mov_b32 s62, 0"); A("s_mov_b32 s63, 1")
    vRow, vOp, vU, vE = 5, 6, 7, 8
    A(f"s_mul_i32 s8, {s(sW)}, {KST}")
    if O.addtid: A("s_mov_b32 m0, s8")
    vTR, vST, vW, vPo, vWe, vSE = 4, 174, 220, 221, 222, 223
    A(f"v_bfe_u32 v10, v0, 2, 2"); A(f"v_mul_u32_u24 v10, {EST}, v10")
    A("v_lshrrev_b32 v12, 4, v0"); A("v_lshl_add_u32 v10, v12, 5, v10")
    A("v_and_b32 v12, 3, v0"); A("v_lshl_add_u32 v10, v12, 3, v10"); A(f"v_add_u32 {v(vTR)}, {EBASE}, v10")
    A(f"v_lshlrev_b32 v10, 11, v0"); A(f"v_add_u32 {v(vST)}, {s(sCB)}, v10")
    A(f"v_lshlrev_b32 v10, 3, v0"); A(f"v_add_u32 {v(vW)}, {UBASE+512}, v10"); A(f"v_add_u32 {v(vWe)}, {EBASE}, v10")
    A("v_and_b32 v12, 1, v0"); A("v_lshlrev_b32 v12, 13, v12"); A("v_lshrrev_b32 v13, 1, v0"); A("v_lshl_add_u32 v12, v13, 4, v12")
    A(f"v_add_u32 {v(vPo)}, {WS_STATS}, v12")
    A(f"v_lshrrev_b32 v10, 3, {v(vL)}"); A("v_lshlrev_b32 v10, 4, v10"); A(f"v_add_u32 {v(vSE)}, {WS_SEL}, v10")
    A("s_mov_b32 s53, 4096"); A("s_mov_b32 s50, 0x100000"); A("s_mov_b32 s51, 0x200000"); A("s_mov_b32 s64, 0x05040100"); A("s_mov_b32 s65, 0x07060302")
    A(f"v_lshl_add_u32 {v(vRow)}, {v(vL)}, 3, s8")
    A(f"v_mul_u32_u24 {v(vOp)}, 528, {v(vI)}")
    A(f"v_and_b32 v10, 1, {v(vG)}"); A(f"v_lshl_add_u32 {v(vOp)}, v10, 8, {v(vOp)}")
    A(f"v_lshrrev_b32 v10, 1, {v(vG)}"); A(f"v_lshl_add_u32 {v(vOp)}, v10, 4, {v(vOp)}")
    A(f"v_add_u32 {v(vOp)}, s8, {v(vOp)}")
    A(f"v_lshlrev_b32 v10, 5, {v(vI)}")
    A(f"v_lshl_add_u32 {v(vU)}, {v(vG)}, 4, v10"); A(f"v_add3_u32 {v(vU)}, {v(vU)}, s7, 32")
    A(f"s_mul_i32 s8, {s(sW)}, {EST}"); A(f"s_add_u32 s8, s8, {EBASE}")
    A(f"v_lshl_add_u32 {v(vE)}, {v(vG)}, 3, v10"); A(f"v_add_u32 {v(vE)}, s8, {v(vE)}")
    if O.exp & 128: ST()
    A("s_waitcnt vmcnt(6)")
    A("L_conv_kg:")
    A("s_mov_b32 exec_hi, 0"); A(f"buffer_load_dword v170, {v(vSL)}, s[36:39], 0 offen"); A("s_mov_b32 exec_hi, -1")
    ST(); ST.cyc0(70)
    K = Asm(); LK = Lgkm(K)
    D, mf2 = kgen(K, LK, O, vRow, vOp, 48, 49)
    ktables(K, LK, D, mf2, 52, O.exp & 32)
    n = len(K.lines); step = n // 32; cntx = 0
    masked = False
    for i, ln in enumerate(K.lines):
        if ln.startswith("CYC"): ST.cyc1(70)
        else: A(ln)
        if ln.startswith("s_mov_b32 exec"): masked = not ln.endswith("-1")
        if i % step == step - 1:
            j = i // step + 1 - O.xcol_at
            if j >= 0 and j % O.xcol_gap == 0 and cntx < 4:
                assert not masked
                if j == 0: A("s_waitcnt vmcnt(0)")
                A(f"buffer_load_dwordx4 {v(XR+4*cntx,4)}, {v(vXC)}, s[36:39], {'0' if cntx < 2 else 's53'} offen offset:{2048*(cntx&1)}")
                cntx += 1
    assert cntx == 4, cntx
    L.q = LK.q
    ST(L); ST.cyc1(70)
    if O.exp & 64: A("s_branch L_conv_end")
    PX, UP, GR, RS, MB = 176, 224, 144, 160, 164
    gl = [f"buffer_load_dwordx4 {v(GR+4*k,4)}, {v(vPo)}, s[40:43], {'s53' if k else '0'} offen sc1" for k in range(2)]
    for k in range(3): A(f"v_mov_b32 {v(12+k)}, {v(AD_P+k)}")
    A(f"v_mov_b32 v15, {v(AD_E)}"); A(f"v_mov_b32 v5, {v(vST)}"); A(f"v_mov_b32 v6, {v(vSE)}")
    vST, vSE = 5, 6
    A("v_readfirstlane_b32 s61, v175")
    A("s_waitcnt vmcnt(0)")
    for x in gl: A(x)
    tag_from_epoch(A, 61, sT)
    for c in range(8):
        for a_ in range(2):
            A(f"v_perm_b32 {v(UP+2*c+a_)}, {v(XR+8*a_+4+(c>>1))}, {v(XR+8*a_+(c>>1))}, {s(64+(c&1))}")
        L.issue(f"ds_write_b64 {v(vWe)}, {v(UP+2*c,2)} offset:{c*EST}")
    early = []
    for reg, o0, nn in ((KO, 64, 3), (KE, 0, 3), (K3, 128, 4)):
        for k in range(nn):
            o = o0 + 16 * k
            early += [f"ds_read2_b32 {v(reg+4*k,2)}, v15 offset0:{o+3} offset1:{o+2}", f"ds_read2_b32 {v(reg+4*k+2,2)}, v15 offset0:{o+1} offset1:{o}"]
    for k in (7, 15, 6, 14, 5, 13, 4, 12, 3, 11, 2, 10, 1, 9, 0, 8, 16):
        o = 32 * (k % 8)
        early += [f"ds_read2_b32 {v(KN+4*k,2)}, {v(12+k//8)} offset0:{o+6} offset1:{o+4}", f"ds_read2_b32 {v(KN+4*k+2,2)}, {v(12+k//8)} offset0:{o+2} offset1:{o}"]
    early = early[:O.early_k + O.early_k2]
    todo = list(early)
    for rr in range(4):
        for c in range(8):
            src = XR + 4 * rr + (c >> 1); d = PX + 4 * c + rr
            A(f"v_lshlrev_b32 {v(d)}, 16, {v(src)}" if c % 2 == 0 else f"v_and_b32 {v(d)}, {MASKHI}, {v(src)}")
            if (8 * rr + c + 1) * O.early_k // 32 > (8 * rr + c) * O.early_k // 32: L.issue(todo.pop(0))
    ST(L)
    poll_masked(A, "conv", gl, [GR + 3, GR + 7], sT, 54, 8, O.poll_sleep, issued=True)
    ST(L)
    src = [GR, GR + 1, GR + 4, GR + 5]
    for rr in range(4): A(f"v_and_b32 {v(RS+rr)}, {MASKHI}, {v(src[rr])}")
    for rr in range(4):
        A(f"v_rcp_f32 {v(RS+rr)}, {v(RS+rr)}")
        if todo: L.issue(todo.pop(0))
    for rr in range(4):
        A(f"v_lshlrev_b32 {v(MB+rr)}, 16, {v(src[rr])}")
        if todo: L.issue(todo.pop(0))
    assert not todo
    for a_ in range(2): A(f"v_pk_mul_f32 {v(MB+2*a_,2)}, {v(MB+2*a_,2)}, {v(RS+2*a_,2)} neg_lo:[1,0] neg_hi:[1,0]")
    for c in range(8):
        x = PX + 4 * c
        for a_ in range(2): A(f"v_pk_fma_f32 {v(x+2*a_,2)}, {v(x+2*a_,2)}, {v(RS+2*a_,2)}, {v(MB+2*a_,2)}")
        for a_ in range(2): A(f"v_cvt_pk_bf16_f32 {v(UP+2*c+a_)}, {v(x+2*a_)}, {v(x+2*a_+1)}")
        L.issue(f"ds_write_b64 {v(vW)}, {v(UP+2*c,2)} offset:{c*UST}")
    def start():
        A(f"s_cmp_lg_u32 {s(sW)}, 0"); A("s_cbranch_scc1 L_conv_noack")
        A(f"s_lshl_b32 s6, {s(sCG)}, 2"); A(f"s_add_u32 s6, s6, {WS_ACK}")
        A("v_mov_b32 v10, s6"); A(f"v_mov_b32 v11, {s(sT)}"); A("s_mov_b64 exec, 1")
        A("buffer_store_dword v11, v10, s[40:43], 0 offen sc1")
        A("s_mov_b64 exec, -1")
        A("L_conv_noack:")
        if O.stamps: ST(L); ST.cyc0(70)
    SEL, TR, YR = K3, 12, K3 + 4
    selload = f"buffer_load_dwordx4 {v(SEL,4)}, {v(vSE)}, s[40:43], 0 offen sc1"
    def extra(F, pos, N):
        a0 = pos[("first", 30)]
        F.append(dict(text=selload, after=a0, before=a0 + 3))
    tail = convloop(A, L, O, vU, vE, vTR, vST, 44, 49, extra, start, early)
    isel = A.lines.index(selload)
    later = [x for x in A.lines[isel+1:] if x.startswith("buffer_")]
    A(f"s_waitcnt vmcnt({len(later)})")
    A(f"v_cmp_ne_u32 vcc, {s(sT)}, {v(SEL+3)}")
    A("s_cbranch_vccz L_conv_selok")
    poll(A, "sel", [selload], [SEL + 3], sT, 54, 16, O.poll_sleep)
    A("L_conv_selok:")
    A(f"s_lshl_b32 s6, {s(sCG)}, 11"); A(f"s_add_u32 s6, s6, {WS_Y}")
    A(f"v_bfe_u32 v16, {v(vL)}, 2, 1"); A("v_lshlrev_b32 v16, 7, v16"); A(f"v_and_b32 v17, 3, {v(vL)}"); A("v_lshl_add_u32 v16, v17, 2, v16")
    A(f"v_subrev_u32 v18, {WS_SEL}, {v(vSE)}"); A("v_add3_u32 v9, v16, v18, s6")
    yl = [f"buffer_load_dword {v(YR+k)}, v9, s[40:43], 0 offen offset:{256*k} sc1" for k in range(8)]
    A(f"s_cmp_lg_u32 {s(sW)}, 0"); A("s_cbranch_scc1 L_conv_noy")
    for x in yl: A(x)
    A("L_conv_noy:")
    for x, l in tail:
        if l: L.issue(x)
        else: A(x)
    for k in range(8): A(f"v_readlane_b32 {s(8+k)}, {v(SEL)}, {8*k}")
    A("v_add_u32 v16, 1536, v0")
    A("s_mov_b32 s54, 0x300000")
    for k in range(8): A(f"v_cmp_ne_u32 {s(16+2*k,2)}, {s(8+k)}, v16")
    for k in range(4): A(f"s_and_b64 {s(16+4*k,2)}, {s(16+4*k,2)}, {s(18+4*k,2)}")
    A("s_and_b64 s[16:17], s[16:17], s[20:21]"); A("s_and_b64 s[24:25], s[24:25], s[28:29]"); A("s_and_b64 s[16:17], s[16:17], s[24:25]")
    L.drain()
    ST(L); ST.cyc1(70)
    A("s_barrier")
    for h in range(2): L.issue(f"ds_read_b64_tr_b16 {v(TR+2*h,2)}, {v(vTR)} offset:{1024*3+4*EST*h}", "tr")
    A(f"s_cmp_eq_u32 {s(sW)}, 0"); A("s_cbranch_scc1 L_conv_fin")
    A("s_waitcnt lgkmcnt(0)")
    A("s_mov_b64 exec, s[16:17]")
    A(f"buffer_store_dwordx4 {v(TR,4)}, {v(vST)}, s[44:47], s54 offen")
    A("s_waitcnt vmcnt(1)")
    A("s_barrier"); A("s_branch L_conv_end")
    A("L_conv_fin:")
    A(f"v_and_b32 v16, 7, {v(vL)}"); A(f"v_mul_u32_u24 v18, {EST}, v16"); A(f"v_lshl_add_u32 v18, {v(SEL)}, 1, v18"); A(f"v_add_u32 v18, {EBASE}, v18")
    L.issue("ds_read_u16 v20, v18", "base")
    A(f"v_lshlrev_b32 v18, 11, {v(SEL)}"); A("v_lshl_add_u32 v18, v16, 1, v18"); A(f"v_add_u32 v18, {s(sCB)}, v18")
    A("v_lshlrev_b32 v17, 3, v17"); A(f"v_lshrrev_b32 v17, v17, {s(sT)}"); A("v_mov_b32 v19, 0xff")
    L.need("tr")
    A("s_mov_b64 exec, s[16:17]")
    A(f"buffer_store_dwordx4 {v(TR,4)}, {v(vST)}, s[44:47], s54 offen")
    A("s_mov_b64 exec, -1"); A("s_mov_b32 s54, 0")
    A("s_waitcnt vmcnt(1)")
    A("L_conv_y:")
    for k in range(4): A(f"v_bitop3_b32 {v(24+k)}, {v(YR+2*k)}, {v(YR+2*k+1)}, v17 bitop3:0x7e")
    A("v_or3_b32 v24, v24, v25, v26"); A("v_bitop3_b32 v24, v24, v27, v19 bitop3:0xa8")
    A("v_cmp_ne_u32 vcc, 0, v24"); A("s_cbranch_vccz L_conv_yok")
    bounded(A, 54, "L_conv_yok")
    for x in yl: A(x)
    A("s_waitcnt vmcnt(0)"); A("s_branch L_conv_y")
    A("L_conv_yok:")
    ST()
    for k in (0, 2): A(f"v_pk_add_f32 {v(YR+k,2)}, {v(YR+k,2)}, {v(YR+4+k,2)}")
    L.drain()
    A("v_lshlrev_b32 v20, 16, v20")
    A(f"v_pk_add_f32 {v(YR,2)}, {v(YR,2)}, {v(YR+2,2)}"); A(f"v_add_f32 {v(YR)}, {v(YR)}, {v(YR+1)}")
    A(f"v_fma_f32 v20, {v(YR)}, {v(SEL+1)}, v20"); A("v_cvt_pk_bf16_f32 v20, v20, v20")
    A("s_barrier")
    A("buffer_store_short v20, v18, s[44:47], 0 offen")
    A("L_conv_end:")
    if O.stamps:
        A("s_waitcnt vmcnt(0)"); ST()
    if O.probe_role == 2: ST.probe(sW, "conv", O.probe_j, O.probe_k)
    ST.flush(sW, "conv")
    A("s_endpgm")

def build(O):
    name = NAME + "_kernel"
    A = Asm()
    head(A, name)
    A("s_cmp_ge_u32 s2, 256"); A("s_cbranch_scc1 L_exit")
    A("s_load_dwordx16 s[4:19], s[0:1], 0"); A("s_load_dwordx16 s[20:35], s[0:1], 56")
    if O.stamps: A("s_memrealtime s[92:93]"); A("s_waitcnt lgkmcnt(0)"); A("s_mov_b32 s95, s92")
    A(f"v_readfirstlane_b32 {s(sW)}, v0"); A("s_bfe_u32 s3, s2, 0x40003"); A(f"v_and_b32 {v(vL)}, 63, v0"); A(f"s_lshr_b32 {s(sW)}, {s(sW)}, 6")
    if O.code_pf:
        A(f"s_cmp_ge_u32 s3, {O.code_pf}"); A("s_cbranch_scc1 L_nocp"); A(f"s_cmp_lg_u32 {s(sW)}, 7"); A("s_cbranch_scc1 L_nocp")
        code_prefetch(A, "all", 36, 172, 173, "L_auxk", 3)
        A("L_nocp:")
    A("s_bitcmp1_b32 s2, 7"); A("s_cbranch_scc0 L_auxk")
    conv_entry(A, O)
    A("s_branch L_conv")
    A("L_auxk:")
    if O.exp & 64: A("s_endpgm")
    aux_entry(A, O)
    A("L_entry_end:")
    gen_aux(A, O)
    A("L_exit:"); A("s_endpgm")
    A(".p2align 6")
    A("L_conv:")
    gen_conv(A, O)
    A("L_code_end:")
    A(".p2align 7")
    A("L_bands:")
    for lo, hi, val in ((6, 10, 0x3f80), (3, 5, 0x3f80), (4, 12, 0x3f80), (5, 11, 0x3f80), (12, 13, 0xffff)):
        for l in range(64):
            j, g = l & 15, l >> 4
            w = [sum((val << (16 * h)) for h in range(2) if lo <= 8 * g + 2 * dd + h - j <= hi) for dd in range(4)]
            A.raw(".long " + ", ".join(hex(x) for x in w))
    txt = f"; @launch grid=(256,1,1) block=(512,1,1) lds={LDS_TOTAL}\n" + '.amdgcn_target "amdgcn-amd-amdhsa--gfx950"\n' + A.text()
    print("lines", len(A.lines), "auto nops", A.nauto, "lds", LDS_TOTAL, file=sys.stderr)
    return txt + KD.format(name=name, vgpr=256, sgpr=96, acc=256)

if __name__ == "__main__":
    O = Opt()
    for a_ in sys.argv[2:]:
        k, val = a_.split("="); assert hasattr(O, k), k; setattr(O, k, int(val))
    open(sys.argv[1], "w").write(build(O))
```

```python
import sys
from parts import *

WS_ACK = 2048
WS_STATS = 4096
WS_SEL = 24576
WS_G = 32768
WS_Y = WS_G + 8 * 57344
WS_SIZE = WS_Y + 128 * 2048
WS_STAMP = 128 << 20
SPIN_MAX = 1 << 16
XS = 131072; XST = 1040
KEYS = XS + 9 * XST
CTL = KEYS + 8192
PART = 24512; WDST = 7184
KST = 8448; TBASE = 8 * KST; TST = 3072; PB_E = 2240
UBASE = TBASE + 8 * TST; UST = 4608; EBASE = UBASE + 8 * UST; EST = 4160; CNT = EBASE + 8 * EST
LDS_TOTAL = max(CTL + 512, CNT + 64)
vL, vI, vG = 1, 2, 3
KN, KE, KO, K3, KC = 16, 84, 96, 108, 124
BAND = 128; ACC = 144; UB = 176; NUB = 6; U24 = 200; BOXD = 204; BOXOP = 228; XR = 240

class Opt:
    stamps = 0
    poll_sleep = 2
    aux_first_sleep = 28
    sel_first_sleep = 86
    g_first_sleep = 3
    n0 = 8
    wd_early = 12
    xcol_at = 14
    xcol_gap = 3
    xcol_per = 2
    code_pf = 2
    addtid = 1
    per_gap = 2
    u_lead = 6
    age = 6
    mlag = 7
    head = 0
    pre_k = 0
    early_k = 0
    prio = 1
    row_nt = 0
    w_nt = 1
    wd_nt = 1
    par_nt = 1
    exp = 0
    probe_role = 0
    probe_j = 0
    probe_k = 0

class Stamper:
    def __init__(self, A, on, base=72):
        self.A = A; self.on = on; self.n = 0; self.base = base
    def __call__(self, L=None):
        if not self.on: return
        A = self.A
        if L is not None: L.drain()
        A("s_memrealtime s[92:93]"); A("s_waitcnt lgkmcnt(0)"); A(f"s_mov_b32 {s(self.base+self.n)}, s92")
        self.n += 1; assert self.n <= 16
    def cyc0(self, r):
        if self.on: self.A(f"s_memtime {s(r,2)}"); self.A("s_waitcnt lgkmcnt(0)")
    def cyc1(self, r):
        if not self.on: return
        A = self.A
        A("s_memtime s[92:93]"); A("s_waitcnt lgkmcnt(0)"); A(f"s_sub_u32 s92, s92, {s(r)}"); A(f"s_add_u32 {s(self.base+self.n)}, s92, {s(self.base)}"); self.n += 1
    def probe(self, sWave, uid, j, k):
        A = self.A
        A(f"s_cmp_lg_u32 {s(sWave)}, 0"); A(f"s_cbranch_scc1 L_noprobe_{uid}")
        A(f"s_sub_u32 s90, {s(self.base+j)}, {s(self.base)}"); A(f"s_mul_i32 s90, s90, {k}"); A("s_min_u32 s90, s90, 20000")
        A("s_memrealtime s[92:93]"); A("s_waitcnt lgkmcnt(0)"); A("s_mov_b32 s91, s92")
        A(f"L_probe_{uid}:")
        A("s_memrealtime s[92:93]"); A("s_waitcnt lgkmcnt(0)"); A("s_sub_u32 s92, s92, s91"); A("s_cmp_lt_u32 s92, s90"); A(f"s_cbranch_scc1 L_probe_{uid}")
        A(f"L_noprobe_{uid}:")
    def flush(self, sWave, uid):
        if not self.on: return
        A = self.A
        A(f"s_and_b32 s92, {s(sWave)}, 3"); A("s_cmp_lg_u32 s92, 0"); A(f"s_cbranch_scc1 L_nostamp_{uid}")
        A("s_mov_b64 exec, -1")
        A(f"s_load_dwordx2 s[88:89], s[0:1], {OFF['ws']}"); A("s_waitcnt lgkmcnt(0)")
        A(f"s_add_u32 s88, s88, {WS_STAMP}"); A("s_addc_u32 s89, s89, 0"); A("s_mov_b32 s90, 0x20000"); A("s_mov_b32 s91, 0x00020000")
        A("v_mov_b32 v2, 0")
        for j in range(self.n): A(f"v_writelane_b32 v2, {s(self.base+j)}, {j}")
        A(f"s_mov_b32 s92, {self.n}"); A("v_writelane_b32 v2, s92, 30")
        A("s_mov_b32 s92, 0x5a5a5a5a"); A("v_writelane_b32 v2, s92, 31")
        A(f"s_lshr_b32 s92, {s(sWave)}, 2"); A("s_lshl_b32 s93, s2, 1"); A("s_add_u32 s92, s92, s93"); A("s_lshl_b32 s92, s92, 7")
        A("v_and_b32 v3, 63, v0"); A("v_lshl_add_u32 v3, v3, 2, s92")
        A("s_mov_b64 exec, 0xffffffff")
        A("buffer_store_dword v2, v3, s[88:91], 0 offen")
        A(f"L_nostamp_{uid}:")

PX_, PLAR, PAIM, PCRE, PCIM, PLDT, PDSK, PWR, PWG, PWU, PWD, POUT, PWS = 4, 6, 8, 10, 12, 14, 16, 22, 24, 26, 28, 30, 34
sW = 56
def mk_srd(A, d, p, size):
    A(f"s_mov_b64 {s(d,2)}, {s(p,2)}"); A(f"s_mov_b32 {s(d+2)}, {size}"); A(f"s_mov_b32 {s(d+3)}, 0x00020000")
def signal(A, vAddr, vOne, off):
    A("s_mov_b64 exec, 1"); A(f"ds_add_u32 {v(vAddr)}, {v(vOne)} offset:{off}"); A("s_mov_b64 exec, -1")

def tag_from_epoch(A, sE, sT):
    A(f"s_mul_i32 {s(sT)}, {s(sE)}, 0x9e3779b1"); A(f"s_add_u32 {s(sT)}, {s(sT)}, 0x7f4a7c15")

def bounded(A, sCnt, out, lim=SPIN_MAX):
    A(f"s_add_u32 {s(sCnt)}, {s(sCnt)}, 1"); A(f"s_cmp_ge_u32 {s(sCnt)}, {lim}"); A(f"s_cbranch_scc1 {out}")

def poll(A, uid, loads, tagregs, sT, sCnt, vT, sleep):
    A(f"s_mov_b32 {s(sCnt)}, 0")
    A(f"L_poll_{uid}:")
    for x in loads: A(x)
    A("s_waitcnt vmcnt(0)")
    A(f"v_xor_b32 {v(vT)}, {s(sT)}, {v(tagregs[0])}")
    for r in tagregs[1:]: A(f"v_bitop3_b32 {v(vT)}, {v(vT)}, {v(r)}, {s(sT)} bitop3:0xf6")
    A(f"v_cmp_ne_u32 vcc, 0, {v(vT)}")
    A(f"s_cbranch_vccz L_polled_{uid}")
    bounded(A, sCnt, f"L_polled_{uid}")
    if sleep: A(f"s_sleep {sleep}")
    A(f"s_branch L_poll_{uid}")
    A(f"L_polled_{uid}:")

def poll_masked(A, uid, loads, tagregs, sT, sCnt, sM, sleep, issued=False):
    n = len(loads)
    if not issued:
        for x in loads: A(x)
    A(f"s_mov_b32 {s(sCnt)}, 0")
    A(f"L_poll_{uid}:")
    A("s_waitcnt vmcnt(0)")
    for k in range(n): A(f"v_cmp_ne_u32 {s(sM+2*k,2)}, {s(sT)}, {v(tagregs[k])}")
    if n == 1: A(f"s_cmp_eq_u64 {s(sM,2)}, 0"); A(f"s_cbranch_scc1 L_polled_{uid}")
    else:
        A(f"s_or_b64 vcc, {s(sM,2)}, {s(sM+2,2)}")
        for k in range(2, n): A(f"s_or_b64 vcc, vcc, {s(sM+2*k,2)}")
        A(f"s_cbranch_scc0 L_polled_{uid}")
    bounded(A, sCnt, f"L_polled_{uid}")
    if sleep: A(f"s_sleep {sleep}")
    for k in range(n):
        A(f"s_mov_b64 exec, {s(sM+2*k,2)}"); A(f"s_cbranch_execz L_ps_{uid}_{k}")
        A(loads[k])
        A(f"L_ps_{uid}_{k}:")
    A("s_mov_b64 exec, -1")
    A(f"s_branch L_poll_{uid}")
    A(f"L_polled_{uid}:")

def lds_count_wait(A, uid, vAddr, off, n, vTmp, sTmp, sCnt, sleep=0):
    A(f"s_mov_b32 {s(sCnt)}, 0")
    A(f"L_lw_{uid}:")
    A(f"ds_read_b32 {v(vTmp)}, {v(vAddr)} offset:{off}")
    bounded(A, sCnt, f"L_lwx_{uid}", SPIN_MAX * 8)
    A("s_waitcnt lgkmcnt(0)")
    A(f"v_readfirstlane_b32 {s(sTmp)}, {v(vTmp)}")
    A(f"s_cmp_ge_u32 {s(sTmp)}, {n}"); A(f"s_cbranch_scc1 L_lwx_{uid}")
    if sleep: A(f"s_sleep {sleep}")
    A(f"s_branch L_lw_{uid}")
    A(f"L_lwx_{uid}:")
    A("s_waitcnt lgkmcnt(0)")

def code_prefetch(A, uid, sP, vA, vD, label, n, back=False):
    A(f"s_getpc_b64 {s(sP,2)}")
    A(f"L_pc_{uid}:")
    if back: A(f"s_sub_u32 {s(sP)}, {s(sP)}, L_pc_{uid}-{label}"); A(f"s_subb_u32 {s(sP+1)}, {s(sP+1)}, 0")
    else: A(f"s_add_u32 {s(sP)}, {s(sP)}, {label}-L_pc_{uid}"); A(f"s_addc_u32 {s(sP+1)}, {s(sP+1)}, 0")
    A(f"s_mov_b32 {s(sP+2)}, L_code_end-{label}"); A(f"s_mov_b32 {s(sP+3)}, 0x00020000")
    A(f"v_lshlrev_b32 {v(vA)}, 7, {v(vL)}")
    for k in range(n):
        if k: A(f"v_add_u32 {v(vA)}, 8192, {v(vA)}")
        A(f"buffer_load_dword {v(vD)}, {v(vA)}, {s(sP,4)}, 0 offen")

sX, sA, sE, sT, sKH, sNT, sLINE = 57, 58, 59, 60, 61, 62, 63
sGB, sTB, sM, sO1, sO2 = 64, 65, 70, 30, 31
C_GATE, C_PUB, C_WD, C_XS, C_PP, C_SLOW, C_ISS, C_TAG, C_FREE, C_GP = 260, 264, 268, 272, 276, 256, 280, 284, 288, 292

def aux_entry(A, O):
    A(f"s_and_b32 {s(sX)}, s2, 7"); A(f"s_lshl_b32 {s(sA)}, {s(sX)}, 4"); A(f"s_add_u32 {s(sA)}, {s(sA)}, s3")
    A(f"s_cmp_ge_u32 {s(sW)}, 4"); A("s_cbranch_scc1 L_aux_sinit")
    A(f"s_lshl_b32 s36, {s(sA)}, 2"); A(f"s_add_u32 s36, s36, {s(sW)}"); A("s_lshl_b32 s36, s36, 13"); A("s_add_u32 s36, s36, 4096")
    A(f"v_lshlrev_b32 v28, 4, {v(vL)}"); A("v_add_u32 v30, s36, v28")
    A("s_waitcnt lgkmcnt(0)")
    for k in range(2): A(f"global_load_dwordx4 {v(64+4*k,4)}, v28, {s(PWR,2)} offset:{1024*k}")
    for k in range(8): A(f"global_load_dwordx4 {v(32+4*k,4)}, v30, {s(PX_,2)} offset:{1024*k-4096}{' nt' if O.row_nt else ''}")
    A(f"s_load_dword {s(sE)}, {s(PWS,2)}, 0")

def tile_map(A):
    A(f"s_and_b32 {s(sKH)}, s3, 1"); A("s_lshr_b32 s6, s3, 1")
    A(f"s_add_u32 s7, {s(sX)}, 3"); A("s_and_b32 s7, s7, 7")
    A("s_cmp_eq_u32 s7, 7"); A("s_cselect_b32 s8, 7, 6")
    A("s_add_u32 s9, s6, 1"); A("s_cmp_eq_u32 s9, s8"); A("s_cselect_b32 s9, 0, s9")
    A("s_cmp_ge_u32 s9, s7"); A("s_addc_u32 s9, s9, 0")
    A("s_cmp_ge_u32 s6, s7"); A("s_addc_u32 s10, s6, 0")
    A("s_cmp_eq_u32 s7, 7"); A(f"s_cselect_b32 {s(sNT)}, 0, 1")
    A("s_cmp_lt_u32 s6, s8"); A(f"s_cselect_b32 {s(sNT)}, 2, {s(sNT)}"); A("s_cselect_b32 s10, s10, s7")
    A("s_cselect_b32 s11, 0, s6"); A("s_and_b32 s11, s11, 1")
    A("s_cmp_ge_u32 s3, 3"); A(f"s_addc_u32 {s(sLINE)}, s3, 0"); A("s_cmp_ge_u32 s3, 10"); A(f"s_addc_u32 {s(sLINE)}, {s(sLINE)}, 0")
    A("s_sub_u32 s12, s6, s8"); A("s_cmp_eq_u32 s12, 1"); A(f"s_cselect_b32 {s(sLINE)}, s3, {s(sLINE)}")
    A(f"s_lshl_b32 s13, {s(sKH)}, 3"); A("s_add_u32 s13, s13, 3"); A("s_cmp_eq_u32 s12, 0"); A(f"s_cselect_b32 {s(sLINE)}, s13, {s(sLINE)}")
    A(f"s_mul_i32 {s(sGB)}, {s(sX)}, 57344"); A(f"s_add_u32 {s(sGB)}, {s(sGB)}, {WS_G}")

def gen_aux(A, O):
    L = Lgkm(A); ST = Stamper(A, O.stamps)
    def common_init():
        A(f"v_and_b32 {v(vI)}, 15, v0"); A(f"v_bfe_u32 {v(vG)}, v0, 4, 2")
        A(f"v_mov_b32 v22, {CTL}"); A("v_mov_b32 v23, 1")
        mk_srd(A, 40, PWS, WS_SIZE)
        tile_map(A)
    def tagbytes():
        for k in range(4): A(f"s_bfe_u32 {s(sTB+k)}, {s(sT)}, {hex(8*k | (8 << 16))}")
    if O.prio & 1: A("s_setprio 2")
    if O.stamps: A(f"s_mov_b32 s72, s95"); ST.n = 1
    X, W = 32, 64
    mk_srd(A, 36, PX_, SIZE["x"]); mk_srd(A, 52, PWD, SIZE["wd"])
    common_init()
    A("s_barrier")
    A(f"s_lshl_b32 s6, {s(sA)}, 5"); A(f"s_add_u32 s6, s6, {WS_STATS}")
    A(f"v_bfe_u32 v11, {v(vL)}, 1, 2"); A("v_lshlrev_b32 v11, 12, v11"); A(f"v_and_b32 v10, 1, {v(vL)}"); A("v_lshl_add_u32 v11, v10, 4, v11")
    A("v_add_u32 v11, s6, v11")
    A(f"s_and_b32 s6, {s(sW)}, 1"); A("s_lshl_b32 s6, s6, 6"); A(f"s_lshr_b32 s7, {s(sW)}, 1"); A("s_lshl_b32 s7, s7, 4")
    A("s_add_u32 s6, s6, s7"); A(f"s_add_u32 s6, s6, {CTL+320}")
    A(f"v_lshlrev_b32 v10, 5, {v(vG)}"); A("v_add_u32 v10, s6, v10")
    A(f"v_lshl_add_u32 v9, {v(vL)}, 4, v22")
    A("s_mov_b32 s8, 0x3f803f80")
    S1, S2, S3, SW = 72, 76, 80, 84
    def dot(d, x, y, first):
        A(f"v_dot2_f32_bf16 {v(d)}, {x}, {v(y)}, 0" if first else f"v_dot2c_f32_bf16 {v(d)}, {x}, {v(y)}")
    A("s_waitcnt vmcnt(8)")
    for k in range(8): dot(SW + (k & 1), "s8", W + k, k < 2)
    for r in range(4):
        A(f"s_waitcnt vmcnt({6-2*r})")
        if r == 3: ST()
        for k in range(8):
            x = X + 8 * r + k
            dot(S1 + r, "s8", x, k == 0); dot(S2 + r, v(x), x, k == 0); dot(S3 + r, v(W + k), x, k == 0)
        if r == 0: A(f"v_add_f32 {v(SW)}, {v(SW)}, {v(SW+1)}")
        if r == 1: A(f"v_mov_b32 {v(SW+1)}, {v(SW)}")
    pairs = [(SW, SW + 1)] + [(q + r, q + r + 1) for r in (0, 2) for q in (S1, S2, S3)]
    for p, q in pairs: A(f"v_permlane32_swap_b32 {v(p)}, {v(q)}")
    for p, q in pairs: A(f"v_add_f32 {v(p)}, {v(p)}, {v(q)}")
    A(f"v_mov_b32 {v(SW+2)}, {v(SW)}")
    R4 = (S1, S2, S3, SW)
    for p in R4: A(f"v_permlane16_swap_b32 {v(p)}, {v(p+2)}")
    for p in R4: A(f"v_add_f32 {v(p)}, {v(p)}, {v(p+2)}")
    for n in (8, 4, 2, 1):
        for p in R4: A(dpp("v_add_f32", p, p, p, f"row_ror:{n}"))
    MEAN, VAR, T, MB, RS = 42, 43, 44, 45, 46
    A("s_waitcnt lgkmcnt(0)")
    tag_from_epoch(A, sE, sT)
    A(f"v_mul_f32 {v(MEAN)}, {f32bits(1/1024)}, {v(S1)}")
    A(f"v_mul_f32 {v(VAR)}, {f32bits(1/1024)}, {v(S2)}")
    A(f"v_fma_f32 {v(VAR)}, -{v(MEAN)}, {v(MEAN)}, {v(VAR)}")
    A(f"v_max_f32 {v(VAR)}, 0, {v(VAR)}")
    A(f"v_cvt_pk_bf16_f32 {v(MEAN)}, {v(MEAN)}, {v(VAR)}")
    A(f"v_and_b32 {v(VAR)}, {MASKHI}, {v(MEAN)}")
    A(f"v_lshlrev_b32 {v(MB)}, 16, {v(MEAN)}")
    A(f"v_add_f32 {v(VAR)}, {f32bits(1e-5)}, {v(VAR)}")
    A(f"v_cvt_pk_bf16_f32 {v(VAR)}, {v(VAR)}, {v(VAR)}")
    A(f"v_and_b32 {v(VAR)}, {MASKHI}, {v(VAR)}")
    A(f"v_sqrt_f32 {v(VAR)}, {v(VAR)}")
    A(f"v_fma_f32 {v(T)}, -{v(MB)}, {v(SW)}, {v(S3)}")
    A(f"v_cvt_pk_bf16_f32 v60, {v(MB)}, {v(VAR)}")
    A(f"v_and_b32 {v(VAR)}, {MASKHI}, v60")
    A(f"v_rcp_f32 {v(RS)}, {v(VAR)}")
    A("v_mov_b32 v61, v60")
    A(f"v_mul_f32 {v(T)}, {v(T)}, {v(RS)}")
    A(f"v_cvt_pk_bf16_f32 v64, {v(T)}, {v(T)}")
    A("v_ashrrev_i32 v65, 31, v64"); A("v_or_b32 v65, 0x80000000, v65"); A("v_xor_b32 v64, v64, v65")
    A("v_permlane32_swap_b32 v60, v61")
    A("v_lshrrev_b32 v64, 16, v64"); A(f"v_mov_b32 v63, {s(sT)}"); A("v_mov_b32 v65, v64")
    A("v_permlane32_swap_b32 v64, v65")
    A("v_lshl_or_b32 v62, v65, 16, v64")
    A("s_mov_b64 exec, 0x10001")
    A("ds_write_b128 v10, v[60:63]")
    A("s_mov_b64 exec, 1"); A(f"ds_add_rtn_u32 v13, v22, v23 offset:{C_PUB}")
    A("s_mov_b64 exec, 0xff"); A("ds_read_b128 v[60:63], v9 offset:320")
    A("s_waitcnt lgkmcnt(0)")
    A("v_readfirstlane_b32 s6, v13"); A("s_cmp_lg_u32 s6, 3"); A("s_cbranch_scc1 L_aux_nopub")
    A("buffer_store_dwordx4 v[60:63], v11, s[40:43], 0 offen sc1")
    A(f"ds_write_b32 v22, v63 offset:{C_TAG}"); A(f"ds_write_b32 v22, v23 offset:{C_GATE}")
    A("L_aux_nopub:")
    A("s_mov_b64 exec, -1")
    ST()
    tagbytes()
    A(f"s_cmp_lg_u32 {s(sA)}, {4*16+14}"); A("s_cbranch_scc1 L_aux_cons")
    GR, KY, RI = 64, 80, 88
    A(f"v_lshlrev_b32 v12, 4, v0"); A(f"v_add_u32 v12, {WS_STATS}, v12")
    A("v_lshlrev_b32 v13, 3, v0"); A("v_sub_u32 v13, 0x800, v13")
    for k in range(8): A(f"v_subrev_u32 {v(RI+k)}, {k}, v13")
    A("s_mov_b32 s6, 4096"); A("s_mov_b32 s7, 8192"); A("s_mov_b32 s8, 12288"); A(f"s_mov_b32 s9, {MASKHI}")
    A("v_lshrrev_b32 v24, 4, v0"); A("v_lshl_add_u32 v24, v24, 2, v22")
    A(f"v_lshl_add_u32 v25, {v(vI)}, 2, v22")
    A(f"v_and_b32 v26, 31, {v(vL)}"); A("v_lshl_add_u32 v26, v26, 2, v22")
    A(f"v_lshrrev_b32 v27, 5, {v(vL)}"); A("v_lshl_add_u32 v27, v27, 6, v22")
    A(f"s_lshl_b32 s10, {s(sW)}, 5"); A(f"s_add_u32 s10, s10, {CTL+64}")
    A(f"v_lshl_add_u32 v31, {v(vL)}, 2, s10")
    A("v_lshlrev_b32 v9, 5, v0")
    if O.aux_first_sleep: A(f"s_sleep {O.aux_first_sleep}")
    so = ["0", "s6", "s7", "s8"]
    poll_masked(A, "aux", [f"buffer_load_dwordx4 {v(GR+4*k,4)}, v12, s[40:43], {so[k]} offen sc1" for k in range(4)],
                [GR + 4 * k + 3 for k in range(4)], sT, 11, 12, O.poll_sleep)
    ST()
    for k in range(4):
        A(f"v_lshl_or_b32 {v(KY+2*k)}, {v(GR+4*k+2)}, 16, {v(RI+2*k)}")
        A(f"v_and_or_b32 {v(KY+2*k+1)}, {v(GR+4*k+2)}, s9, {v(RI+2*k+1)}")
    M1, M2, M3 = 14, 15, 16
    A(f"v_max3_u32 v17, {v(KY)}, {v(KY+1)}, {v(KY+2)}"); A(f"v_max3_u32 v18, {v(KY+3)}, {v(KY+4)}, {v(KY+5)}")
    A(f"v_max3_u32 v17, v17, {v(KY+6)}, {v(KY+7)}"); A("v_max_u32 v17, v17, v18")
    net = [f"v_max_u32 {v(M1)}, {v(KY)}, {v(KY+1)}", f"v_min_u32 {v(M2)}, {v(KY)}, {v(KY+1)}", f"v_mov_b32 {v(M3)}, 0"]
    for k in range(2, 8):
        net += [f"v_med3_u32 {v(M3)}, {v(M2)}, {v(M3)}, {v(KY+k)}", f"v_med3_u32 {v(M2)}, {v(M1)}, {v(M2)}, {v(KY+k)}",
                f"v_max_u32 {v(M1)}, {v(M1)}, {v(KY+k)}"]
    for n in (8, 4, 2, 1):
        A(net.pop(0)); A(net.pop(0)); A(dpp("v_max_u32", 17, 17, 17, f"row_ror:{n}"))
    A("ds_write_b32 v24, v17")
    A("ds_read_b32 v17, v25")
    for k in range(4): A(f"ds_write_b64 v9, {v(GR+4*k,2)} offset:{8*k}")
    A.ext(net)
    A("v_mov_b32 v19, 0"); A("s_mov_b32 s11, 0")
    A("s_waitcnt lgkmcnt(4)")
    A("L_aux_gm:")
    A("v_cmp_eq_u32 vcc, 0, v17"); A("s_cbranch_vccz L_aux_gmok")
    A("ds_read_b32 v17, v25")
    A("s_waitcnt lgkmcnt(0)")
    bounded(A, 11, "L_aux_gmok", SPIN_MAX * 8); A("s_branch L_aux_gm")
    A("L_aux_gmok:")
    ST()
    for n in range(1, 16):
        A(f"v_sub_co_u32_dpp v20, vcc, v17, v17 row_ror:{n} row_mask:0xf bank_mask:0xf")
        A.raw("v_addc_co_u32 v19, vcc, 0, v19, vcc ; nohaz")
    A("v_cmp_eq_u32 vcc, 8, v19"); A("s_ff1_i32_b64 s12, vcc"); A("v_readlane_b32 s12, v17, s12")
    A("v_mov_b32 v18, 1")
    A(f"v_cmp_le_u32 s[14:15], s12, {v(M1)}"); A(f"v_cmp_le_u32 s[16:17], s12, {v(M2)}"); A(f"v_cmp_le_u32 s[18:19], s12, {v(M3)}")
    A("s_bcnt1_i32_b64 s12, s[14:15]"); A("s_bcnt1_i32_b64 s20, s[16:17]")
    A("v_mbcnt_lo_u32_b32 v20, s14, 0"); A("v_mbcnt_lo_u32_b32 v21, s16, 0")
    A("v_mbcnt_hi_u32_b32 v20, s15, v20"); A("v_mbcnt_hi_u32_b32 v21, s17, v21")
    A("s_add_u32 s20, s20, s12"); A("s_lshl_b32 s12, s12, 2"); A("s_add_u32 s12, s12, s10")
    A("v_lshl_add_u32 v20, v20, 2, s10"); A("v_lshl_add_u32 v21, v21, 2, s12")
    A("s_cmp_lg_u64 s[18:19], 0"); A("s_cselect_b32 s20, 9, s20"); A("s_cmp_gt_u32 s20, 8"); A("s_cbranch_scc0 L_aux_fit")
    A("s_mov_b64 s[14:15], 0"); A("s_mov_b64 s[16:17], 0"); A("s_mov_b32 s20, 0"); A("v_mov_b32 v18, 2")
    A("L_aux_fit:")
    A("s_lshl_b32 s20, 0xff, s20"); A("s_and_b32 s20, s20, 0xff"); A("s_mov_b32 s21, 0")
    A("s_mov_b64 exec, s[14:15]"); A(f"ds_write_b32 v20, {v(M1)}")
    A("s_mov_b64 exec, s[16:17]"); A(f"ds_write_b32 v21, {v(M2)}")
    A("s_mov_b64 exec, s[20:21]"); A("ds_write_b32 v31, v18")
    A("s_mov_b64 exec, -1")
    LS = 64
    A("s_mov_b32 s11, 0"); A("v_mov_b32 v20, 0")
    A("L_aux_ls:")
    A("ds_read_b32 v17, v26 offset:64")
    for k in range(4): A(f"ds_read_b128 {v(LS+4*k,4)}, v27 offset:{64+16*k}")
    A("s_waitcnt lgkmcnt(4)")
    A("v_cmp_eq_u32 vcc, 0, v17"); A("s_cbranch_vccz L_aux_lsok")
    A("s_waitcnt lgkmcnt(0)")
    bounded(A, 11, "L_aux_lsok", SPIN_MAX * 8); A("s_branch L_aux_ls")
    A("L_aux_lsok:")
    A("v_cmp_eq_u32 vcc, 2, v17"); A("s_cbranch_vccnz L_aux_slow")
    A(f"s_cmp_ge_u32 {s(sW)}, 2"); A("s_cbranch_scc1 L_aux_wd")
    A(f"s_cmp_eq_u32 {s(sW)}, 1"); A("s_cbranch_scc1 L_aux_nox")
    A("v_and_b32 v60, 0xfff, v17"); A("v_sub_u32 v60, 0x800, v60")
    A("v_lshlrev_b32 v15, 2, v60"); A("ds_read_b32 v62, v15")
    for k in range(16):
        if k % 4 == 0: A(f"s_waitcnt lgkmcnt({4-k//4})")
        A(f"v_cmp_gt_u32 vcc, {v(LS+k)}, v17")
        A.raw("v_addc_co_u32 v20, vcc, 0, v20, vcc ; nohaz")
    sig = [f"v_and_b32 v14, {MASKHI}, v17", "v_ashrrev_i32 v15, 31, v14", "v_not_b32 v15, v15", "v_or_b32 v15, 0x80000000, v15",
           "v_xor_b32 v14, v14, v15", f"v_and_b32 v14, {MASKHI}, v14", f"v_mul_f32 v14, {f32bits(-LOG2E)}, v14", "v_exp_f32 v14, v14",
           f"v_mov_b32 v63, {s(sT)}", "v_add_f32 v14, 1.0, v14", "v_rcp_f32 v14, v14"]
    A("v_mov_b32 v21, v20"); A(sig[0]); A(sig[1]); A("v_permlane32_swap_b32 v20, v21"); A(sig[2]); A("v_add_u32 v20, v20, v21")
    A.ext(sig[3:])
    A("L_aux_sel:")
    A("v_cmp_gt_u32 vcc, 8, v20"); A("v_lshlrev_b32 v21, 4, v20"); A(f"v_add_u32 v21, {WS_SEL}, v21")
    A("v_cvt_pk_bf16_f32 v14, v14, v14"); A(f"v_and_b32 v61, {MASKHI}, v14")
    A("s_mov_b32 exec_lo, vcc_lo"); A("s_mov_b32 exec_hi, 0")
    A("s_waitcnt lgkmcnt(0)")
    A("buffer_store_dwordx4 v[60:63], v21, s[40:43], 0 offen sc1")
    A("s_mov_b64 exec, -1")
    ST()
    A("L_aux_nox:")
    signal(A, 22, 23, C_WD)
    A("s_branch L_aux_b4")
    A("L_aux_cons:")
    A(f"s_cmp_ge_u32 {s(sW)}, 2"); A("s_cbranch_scc1 L_aux_wd")
    A(f"s_cmp_eq_u32 {s(sNT)}, 0"); A("s_cbranch_scc1 L_aux_nox")
    SE = 60
    A(f"v_and_b32 v14, 7, {v(vL)}"); A("v_lshlrev_b32 v21, 4, v14"); A(f"v_add_u32 v21, {WS_SEL}, v21"); A("v_lshl_add_u32 v15, v14, 2, v22")
    A(f"s_mul_i32 s6, {s(sW)}, {4*XST}"); A(f"s_add_u32 s6, s6, {XS}"); A(f"s_lshl_b32 s7, {s(sKH)}, 10"); A(f"s_lshl_b32 s9, {s(sW)}, 2")
    if O.sel_first_sleep: A(f"s_sleep {O.sel_first_sleep}")
    A("s_mov_b64 exec, 0xff"); A("s_mov_b32 s11, 0")
    A("L_aux_sp:")
    A(f"buffer_load_dwordx4 {v(SE,4)}, v21, s[40:43], 0 offen sc1")
    A("s_waitcnt vmcnt(0)")
    A(f"v_cmp_ne_u32 vcc, {s(sT)}, {v(SE+3)}"); A("s_cbranch_vccz L_aux_spok")
    bounded(A, 11, "L_aux_spok")
    if O.poll_sleep: A(f"s_sleep {O.poll_sleep}")
    A("s_branch L_aux_sp")
    A("L_aux_spok:")
    A(f"v_lshl_add_u32 {v(SE)}, {v(SE)}, 11, s7")
    A(f"ds_write_b32 v15, {v(SE+2)} offset:192")
    A("s_mov_b64 exec, -1")
    ST.n -= 3; ST()
    for t in range(4):
        A(f"v_readlane_b32 {s(12+t)}, {v(SE)}, s9")
        if t < 3: A("s_add_u32 s9, s9, 1")
    for t in range(4):
        A(f"s_add_u32 m0, s6, {XST*t}")
        A(f"buffer_load_dwordx4 v28, s[36:39], {s(12+t)} offen lds")
    A("s_mov_b64 exec, 1"); A(f"ds_add_u32 v22, v23 offset:{C_WD}")
    ST()
    A("s_waitcnt vmcnt(0)")
    A(f"ds_add_u32 v22, v23 offset:{C_XS}"); A("s_mov_b64 exec, -1")
    ST()
    A("s_branch L_aux_b4")
    A("L_aux_wd:")
    A(f"s_mul_i32 s6, {s(sX)}, {448*2048}"); A(f"s_lshl_b32 s7, {s(sLINE)}, 7"); A("s_add_u32 s6, s6, s7")
    A(f"s_and_b32 s7, {s(sW)}, 1"); A("s_lshl_b32 s8, s7, 14"); A("s_add_u32 s6, s6, s8")
    A(f"v_lshrrev_b32 v14, 3, {v(vL)}"); A(f"v_and_b32 v15, 7, {v(vL)}"); A(f"v_xor_b32 v15, v15, {v(vG)}")
    A("s_lshl_b32 s8, s7, 2"); A("v_xor_b32 v15, s8, v15")
    A("v_lshlrev_b32 v14, 11, v14"); A("v_lshl_add_u32 v14, v15, 4, v14"); A("v_add_u32 v14, s6, v14")
    A("s_lshl_b32 s7, s7, 10")
    if O.prio & 1: A("s_setprio 0")
    WD = 128
    def wd(lo, hi):
        for i in range(lo, hi):
            A(f"s_mov_b32 s6, {32768*i}")
            A(f"buffer_load_dwordx4 {v(WD+4*i,4)}, v14, s[52:55], s6 offen{' nt' if O.wd_nt else ''}")
    A(f"v_lshl_add_u32 v20, {v(vL)}, 4, s7"); A("v_add_u32 v21, 0x10000, v20")
    if O.wd_early:
        A(f"s_and_b32 s8, {s(sLINE)}, 7"); A("s_cmp_eq_u32 s8, 3"); A(f"s_cselect_b32 s8, {s(sNT)}, 0"); A("s_cmp_lg_u32 s8, 1"); A("s_cbranch_scc1 L_aux_wdl")
        lds_count_wait(A, "iss", 22, C_ISS, 4, 18, 8, 11, 1)
        wd(0, O.wd_early)
        lds_count_wait(A, "wd2", 22, C_WD, 2, 18, 8, 11)
        A("s_branch L_aux_wdr")
        A("L_aux_wdl:")
    lds_count_wait(A, "wd", 22, C_WD, 2, 18, 8, 11)
    wd(0, O.wd_early)
    A("L_aux_wdr:")
    wd(O.wd_early, 28)
    lds_count_wait(A, "gp", 22, C_GP, 4, 18, 8, 11, 1)
    for i in range(28):
        if i % 4 == 0: A(f"s_waitcnt vmcnt({24-i})")
        A(f"ds_write_b128 {v(20+(i>>4))}, {v(WD+4*i,4)} offset:{32768*((i>>3)&1) + 2048*(i&7)}")
    A("s_waitcnt lgkmcnt(0)")
    A("s_branch L_aux_b5")
    A("L_aux_sinit:")
    ST.n = 0
    if O.stamps: A(f"s_mov_b32 s72, s95"); ST.n = 1
    A(f"v_mov_b32 v98, {CTL}"); A("v_mov_b32 v96, 0"); A("v_mov_b32 v97, 0"); A(f"v_lshl_add_u32 v98, {v(vL)}, 3, v98")
    A("ds_write_b64 v98, v[96:97]")
    A("v_mov_b32 v96, 0x3f803f80"); A("v_and_b32 v98, 255, v0"); A(f"v_lshlrev_b32 v98, 2, v98"); A(f"v_add_u32 v98, {XS+8*XST}, v98")
    A("ds_write_b32 v98, v96")
    A("s_waitcnt lgkmcnt(0)")
    common_init()
    A("s_cmp_eq_u32 s11, 1"); A(f"s_cselect_b64 s[44:45], {s(PWU,2)}, {s(PWG,2)}"); A(f"s_mov_b32 s46, {SIZE['wg']}"); A("s_mov_b32 s47, 0x00020000")
    mk_srd(A, 48, PWU, SIZE["wu"])
    A(f"s_lshl_b32 s12, {s(sKH)}, 1"); A("s_add_u32 s13, s12, s11"); A("s_mul_i32 s13, s13, 14336"); A(f"s_lshl_b32 {s(sO1)}, s10, 11"); A(f"s_add_u32 {s(sO1)}, {s(sO1)}, s13")
    A("s_add_u32 s13, s12, 1"); A("s_mul_i32 s13, s13, 14336"); A(f"s_lshl_b32 {s(sO2)}, s9, 11"); A(f"s_add_u32 {s(sO2)}, {s(sO2)}, s13")
    A(f"v_bfe_u32 v96, {v(vL)}, 3, 2"); A(f"v_lshrrev_b32 v97, 5, {v(vL)}"); A("v_lshl_add_u32 v96, v97, 3, v96")
    A("v_mul_u32_u24 v96, 7168, v96")
    A(f"v_lshlrev_b32 v98, 1, {v(vG)}"); A(f"v_and_b32 v94, 7, {v(vL)}"); A("v_xor_b32 v98, v98, v94")
    A(f"s_mul_i32 s12, {s(sX)}, 896"); A("s_lshl_b32 s10, s10, 7"); A("s_lshl_b32 s9, s9, 7"); A("s_add_u32 s10, s10, s12"); A("s_add_u32 s9, s9, s12")
    A("v_lshl_add_u32 v96, v98, 4, v96"); A("v_add_u32 v97, s9, v96"); A("v_add_u32 v96, s10, v96")
    sRG, sRW = 32, 33
    A(f"s_sub_u32 {s(sRG)}, {s(sW)}, 4"); A(f"s_lshl_b32 {s(sRW)}, {s(sKH)}, 2"); A(f"s_add_u32 {s(sRW)}, {s(sRW)}, {s(sRG)}"); A(f"s_mul_i32 {s(sRW)}, {s(sRW)}, {128*7168}")
    A(f"s_lshl_b32 {s(sRG)}, {s(sRG)}, 15")
    A("s_barrier")
    def gate(uid):
        lds_count_wait(A, uid, 22, C_GATE, 1, 18, 8, 11, 1)
        A(f"ds_read_b32 v18, v22 offset:{C_TAG}"); A("s_waitcnt lgkmcnt(0)"); A(f"v_readfirstlane_b32 {s(sT)}, v18")
    A(f"s_cmp_eq_u32 {s(sNT)}, 0"); A("s_cbranch_scc1 L_aux_idle")
    ST()
    assert O.n0 <= 16
    def dma(j):
        o, ks, h, gh = j >> 4, (j >> 2) & 3, (j >> 1) & 1, j & 1
        A(f"s_add_u32 s6, {s(sRW)}, {(32*ks + 16*gh + 4*h)*7168}")
        A(f"s_add_u32 m0, {s(sRG)}, {16384*(1-o) + 1024*(4*ks+2*h+gh)}")
        A(f"buffer_load_dwordx4 {v(96+o)}, {s(44+4*o,4)}, s6 offen{' nt' if O.w_nt else ''} lds")
    for j in range(O.n0): dma(j)
    gate("st")
    for j in range(O.n0, 16): dma(j)
    A(f"s_cmp_eq_u32 {s(sNT)}, 1"); A("s_cbranch_scc1 L_aux_one1")
    for j in range(16, 32): dma(j)
    A("L_aux_one1:")
    signal(A, 22, 23, C_ISS)
    ST()
    tagbytes()
    A(f"v_bfe_u32 v14, {v(vL)}, 2, 3"); A("v_lshrrev_b32 v15, 1, v14"); A("v_lshlrev_b32 v14, 7, v14")
    A(f"v_lshrrev_b32 v13, 5, {v(vL)}"); A("v_lshl_add_u32 v14, v13, 10, v14")
    A(f"v_and_b32 v13, 3, {v(vL)}"); A("v_lshl_add_u32 v14, v13, 3, v14"); A(f"v_add_u32 v14, {s(sRG)}, v14")
    for ct in range(4):
        A(f"v_xor_b32 v13, {ct}, v15"); A(f"v_lshl_add_u32 {v(24+ct)}, v13, 5, v14")
    A(f"v_min_u32 v20, 8, {v(vI)}"); A(f"v_mul_u32_u24 v20, {XST}, v20"); A(f"v_lshl_add_u32 v20, {v(vG)}, 4, v20")
    A(f"s_lshr_b32 s6, {s(sRG)}, 7"); A(f"s_add_u32 s6, s6, {XS}"); A("v_add_u32 v20, s6, v20")
    A(f"v_lshlrev_b32 v19, 6, {v(vI)}"); A(f"v_lshl_add_u32 v19, {v(vG)}, 4, v19")
    A(f"s_lshr_b32 s6, {s(sRG)}, 11"); A(f"s_add_u32 s6, s6, {s(sRG)}"); A(f"s_add_u32 s6, s6, {PART}"); A("v_add_u32 v19, s6, v19")
    A(f"v_and_b32 v242, 7, {v(vL)}"); A(f"v_lshl_add_u32 v243, v242, 2, v22")
    A(f"v_bfe_u32 v241, {v(vL)}, 3, 2"); A("v_mul_u32_u24 v241, 32784, v241")
    A(f"v_lshrrev_b32 v240, 5, {v(vL)}"); A("v_lshl_add_u32 v241, v240, 12, v241")
    A(f"s_lshr_b32 s6, {s(sRG)}, 11"); A(f"s_add_u32 s6, s6, {PART}"); A("v_add_u32 v241, s6, v241")
    A(f"s_sub_u32 s6, {s(sO2)}, {s(sO1)}"); A("v_mul_i32_i24 v244, s6, v240"); A("v_lshl_add_u32 v244, v242, 4, v244")
    A(f"v_bfe_u32 v240, {v(vL)}, 4, 1"); A("v_lshl_add_u32 v244, v240, 9, v244")
    A(f"v_bfe_u32 v240, {v(vL)}, 3, 1"); A("v_lshl_add_u32 v244, v240, 10, v244")
    A(f"s_lshr_b32 s6, {s(sRG)}, 8"); A(f"s_add_u32 s6, s6, {s(sO1)}"); A(f"s_add_u32 s6, s6, {s(sGB)}"); A("v_add_u32 v244, s6, v244")
    A("v_lshl_add_u32 v242, v242, 6, v241")
    A("v_mov_b32 v245, 0xffffff00")
    A(f"v_cmp_eq_u32 {s(sM,2)}, 1, v240")
    XB_, AW, DD = 32, 64, 192
    aw = lambda t, ks: AW + 4 * (ks * 8 + t)
    def trs(o, ks):
        for t in range(4 * o, 4 * o + 4):
            for h in range(2): A(f"ds_read_b64_tr_b16 {v(aw(t,ks)+2*h,2)}, {v(24+(t&3))} offset:{16384*(1-o)+4096*ks+2048*h}")
    A(f"s_cmp_eq_u32 {s(sNT)}, 1"); A("s_cbranch_scc1 L_aux_one2")
    for o in range(2):
        for ks in range(4):
            A(f"s_waitcnt vmcnt({28-16*o-4*ks})"); trs(o, ks)
    A("s_branch L_aux_two2")
    A("L_aux_one2:")
    for ks in range(4):
        A(f"s_waitcnt vmcnt({12-4*ks})"); trs(0, ks)
    A("L_aux_two2:")
    A("s_waitcnt lgkmcnt(0)")
    ST(); ST()
    lds_count_wait(A, "xs", 22, C_XS, 2, 18, 8, 11)
    ST()
    P, MM = 64, 24
    L.issue(f"ds_read_b32 v28, v243 offset:192")
    for ks in range(4): L.issue(f"ds_read_b128 {v(XB_+4*ks,4)}, v20 offset:{64*ks}", ("x", ks))
    def mm(t):
        for ks in range(4):
            L.need(("x", ks))
            A(f"v_mfma_f32_16x16x32_bf16 {v(DD+4*t,4)}, {v(aw(t,ks),4)}, {v(XB_+4*ks,4)}, {v(DD+4*t,4) if ks else 0}")
    wr = lambda t: A(f"ds_write_b128 v19, {v(DD+4*t,4)} offset:{1024*t}")
    for t in range(4):
        mm(t)
        if t == 0 and O.exp & 8192: ST.n -= 2; ST(); ST.n += 1
        if t >= 2: wr(t - 2)
    A(f"s_cmp_eq_u32 {s(sNT)}, 1"); A("s_cbranch_scc1 L_aux_one3")
    for t in range(4, 8):
        mm(t); wr(t - 2)
    wr(6); wr(7)
    A("s_branch L_aux_two3")
    A("L_aux_one3:")
    A("s_nop 7")
    wr(2); wr(3)
    A("L_aux_two3:")
    signal(A, 22, 23, C_PP)
    A(f"v_and_b32 {v(MM+1)}, {MASKHI}, v28"); A(f"v_lshlrev_b32 {v(MM)}, 16, v28"); A(f"v_rcp_f32 {v(MM+1)}, {v(MM+1)}")
    ST()
    lds_count_wait(A, "pp", 22, C_PP, 4, 18, 8, 11)
    L.q = []
    for u in range(2):
        b = P + 16 * u
        L.issue(f"ds_read_b128 {v(b,4)}, v242 offset:{1024*u}", u); L.issue(f"ds_read_b128 {v(b+8,4)}, v241 offset:{512+1024*u}", u)
        L.issue(f"ds_read_b128 {v(b+4,4)}, v242 offset:{2048+1024*u}", u); L.issue(f"ds_read_b128 {v(b+12,4)}, v241 offset:{2560+1024*u}", u)
    A(f"s_cmp_eq_u32 {s(sNT)}, 1"); A("s_cselect_b32 s6, 0, -1")
    for u in range(2):
        b = P + 16 * u
        L.need(u)
        for q in range(4):
            A(f"v_pk_fma_f32 {v(b+2*q,2)}, {v(b+8+2*q,2)}, {v(MM,2)}, {v(b+2*q,2)} op_sel:[0,0,0] op_sel_hi:[1,0,1] neg_lo:[1,0,0] neg_hi:[1,0,0]")
        for k in range(4): A(f"v_cndmask_b32 {v(b+8+k)}, {v(b+4+k)}, {v(b+k)}, {s(sM,2)}")
        for k in range(4): A(f"v_cndmask_b32 {v(b+k)}, {v(b+k)}, {v(b+4+k)}, {s(sM,2)}")
        for k in range(4): A(dpp("v_add_f32", b+k, b+8+k, b+k, "row_ror:8"))
    for k in range(4): A(f"v_permlane16_swap_b32 {v(P+k)}, {v(P+16+k)}")
    for q in range(2): A(f"v_pk_add_f32 {v(P+2*q,2)}, {v(P+2*q,2)}, {v(P+16+2*q,2)}")
    for q in range(2): A(f"v_pk_mul_f32 {v(P+2*q,2)}, {v(P+2*q,2)}, {v(MM,2)} op_sel:[0,1] op_sel_hi:[1,1]")
    for k in range(4): A(f"v_and_or_b32 {v(P+k)}, {v(P+k)}, v245, {s(sTB+k)}")
    A("s_mov_b32 exec_hi, s6")
    A(f"buffer_store_dwordx4 {v(P,4)}, v244, s[40:43], 0 offen sc1")
    signal(A, 22, 23, C_GP)
    ST()
    A("s_branch L_aux_b5")
    A("L_aux_idle:")
    ST.n = 1
    for _ in range(7): ST()
    gate("id")
    tagbytes()
    signal(A, 22, 23, C_GP)
    A("s_branch L_aux_b5")
    A("L_aux_b4:")
    ST.n -= 2; ST(); ST()
    A("L_aux_b5:")
    A(f"v_bfe_u32 v11, {v(vL)}, 1, 1"); A(f"v_bfe_u32 v10, {v(vL)}, 2, 2"); A("v_lshl_add_u32 v10, v11, 2, v10"); A(f"v_lshl_add_u32 v10, {v(vG)}, 3, v10")
    A("v_bfe_u32 v11, v10, 1, 3"); A(f"v_xor_b32 v11, {s(sW)}, v11"); A("v_lshlrev_b32 v10, 7, v10"); A("v_lshl_add_u32 v10, v11, 4, v10")
    A(f"v_and_b32 v11, 1, {v(vL)}"); A("v_lshl_add_u32 v10, v11, 3, v10"); A("v_add_u32 v11, 0x10000, v10")
    A(f"v_lshl_add_u32 v14, v0, 4, {s(sGB)}")
    A(f"v_lshlrev_b32 v15, 3, {v(vL)}"); A(f"v_add_u32 v15, {XS}, v15"); A(f"s_lshl_b32 s6, {s(sW)}, 9"); A("v_add_u32 v16, s6, v15")
    for k in range(1, 8): A(f"s_mov_b32 {s(20+k)}, {7168*k}")
    A(f"s_mov_b32 s18, {f32bits(-LOG2E)}"); A("s_mov_b32 s16, 0"); A("v_mov_b32 v17, 0xff"); A("v_mov_b32 v245, 0xffffff00")
    A(f"s_lshl_b32 s6, {s(sLINE)}, 3"); A(f"s_add_u32 s6, s6, {s(sW)}"); A("s_lshl_b32 s6, s6, 3"); A(f"s_add_u32 s6, s6, {s(sX)}")
    A("s_lshl_b32 s6, s6, 8"); A(f"s_add_u32 s6, s6, {WS_Y}")
    A(f"v_lshlrev_b32 v12, 7, {v(vG)}"); A(f"v_lshl_add_u32 v12, {v(vI)}, 4, v12"); A("v_add_u32 v12, s6, v12")
    ST()
    A("s_barrier")
    ST()
    AWD, HB, GG = 64, 96, 128
    for i in range(14): L.issue(f"ds_read_b64_tr_b16 {v(AWD+2*i,2)}, {v(10+(i>>3))} offset:{32768*((i>>2)&1)+4096*(i&3)}")
    A(f"s_cmp_eq_u32 {s(sW)}, 7"); A("s_cbranch_scc1 L_aux_nohp")
    gld = [f"buffer_load_dwordx4 {v(GG+4*k,4)}, v14, s[40:43], {'0' if k == 0 else s(20+k)} offen sc1" for k in range(8)]
    if O.g_first_sleep: A(f"s_sleep {O.g_first_sleep}")
    for x in gld: A(x)
    A("L_aux_gp:")
    A("s_waitcnt vmcnt(0)")
    for k in range(4):
        for a_ in range(4): A(f"v_bitop3_b32 {v(32+4*a_+k)}, {v(GG+8*a_+k)}, {v(GG+8*a_+4+k)}, {s(sTB+k)} bitop3:0x7e")
    for a_ in range(4): A(f"v_or3_b32 {v(32+4*a_)}, {v(32+4*a_)}, {v(33+4*a_)}, {v(34+4*a_)}")
    for a_ in range(4): A(f"v_bitop3_b32 {v(32+4*a_)}, {v(32+4*a_)}, {v(35+4*a_)}, v17 bitop3:0xa8")
    for a_ in range(4): A(f"v_cmp_ne_u32 {s(6+2*a_,2)}, 0, {v(32+4*a_)}")
    A("s_or_b64 vcc, s[6:7], s[8:9]"); A("s_or_b64 s[14:15], s[10:11], s[12:13]"); A("s_or_b64 vcc, vcc, s[14:15]"); A("s_cbranch_scc0 L_aux_gok")
    bounded(A, 16, "L_aux_gok")
    if O.poll_sleep: A(f"s_sleep {O.poll_sleep}")
    for a_ in range(4):
        A(f"s_mov_b64 exec, {s(6+2*a_,2)}"); A(f"s_cbranch_execz L_aux_gs{a_}")
        A(gld[2*a_]); A(gld[2*a_+1])
        A(f"L_aux_gs{a_}:")
    A("s_mov_b64 exec, -1")
    A("s_branch L_aux_gp")
    A("L_aux_gok:")
    ST()
    gg = lambda j, it: GG + 4 * (2 * j + it)
    for it in range(2):
        for q in range(2): A(f"v_pk_add_f32 {v(gg(0,it)+2*q,2)}, {v(gg(0,it)+2*q,2)}, {v(gg(2,it)+2*q,2)}")
    for it in range(2):
        for q in range(2): A(f"v_pk_mul_f32 {v(gg(2,it)+2*q,2)}, {v(gg(0,it)+2*q,2)}, s[18:19] op_sel_hi:[1,0]")
    for it in range(2):
        for k in range(4): A(f"v_exp_f32 {v(gg(2,it)+k)}, {v(gg(2,it)+k)}")
        for q in range(2): A(f"v_pk_add_f32 {v(gg(1,it)+2*q,2)}, {v(gg(1,it)+2*q,2)}, {v(gg(3,it)+2*q,2)}")
    for it in range(2):
        for q in range(2): A(f"v_pk_add_f32 {v(gg(2,it)+2*q,2)}, {v(gg(2,it)+2*q,2)}, 1.0 op_sel_hi:[1,0]")
    for it in range(2):
        for k in range(4): A(f"v_rcp_f32 {v(gg(2,it)+k)}, {v(gg(2,it)+k)}")
        for q in range(2): A(f"v_pk_mul_f32 {v(gg(0,it)+2*q,2)}, {v(gg(0,it)+2*q,2)}, {v(gg(1,it)+2*q,2)}")
    for it in range(2):
        for q in range(2): A(f"v_pk_mul_f32 {v(gg(0,it)+2*q,2)}, {v(gg(0,it)+2*q,2)}, {v(gg(2,it)+2*q,2)}")
        for q in range(2): A(f"v_cvt_pk_bf16_f32 {v(gg(1,it)+q)}, {v(gg(0,it)+2*q)}, {v(gg(0,it)+2*q+1)}")
        A(f"ds_write_b64 v16, {v(gg(1,it),2)} offset:{3584*it}")
    A("L_aux_nohp:")
    A("s_waitcnt lgkmcnt(0)"); L.q = []
    ST()
    A("s_barrier")
    for i in range(7): L.issue(f"ds_read2st64_b64 {v(HB+4*i,4)}, v15 offset0:{2*i} offset1:{2*i+1}", ("hb", i))
    DY = 32
    for i in range(7):
        L.need(("hb", i))
        A(f"v_mfma_f32_16x16x32_bf16 {v(DY,4)}, {v(AWD+4*i,4)}, {v(HB+4*i,4)}, {v(DY,4) if i else 0}")
    for k in range(4): A(f"v_mov_b32_dpp {v(DY+4+k)}, {v(DY+k)} row_ror:8 row_mask:0xf bank_mask:0xf")
    for k in range(4): A(f"v_permlane32_swap_b32 {v(DY+4+k)}, {v(DY+8+k)}")
    for q in range(2): A(f"v_pk_add_f32 {v(DY+2*q,2)}, {v(DY+2*q,2)}, {v(DY+8+2*q,2)}")
    for k in range(4): A(f"v_and_or_b32 {v(DY+k)}, {v(DY+k)}, v245, {s(sTB+k)}")
    A("s_mov_b64 exec, 0x00ff00ff")
    A(f"buffer_store_dwordx4 {v(DY,4)}, v12, s[40:43], 0 offen sc1")
    A("s_mov_b64 exec, -1")
    ST()
    A(f"s_lshl_b32 s6, {s(sA)}, 3"); A(f"s_add_u32 s6, s6, {s(sW)}"); A(f"s_cmp_lg_u32 s6, {(4*16+15)*8}"); A("s_cbranch_scc1 L_aux_done")
    A(f"v_lshlrev_b32 v21, 3, {v(vL)}"); A(f"v_add_u32 v21, {WS_ACK}, v21")
    poll(A, "ack", ["buffer_load_dwordx2 v[60:61], v21, s[40:43], 0 offen sc1"], [60, 61], sT, 11, 14, 4)
    A(f"v_mov_b32 v5, {s(sT)}"); A("v_mov_b32 v4, 0"); A("s_mov_b64 exec, 1")
    A("buffer_store_dword v5, v4, s[40:43], 0 offen sc1")
    A("L_aux_done:")
    if O.probe_role == 1: ST.probe(sW, "aux", O.probe_j, O.probe_k)
    ST.flush(sW, "aux")
    A("s_endpgm")
    A("L_aux_slow:")
    A("s_waitcnt lgkmcnt(0)")
    A("v_lshlrev_b32 v14, 5, v0"); A(f"v_add_u32 v14, {KEYS}, v14")
    A(f"ds_write_b128 v14, {v(KY,4)}"); A(f"ds_write_b128 v14, {v(KY+4,4)} offset:16")
    signal(A, 22, 23, C_SLOW)
    A(f"s_cmp_ge_u32 {s(sW)}, 2"); A("s_cbranch_scc1 L_aux_wd")
    A(f"s_cmp_eq_u32 {s(sW)}, 1"); A("s_cbranch_scc1 L_aux_nox")
    lds_count_wait(A, "slow", 22, C_SLOW, 4, 18, 8, 11)
    SK = 128
    A(f"v_lshlrev_b32 v14, 4, {v(vL)}"); A(f"v_add_u32 v14, {KEYS}, v14")
    for k in range(8): A(f"ds_read_b128 {v(SK+4*k,4)}, v14 offset:{1024*k}")
    A("s_waitcnt lgkmcnt(0)")
    A("s_mov_b32 s8, 0"); A(f"v_mov_b32 v20, {v(vL)}"); A("v_mov_b32 v17, 1")
    A("L_aux_slow2:")
    A(f"v_max3_u32 v14, {v(SK)}, {v(SK+1)}, {v(SK+2)}")
    for k in range(3, 31, 2): A(f"v_max3_u32 v14, v14, {v(SK+k)}, {v(SK+k+1)}")
    A(f"v_max_u32 v14, v14, {v(SK+31)}")
    for n in (8, 4, 2, 1): A(dpp("v_max_u32", 14, 14, 14, f"row_ror:{n}"))
    A("v_mov_b32 v15, v14"); A("v_permlane16_swap_b32 v14, v15"); A("v_max_u32 v14, v14, v15")
    A("v_mov_b32 v15, v14"); A("v_permlane32_swap_b32 v14, v15"); A("v_max_u32 v14, v14, v15")
    A("v_cmp_eq_u32 vcc, s8, v20"); A("v_cndmask_b32 v17, v17, v14, vcc")
    for k in range(32):
        A(f"v_cmp_ne_u32 vcc, v14, {v(SK+k)}"); A(f"v_cndmask_b32 {v(SK+k)}, 0, {v(SK+k)}, vcc")
    A("s_add_u32 s8, s8, 1"); A("s_cmp_lt_u32 s8, 8"); A("s_cbranch_scc1 L_aux_slow2")
    A("v_and_b32 v60, 0xfff, v17"); A("v_sub_u32 v60, 0x800, v60")
    A("v_lshlrev_b32 v15, 2, v60"); A("ds_read_b32 v62, v15")
    A.ext(sig)
    A("s_branch L_aux_sel")

AD_S1, AD_S0, AD_S2, AD_S3, AD_S3A, AD_P, AD_E, AD_D = 160, 161, 162, 163, 164, 165, 168, 169

def table_addresses(A, sTB):
    t = 10
    A(f"v_lshlrev_b32 {v(t)}, 5, {v(vI)}")
    A(f"v_lshl_add_u32 {v(AD_S1)}, {v(vG)}, 9, {v(t)}"); A(f"v_add_u32 {v(AD_S1)}, {s(sTB)}, {v(AD_S1)}"); A(f"v_add_u32 {v(AD_S1)}, {4*(256+16)-4}, {v(AD_S1)}")
    A(f"v_and_b32 {v(t+2)}, 1, {v(vG)}"); A(f"v_lshl_add_u32 {v(AD_S0)}, {v(t+2)}, 4, {v(t)}")
    A(f"v_lshrrev_b32 {v(t+2)}, 1, {v(vG)}"); A(f"v_lshl_add_u32 {v(AD_S0)}, {v(t+2)}, 9, {v(AD_S0)}"); A(f"v_add3_u32 {v(AD_S0)}, {v(AD_S0)}, {s(sTB)}, 64")
    A(f"v_and_b32 {v(t+2)}, 1, {v(vI)}"); A(f"v_lshrrev_b32 {v(t+3)}, 1, {v(vI)}")
    A(f"v_lshlrev_b32 {v(AD_S2)}, 2, {v(t+3)}"); A(f"v_lshl_add_u32 {v(AD_S2)}, {v(vG)}, 6, {v(AD_S2)}")
    A(f"v_mul_u32_u24 {v(t+3)}, 260, {v(t+2)}"); A(f"v_add3_u32 {v(AD_S2)}, {v(AD_S2)}, {v(t+3)}, {s(sTB)}"); A(f"v_add_u32 {v(AD_S2)}, {PB_E-68}, {v(AD_S2)}")
    A(f"v_lshlrev_b32 {v(AD_S3)}, 1, {v(vI)}"); A(f"v_lshl_add_u32 {v(AD_S3)}, {v(vG)}, 7, {v(AD_S3)}")
    A(f"v_lshl_add_u32 {v(AD_S3)}, {v(t+2)}, 2, {v(AD_S3)}"); A(f"v_add_u32 {v(AD_S3)}, {s(sTB)}, {v(AD_S3)}"); A(f"v_add_u32 {v(AD_S3)}, {PB_E+512+256-196}, {v(AD_S3)}")
    A(f"v_mov_b32 {v(AD_S3A)}, {v(AD_S3)}"); A(f"s_add_u32 s54, {s(sTB)}, {PB_E+4*(63-16)}"); A(f"v_writelane_b32 {v(AD_S3A)}, s54, 0")
    A(f"v_lshl_add_u32 {v(t)}, {v(vI)}, 2, {s(sTB)}")
    A(f"v_lshlrev_b32 {v(t+2)}, 5, {v(vG)}"); A(f"v_sub_u32 {v(AD_P)}, {v(t)}, {v(t+2)}"); A(f"v_add_u32 {v(AD_P)}, {4*26}, {v(AD_P)}")
    A(f"v_add_u32 {v(AD_P+1)}, 1024, {v(AD_P)}"); A(f"v_add_u32 {v(AD_P+2)}, 2048, {v(AD_P)}")
    A(f"v_lshlrev_b32 {v(t+2)}, 4, {v(vG)}"); A(f"v_sub_u32 {v(AD_E)}, {v(t)}, {v(t+2)}"); A(f"v_add_u32 {v(AD_E)}, {PB_E+4*13}, {v(AD_E)}")

def kgen(A, L, O, vRow, vOp, sL, sLlo):
    PAR, Wm, CH, T = 16, 20, 32, 64
    BOP, AOP, D = 80, 176, 208
    DT, AL, BE = 76, 72, 74
    late = []
    lo = lambda d, src: f"v_lshlrev_b32 {v(d)}, 16, {v(src)}"
    hi = lambda d, src: f"v_and_b32 {v(d)}, {MASKHI}, {v(src)}"
    A("v_lshlrev_b32 v15, 16, v15"); A(lo(116, PAR)); A(hi(117, PAR))
    E = Asm(); exp_acc(E, DT, 15, 112, 113, sL, sLlo); q = E.lines
    A(q[0]); A(f"v_mul_f32 v116, {s(sL)}, v116"); A(q[1]); A(f"v_mul_f32 v117, {s(sL)}, v117"); A(q[2]); A(q[3])
    A(f"v_exp_f32 {v(AL)}, v116"); A(q[4]); A(f"v_exp_f32 {v(AL+1)}, v117"); A(q[5])
    A(lo(BE, PAR + 1)); A(hi(BE + 1, PAR + 1))
    A(f"v_cvt_pk_bf16_f32 {v(DT)}, {v(DT)}, {v(DT)}")
    A(f"v_cvt_pk_bf16_f32 {v(T)}, {v(AL)}, {v(AL+1)}")
    A(hi(DT, DT)); A(lo(AL, T)); A(hi(AL + 1, T))
    A(f"v_pk_mul_f32 {v(BE,2)}, {v(BE,2)}, {v(DT,2)} op_sel_hi:[1,0]")
    A(f"v_pk_mul_f32 {v(AL,2)}, {v(AL,2)}, {v(DT,2)} op_sel_hi:[1,0]")
    for md in range(2):
        A(f"v_mul_f32 {v(BE+md)}, 0.15915494, {v(BE+md)}")
        A(f"v_mul_f32 {v(AL+md)}, {f32bits(-LOG2E)}, {v(AL+md)}")
    late += [lo(120, 14), f"v_add_f32 {v(DT+1)}, {v(DT)}, {v(DT)}", "v_add_f32 v120, 1.0, v120", lo(CH, PAR + 2), lo(CH + 1, PAR + 3), hi(CH + 2, PAR + 2), hi(CH + 3, PAR + 3),
             f"v_and_b32 {v(AD_D)}, {v(AD_D)}, v120"]
    for md in range(2): late.append(f"v_pk_mul_f32 {v(CH+2*md,2)}, {v(CH+2*md,2)}, {v(DT,2)} op_sel:[0,1] op_sel_hi:[1,1]")
    for q, p in ((1, 8), (0, 1), (2, 128)):
        out = []
        for md in range(2):
            w = Wm + 4 * q + 2 * md; t = 112 + 2 * md
            if p > 1: out += [f"v_mul_f32 {v(t)}, {f32bits(float(p))}, {v(AL+md)}", f"v_mul_f32 {v(t+1)}, {f32bits(float(p))}, {v(BE+md)}"]
        for md in range(2):
            t = 112 + 2 * md
            out += [f"v_exp_f32 {v(t)}, {v(t if p > 1 else AL+md)}", f"v_fract_f32 {v(t+1)}, {v(t+1 if p > 1 else BE+md)}"]
        for md in range(2):
            w = Wm + 4 * q + 2 * md; t = 112 + 2 * md
            out += [f"v_cos_f32 {v(w)}, {v(t+1)}", f"v_sin_f32 {v(w+1)}, {v(t+1)}"]
        for md in range(2):
            w = Wm + 4 * q + 2 * md; t = 112 + 2 * md
            out.append(f"v_pk_mul_f32 {v(w,2)}, {v(w,2)}, {v(t,2)} op_sel:[0,0] op_sel_hi:[1,0]{' neg_hi:[1,0]' if p == 8 else ''}")
        if p == 8: A.ext(out)
        else: late += out
    A(late.pop(0))
    if O.exp & 32: A("CYC ; mark")
    W1, W8, W128 = Wm, Wm + 4, Wm + 8
    PK = [68, 70]; cnt = [0]
    def put(r, pk):
        if O.addtid:
            L.issue(f"ds_write_addtid_b32 {v(pk)} offset:{528*r}"); L.issue(f"ds_write_addtid_b32 {v(pk+1)} offset:{528*r+256}")
        else:
            L.issue(f"ds_write_b64 {v(vRow)}, {v(pk,2)} offset:{528*r}")
    def row(r, x0):
        pk = PK[cnt[0] & 1]; cnt[0] += 1
        A(f"v_cvt_pk_bf16_f32 {v(pk)}, {v(x0)}, {v(x0+1)}")
        A(f"v_cvt_pk_bf16_f32 {v(pk+1)}, {v(x0+2)}, {v(x0+3)}")
        put(r, pk)
    def mul2(dst, x, w):
        i0 = cmul(dst, x, w, T); i1 = cmul(dst + 2, x + 2, w + 2, T + 2)
        A(i0[0]); A(i1[0]); A(i0[1]); A(i1[1])
    def reads(dst, tag):
        for ks in range(8): L.issue(f"ds_read_b128 {v(dst+4*ks,4)}, {v(vOp)} offset:{32*ks}", (tag, ks))
    def mfma(t, tag, ks):
        L.need((tag, ks), ("B", ks))
        A(f"v_mfma_f32_16x16x32_bf16 {v(D+4*t,4)}, {v(AOP+4*ks,4)}, {v(BOP+4*ks,4)}, {v(D+4*t,4) if ks else 0}")
    BC = 12
    A(f"v_mov_b32 {v(PK[0])}, 0x3f80"); A(f"v_mov_b32 {v(PK[0]+1)}, 0x3f80")
    put(0, PK[0]); cnt[0] += 1
    row(1, W8)
    mul2(BC, W8, W8); row(2, BC)
    for r in range(3, 16):
        mul2(BC, BC, W8); row(r, BC)
        for _ in range(3):
            if late: A(late.pop(0))
    assert not late
    reads(BOP, "B")
    ch = lambda i: CH + 4 * i
    row(0, ch(0))
    for i in range(1, 8):
        mul2(ch(i), ch(i-1), W1); row(i, ch(i))
    for i in range(8):
        mul2(ch(i), ch(i), W128); row(8 + i, ch(i))
    reads(AOP, "A0")
    for r, i in enumerate([0, 2, 4, 6, 0, 2, 4, 6, 0, 4, 0, 4, 0, 4, 0, 4]):
        mul2(ch(i), ch(i), W128); row(r, ch(i))
        if 3 <= r < 11: mfma(0, "A0", r - 3)
    reads(AOP, "A1")
    for r in range(9):
        mul2(ch(0), ch(0), W128); row(r, ch(0))
        if r >= 2: mfma(1, "A1", r - 2)
    mfma(1, "A1", 7)
    if O.exp & 32: A("CYC ; mark")
    reads(AOP, "A2")
    return D, lambda ks: mfma(2, "A2", ks)

def ktables(A, L, D, mf2, sK, MARK=False):
    D0, D1, D2 = D, D + 4, D + 8
    T = 64
    cv = lambda d, lo, hi: A(f"v_cvt_pk_bf16_f32 {v(d)}, {v(lo)}, {v(hi)}")
    t1, t2, t3 = T + 8, T + 9, T + 10
    A(f"v_add_f32 {v(D0)}, {v(D0)}, {v(AD_D)}")
    A(f"v_cndmask_b32 {v(t1)}, {v(D1+1)}, {v(D1)}, s[62:63]")
    A(f"v_cndmask_b32 {v(t2)}, {v(D1+2)}, {v(D1+1)}, s[62:63]")
    A(f"v_cndmask_b32 {v(t3)}, {v(D1+3)}, 0, s[62:63]")
    cv(T+12, D1, D1+1); cv(T+13, D1+2, D1+3)
    mf2(0); mf2(1)
    cv(T, D1, D1); cv(T+1, D1, D1); cv(T+2, t1, D1); cv(T+3, t2, t1)
    mf2(2); mf2(3)
    cv(T+4, t2, t2); cv(T+5, t2, t2); cv(T+6, t3, t2); cv(T+7, t3, t3)
    mf2(4); mf2(5)
    A(f"v_cndmask_b32 {v(T+12)}, {v(T+12)}, 0, s[62:63]")
    A("s_mov_b32 exec_hi, 1")
    L.issue(f"ds_write_b128 {v(AD_S1)}, {v(T,4)} offset:4")
    L.issue(f"ds_write_b128 {v(AD_S1)}, {v(T+4,4)} offset:20")
    L.issue(f"ds_write_b16 {v(AD_S1)}, {v(T)}")
    A("s_mov_b32 exec_hi, -1")
    mf2(6); mf2(7)
    cv(T+8, D0, D0+3); cv(T+9, D0+1, D0); cv(T+10, D0+2, D0+1); cv(T+11, D0+3, D0+2)
    L.issue(f"ds_write_b16 {v(AD_S0)}, {v(T+8)}")
    L.issue(f"ds_write2_b32 {v(AD_S0)}, {v(T+9)}, {v(T+10)} offset0:1 offset1:2")
    L.issue(f"ds_write_b32 {v(AD_S0)}, {v(T+11)} offset:12")
    L.issue(f"ds_write_b16_d16_hi {v(AD_S0)}, {v(T+8)} offset:18")
    A("s_mov_b32 exec_lo, 0")
    L.issue(f"ds_write2_b32 {v(AD_S2)}, {v(T+12)}, {v(T+13)} offset0:0 offset1:8")
    A("s_mov_b32 exec_lo, -1")
    TT = 100
    cv(TT, D2, D2+1); cv(TT+1, D2+2, D2+3); cv(TT+2, D2, D2)
    A("s_mov_b32 exec_hi, 1")
    L.issue(f"ds_write_b16 {v(AD_S3A)}, {v(TT)}")
    A("s_mov_b32 exec_hi, 0")
    L.issue(f"ds_write_b16_d16_hi {v(AD_S3)}, {v(TT)} offset:32")
    L.issue(f"ds_write_b16 {v(AD_S3)}, {v(TT+1)} offset:64")
    L.issue(f"ds_write_b16_d16_hi {v(AD_S3)}, {v(TT+1)} offset:96")
    A("s_mov_b32 exec_hi, -1")
    A(f"v_readlane_b32 {s(sK)}, {v(TT+2)}, 0")

def convloop(A, L, O, vU, vE, vTR, vST, sOut, sWave, extra, start, early):
    B5, B3, B9, B7 = BAND, BAND + 4, BAND + 8, BAND + 12
    mf = lambda d, x, y, c_: f"v_mfma_f32_16x16x32_bf16 {v(d,4)}, {v(x,4)}, {v(y,4)}, {c_}"
    acc = lambda c: ACC + 4 * c
    main = []; pos = {}
    ub = lambda o: UB + 4 * ((o + 7) % NUB)
    def add(text, needs=(), key=None):
        main.append((text, needs))
        if key: pos[key] = len(main) - 1
    u16 = lambda cp: UB + 8 * (cp & 1)
    u24 = lambda cp: UB + 8 * (cp & 1) + 4
    far = (("O", 5, (2, 3, 4), BOXOP + 4, KO), ("E", 5, (2, 3, 4), BOXOP, KE), ("S", 3, (4, 5, 6, 7), BOXOP + 8, K3))
    for cp in range(7):
        if cp <= 5:
            pos[("bxfirst", cp)] = len(main)
            add(mf(BOXD + 8, u16(cp), B5, 0), (("U16", cp),), ("bx", cp, "O0")); add(mf(BOXD + 12, u16(cp), B3, 0), (), ("bx", cp, "O1"))
            add(mf(BOXD, u24(cp), B5, 0), (("U24", cp),), ("bx", cp, "E0")); add(mf(BOXD + 4, u24(cp), B3, 0), (), ("bx", cp, "E1"))
            if cp <= 3:
                add(mf(acc(cp + 4), KC, u16(cp), v(acc(cp + 4), 4)), (), ("corr", cp))
                add(mf(BOXD + 20, u16(cp), B7, 0), (), ("bx", cp, "S1")); add(mf(BOXD + 16, u24(cp), B9, 0), (), ("bx", cp, "S0"))
            pos[("bxlast", cp)] = len(main) - 1
        if cp == 0:
            for o in range(-7, -7 + O.head):
                pos[("first", o)] = len(main)
                for c in (0, 1): add(mf(acc(c), KN + 4 * (8 * c - o), UB + 16 + 4 * ((o + 7) & 1), v(acc(c), 4)), (("U", o), ("KN", 8 * c - o)), ("near", c, o))
                pos[("lastU", o)] = len(main) - 1
        if cp >= 1:
            q = cp - 1
            for nm, lim, dls, bop, kr in far:
                if q > lim: continue
                pos[("far", q, nm)] = len(main)
                for dl in dls:
                    if q + dl <= 7: add(mf(acc(q + dl), bop, kr + 4 * (dl - dls[0]), v(acc(q + dl), 4)), ((nm, dl),))
                pos[("farend", q, nm)] = len(main) - 1
    P1 = len(main)
    for o in range(-7 + O.head, 57):
        pos[("first", o)] = len(main)
        for c in range(8):
            if 0 <= 8 * c - o <= 16:
                add(mf(acc(c), KN + 4 * (8 * c - o), ub(o), v(acc(c), 4)), (("U", o), ("KN", 8 * c - o)), ("near", c, o))
        pos[("lastU", o)] = len(main) - 1
    N = len(main)
    F = []
    for cp in range(6):
        after = pos[("bxlast", cp - 2)] if cp >= 2 else -1
        dl = max(after + 1, pos[("bxfirst", cp)] - O.u_lead)
        F.append(dict(text=f"ds_read_b128 {v(u16(cp),4)}, {v(vU)} offset:{64*(8*cp+7)}", after=after, before=dl, tag=("U16", cp), lds=True, chain="U1", pre=cp == 0))
        F.append(dict(text=f"ds_read_b128 {v(u24(cp),4)}, {v(vU)} offset:{432+512*cp}", after=after, before=dl, tag=("U24", cp), lds=True, chain="U1", pre=cp == 0))
    def kread(reg, base, o0, step, tag, before, pre=False):
        F.append(dict(text=f"ds_read2_b32 {v(reg,2)}, {v(base)} offset0:{o0+3*step} offset1:{o0+2*step}", after=-1, before=before, tag=tag, lds=True, chain="K", pre=pre))
        F.append(dict(text=f"ds_read2_b32 {v(reg+2,2)}, {v(base)} offset0:{o0+step} offset1:{o0}", after=-1, before=before, tag=tag, lds=True, chain="K", pre=pre))
    firstK = {}
    for i, (t, nd) in enumerate(main):
        for x in nd:
            if x[0] in ("KN", "O", "E", "S") and x not in firstK: firstK[x] = i
    for x, i in sorted(firstK.items(), key=lambda kv: kv[1]):
        b = max(0, i - O.u_lead)
        if x[0] == "KN": kread(KN + 4 * x[1], 12 + x[1] // 8, 32 * (x[1] % 8), 2, x, b)
        else:
            reg, o0, d0 = dict(O=(KO, 64, 2), E=(KE, 0, 2), S=(K3, 128, 4))[x[0]]
            kread(reg + 4 * (x[1] - d0), 15, o0 + 16 * (x[1] - d0), 1, x, b)
    for o in range(-7, -7 + O.head):
        after = pos[("lastU", o - 2)] if o - 2 >= -7 else -1
        F.append(dict(text=f"ds_read_b128 {v(UB+16+4*((o+7)&1),4)}, {v(vU)} offset:{64*(o+7)}", after=after,
                      before=max(after + 1, pos[("first", o)] - O.u_lead), tag=("U", o), lds=True, chain="U"))
    for o in range(-7 + O.head, 57):
        prev = o - NUB
        if prev >= -7 + O.head: after = pos[("lastU", prev)]
        else:
            r = (o + 7) % NUB
            after = pos[("bxlast", 4)] if r < 2 else pos[("bxlast", 5)] if r < 4 else (pos[("lastU", -8 + O.head)] if O.head else -1)
        F.append(dict(text=f"ds_read_b128 {v(ub(o),4)}, {v(vU)} offset:{64*(o+7)}", after=after,
                      before=max(after + 1, pos[("first", o)] - O.u_lead), tag=("U", o), lds=True, chain="U"))
    first = {}
    for i, (t, _) in enumerate(main):
        for c in range(8):
            if t.split()[1].rstrip(",") == v(acc(c), 4) and c not in first: first[c] = i
    EP = [XR + 2 * c for c in range(8)]
    for c in sorted(range(8), key=lambda c: first[c]):
        F.append(dict(text=f"ds_read_b64 {v(EP[c],2)}, {v(vE)} offset:{512*c}", after=-1, before=max(0, first[c] - 9), tag=("e", c), lds=True, chain=("e", c), pre=first[c] < 6))
        for k in range(4):
            t = (f"v_lshlrev_b32 {v(acc(c)+k)}, 16, {v(EP[c]+k//2)}" if k % 2 == 0 else f"v_and_b32 {v(acc(c)+k)}, {MASKHI}, {v(EP[c]+k//2)}")
            F.append(dict(text=t, after=-1, before=max(0, first[c] - 1), needs=(("e", c),), chain=("e", c), lag=0 if k else 4))
    for cp in range(6):
        for nm, d0, op in (("O", BOXD + 8, BOXOP + 4), ("E", BOXD, BOXOP), ("S", BOXD + 16, BOXOP + 8)):
            if nm == "S" and cp > 3: continue
            after = max(pos[("bx", cp, nm + "0")], pos[("bx", cp, nm + "1")]) + O.mlag
            if cp: after = max(after, pos[("farend", cp - 1, nm)])
            before = pos[("far", cp, nm)] - 1
            nx = [pos[k] for k in (("bx", cp + 1, nm + "0"), ("bx", cp + 1, nm + "1")) if k in pos]
            if nx: before = min(before, min(nx))
            after = min(after, before - 1)
            for dd in range(4):
                F.append(dict(text=f"v_cvt_pk_bf16_f32 {v(op+dd)}, {v(d0+dd)}, {v(d0+4+dd)}", after=after, before=before))
    OT, TR = 10, 12
    tail = []
    for c in range(8):
        done = pos[("near", c, 8 * c)]
        ins = [f"v_cvt_pk_bf16_f32 {v(OT)}, {v(acc(c))}, {v(acc(c)+1)}", f"v_cvt_pk_bf16_f32 {v(OT+1)}, {v(acc(c)+2)}, {v(acc(c)+3)}"]
        w = f"ds_write_b64 {v(vE)}, {v(OT,2)} offset:{512*c}"
        if c < 7:
            for x in ins: F.append(dict(text=x, after=min(N - 1, done + O.mlag), before=min(N, done + 12), chain="o"))
            F.append(dict(text=w, after=min(N - 1, done + O.mlag), before=min(N, done + 13), lds=True, tag=("o", c), chain="o"))
            if c & 1:
                pc = c // 2
                F.append(dict(text="s_nop 0" if O.exp & 2 else "s_barrier", after=done + 13, before=done + 17, needs=(("o", c),), chain="s"))
                for h in range(2):
                    F.append(dict(text=f"ds_read_b64_tr_b16 {v(TR+2*h,2)}, {v(vTR)} offset:{1024*pc+4*EST*h}", after=done + 13, before=done + 19,
                                  lds=True, tag=("tr", pc), chain="s"))
                st = f"buffer_store_dwordx4 {v(TR,4)}, {v(vST)}, {s(sOut,4)}, {'0' if pc == 0 else s(sWave+pc)} offen"
                if O.exp & 1: st = "s_nop 0"
                F.append(dict(text=st, after=done + 13, before=min(N, done + 28), needs=(("tr", pc),), chain="s", lag=5))
        else:
            tail += [(x, False) for x in ins] + [(w, True)]
    extra(F, pos, N)
    F = [f for f in F if f["text"] not in early]
    ks = [f for f in F if f.get("chain") == "K"][:O.pre_k]
    L.issue("UWRITES", "uw"); A.lines.pop()
    for f in ks: F.remove(f); L.issue(f["text"], f["tag"])
    L.need("uw"); A("s_barrier")
    start()
    if O.exp & 256: F = [f for f in F if not f["text"].startswith("v_")]
    if O.exp & 512: F = [f for f in F if not f["text"].startswith("ds_read_b128")]
    if O.exp & 1024: F = [f for f in F if f["text"].startswith(("ds_read_b128", "v_", "buffer_load"))]
    over = schedule2(A, L, main, F, per_gap=O.per_gap, age=O.age)
    print("loop overflow slots", over, file=sys.stderr)
    for pc in range(3 if not O.exp else 0):
        iw = A.lines.index(f"ds_write_b64 {v(vE)}, {v(OT,2)} offset:{512*(2*pc+1)}")
        it = A.lines.index(f"ds_read_b64_tr_b16 {v(TR,2)}, {v(vTR)} offset:{1024*pc}")
        assert O.exp & 2 or "s_barrier" in A.lines[iw:it]
    return tail

sCG, sCB, sTc = 57, 58, 60

def conv_entry(A, O):
    A("s_and_b32 s59, s2, 7"); A(f"s_lshl_b32 {s(sCG)}, s59, 4"); A(f"s_add_u32 {s(sCG)}, {s(sCG)}, s3")
    A(f"s_lshl_b32 s36, {s(sCG)}, 3"); A(f"s_add_u32 s36, s36, {s(sW)}")
    A("s_lshl_b32 s37, s36, 8"); A("s_lshl_b32 s36, s36, 1")
    A(f"v_lshl_add_u32 v4, {v(vL)}, 2, s37"); A("v_mov_b32 v5, s36"); A("v_mov_b32 v6, 0")
    A("s_waitcnt lgkmcnt(0)")
    nt = " nt" if O.par_nt else ""
    A(f"global_load_ushort v15, v5, {s(PLDT,2)}")
    for k, p in enumerate((PLAR, PAIM, PCRE, PCIM)): A(f"global_load_dword {v(16+k)}, v4, {s(p,2)}{nt}")
    A(f"global_load_ushort v14, v5, {s(PDSK,2)}")
    A(f"global_load_dword v175, v6, {s(PWS,2)}")

def gen_conv(A, O):
    L = Lgkm(A); ST = Stamper(A, O.stamps)
    sT = sTc
    if O.stamps: A("s_mov_b32 s72, s95"); ST.n = 1
    A(f"v_and_b32 {v(vI)}, 15, v0"); A(f"v_bfe_u32 {v(vG)}, v0, 4, 2")
    A("s_getpc_b64 s[36:37]"); A("L_pc_band:")
    A("s_add_u32 s36, s36, L_bands-L_pc_band"); A("s_addc_u32 s37, s37, 0"); A("s_mov_b32 s38, 5120"); A("s_mov_b32 s39, 0x00020000")
    A(f"v_lshlrev_b32 v10, 4, {v(vL)}"); A("s_mov_b32 s53, 4096")
    for k in range(4): A(f"buffer_load_dwordx4 {v(BAND+4*k,4)}, v10, s[36:39], 0 offen offset:{1024*k}")
    A(f"buffer_load_dwordx4 {v(KC,4)}, v10, s[36:39], s53 offen")
    mk_srd(A, 36, PX_, SIZE["x"]); mk_srd(A, 40, PWS, WS_SIZE); mk_srd(A, 44, POUT, SIZE["out"])
    A(f"s_mov_b32 s48, {f32bits(L_HI)}"); A(f"s_mov_b32 s49, {f32bits(L_LO)}"); A(f"s_lshl_b32 {s(sCB)}, {s(sCG)}, 4")
    if O.prio & 2:
        A(f"s_cmp_lt_u32 {s(sW)}, 4"); A("s_cbranch_scc1 L_conv_p"); A("s_setprio 1"); A("L_conv_p:")
    vXC, vSL = 9, 11
    A(f"v_lshlrev_b32 {v(vXC)}, 14, v0"); A(f"v_add_u32 {v(vXC)}, {s(sCB)}, {v(vXC)}")
    A("s_lshl_b32 s6, s3, 7"); A(f"s_lshl_b32 s7, {s(sW)}, 4"); A("s_add_u32 s6, s6, s7"); A("s_lshl_b32 s6, s6, 11")
    A("s_lshl_b32 s7, s59, 8"); A("s_add_u32 s6, s6, s7")
    A(f"v_lshrrev_b32 {v(vSL)}, 1, {v(vL)}"); A(f"v_lshlrev_b32 {v(vSL)}, 11, {v(vSL)}")
    A(f"v_and_b32 v10, 1, {v(vL)}"); A(f"v_lshl_add_u32 {v(vSL)}, v10, 7, {v(vSL)}"); A(f"v_add_u32 {v(vSL)}, s6, {v(vSL)}")
    A(f"s_mul_i32 s6, {s(sW)}, {TST}"); A(f"s_add_u32 s6, s6, {TBASE}")
    A(f"s_mul_i32 s7, {s(sW)}, {UST}"); A(f"s_add_u32 s7, s7, {UBASE}")
    for k in range(4): A(f"v_mov_b32 {v(64+k)}, 0")
    A(f"v_lshl_add_u32 v10, {v(vL)}, 4, s6")
    for k in range(3): A(f"ds_write_b128 v10, v[64:67] offset:{1024*k}")
    A(f"v_lshl_add_u32 v10, {v(vL)}, 3, s7"); A("ds_write_b64 v10, v[64:65]")
    table_addresses(A, 6)
    A(f"v_mov_b32 {v(AD_D)}, 0"); A(f"v_writelane_b32 {v(AD_D)}, -1, 0")
    A("s_mov_b32 s62, 0"); A("s_mov_b32 s63, 1")
    vRow, vOp, vU, vE = 5, 6, 7, 8
    A(f"s_mul_i32 s8, {s(sW)}, {KST}")
    if O.addtid: A("s_mov_b32 m0, s8")
    vTR, vST, vW, vPo, vWe, vSE = 4, 174, 121, 122, 123, 171
    A(f"v_bfe_u32 v10, v0, 2, 2"); A(f"v_mul_u32_u24 v10, {EST}, v10")
    A("v_lshrrev_b32 v12, 4, v0"); A("v_lshl_add_u32 v10, v12, 5, v10")
    A("v_and_b32 v12, 3, v0"); A("v_lshl_add_u32 v10, v12, 3, v10"); A(f"v_add_u32 {v(vTR)}, {EBASE}, v10")
    A(f"v_lshlrev_b32 v10, 11, v0"); A(f"v_add_u32 {v(vST)}, {s(sCB)}, v10")
    A(f"v_lshlrev_b32 v10, 4, v0"); A(f"v_add_u32 {v(vW)}, {UBASE+512}, v10"); A(f"v_add_u32 {v(vWe)}, {EBASE}, v10"); A(f"v_add_u32 {v(vPo)}, {WS_STATS}, v10")
    A(f"v_lshrrev_b32 v10, 3, {v(vL)}"); A("v_lshlrev_b32 v10, 4, v10"); A(f"v_add_u32 {v(vSE)}, {WS_SEL}, v10")
    A("s_mov_b32 s66, 8192"); A("s_mov_b32 s67, 12288"); A("s_mov_b32 s50, 0x100000"); A("s_mov_b32 s51, 0x200000"); A("s_mov_b32 s64, 0x05040100"); A("s_mov_b32 s65, 0x07060302")
    A(f"v_lshl_add_u32 {v(vRow)}, {v(vL)}, 3, s8")
    A(f"v_mul_u32_u24 {v(vOp)}, 528, {v(vI)}")
    A(f"v_and_b32 v10, 1, {v(vG)}"); A(f"v_lshl_add_u32 {v(vOp)}, v10, 8, {v(vOp)}")
    A(f"v_lshrrev_b32 v10, 1, {v(vG)}"); A(f"v_lshl_add_u32 {v(vOp)}, v10, 4, {v(vOp)}")
    A(f"v_add_u32 {v(vOp)}, s8, {v(vOp)}")
    A(f"v_lshlrev_b32 v10, 5, {v(vI)}")
    A(f"v_lshl_add_u32 {v(vU)}, {v(vG)}, 4, v10"); A(f"v_add3_u32 {v(vU)}, {v(vU)}, s7, 32")
    A(f"s_mul_i32 s8, {s(sW)}, {EST}"); A(f"s_add_u32 s8, s8, {EBASE}")
    A(f"v_lshl_add_u32 {v(vE)}, {v(vG)}, 3, v10"); A(f"v_add_u32 {v(vE)}, s8, {v(vE)}")
    if O.exp & 128: ST()
    A("s_waitcnt vmcnt(6)")
    A("L_conv_kg:")
    A("s_mov_b32 exec_hi, 0"); A(f"buffer_load_dword v170, {v(vSL)}, s[36:39], 0 offen"); A("s_mov_b32 exec_hi, -1")
    ST(); ST.cyc0(70)
    K = Asm(); LK = Lgkm(K)
    D, mf2 = kgen(K, LK, O, vRow, vOp, 48, 49)
    ktables(K, LK, D, mf2, 52, O.exp & 32)
    n = len(K.lines); step = n // 32; cntx = 0
    XC = 224; so4 = ["0", "s53", "s66", "s67"]
    masked = False
    for i, ln in enumerate(K.lines):
        if ln.startswith("CYC"): ST.cyc1(70)
        else: A(ln)
        if ln.startswith("s_mov_b32 exec"): masked = not ln.endswith("-1")
        if i % step == step - 1:
            j = i // step + 1 - O.xcol_at
            if j >= 0 and j % O.xcol_gap == 0 and cntx < 8:
                assert not masked
                A(f"s_cmp_ge_u32 {s(sW)}, 4"); A(f"s_cbranch_scc1 L_conv_nx{cntx}")
                if j == 0: A("s_waitcnt vmcnt(0)")
                for _ in range(O.xcol_per):
                    A(f"buffer_load_dwordx4 {v(XC+4*cntx,4)}, {v(vXC)}, s[36:39], {so4[cntx>>1]} offen offset:{2048*(cntx&1)}")
                    cntx += 1
                A(f"L_conv_nx{cntx-O.xcol_per}:")
    assert cntx == 8, cntx
    L.q = LK.q
    ST(L); ST.cyc1(70)
    if O.exp & 64: A("s_branch L_conv_end")
    PX, UP, GR, RS, MB = 176, 216, 144, 160, 168
    for k in range(3): A(f"v_mov_b32 {v(12+k)}, {v(AD_P+k)}")
    A(f"v_mov_b32 v15, {v(AD_E)}"); A(f"v_mov_b32 v5, {v(vST)}"); A(f"v_mov_b32 v6, {v(vSE)}")
    vST, vSE = 5, 6
    A("s_waitcnt vmcnt(0)")
    A("v_readfirstlane_b32 s61, v175")
    for dd in range(4): A(f"v_and_b32 {v(KC+dd)}, s52, {v(KC+dd)}")
    tag_from_epoch(A, 61, sT)
    early = []
    for reg, o0, nn in ((KO, 64, 3), (KE, 0, 3), (K3, 128, 3)):
        for k in range(nn):
            o = o0 + 16 * k
            early += [f"ds_read2_b32 {v(reg+4*k,2)}, v15 offset0:{o+3} offset1:{o+2}", f"ds_read2_b32 {v(reg+4*k+2,2)}, v15 offset0:{o+1} offset1:{o}"]
    early = early[:O.early_k]
    A(f"s_cmp_ge_u32 {s(sW)}, 4"); A("s_cbranch_scc1 L_conv_late")
    gl = [f"buffer_load_dwordx4 {v(GR+4*k,4)}, {v(vPo)}, s[40:43], {so4[k]} offen sc1" for k in range(4)]
    for x in gl: A(x)
    for c in range(8):
        up = UP + 4 * (c & 1)
        for a_ in range(4):
            A(f"v_perm_b32 {v(up+a_)}, {v(XC+8*a_+4+(c>>1))}, {v(XC+8*a_+(c>>1))}, {s(64+(c&1))}")
        A(f"ds_write_b128 {v(vWe)}, {v(up,4)} offset:{c*EST}")
    def unpack(c):
        for rr in range(8):
            src = XC + 4 * rr + (c >> 1); d = PX + 8 * (c % 5) + rr
            A(f"v_lshlrev_b32 {v(d)}, 16, {v(src)}" if c % 2 == 0 else f"v_and_b32 {v(d)}, {MASKHI}, {v(src)}")
    for c in range(5): unpack(c)
    ST()
    poll_masked(A, "conv", gl, [GR + 4 * k + 3 for k in range(4)], sT, 54, 8, O.poll_sleep, issued=True)
    ST()
    src = [GR + 4 * (rr >> 1) + (rr & 1) for rr in range(8)]
    for rr in range(8): A(f"v_and_b32 {v(RS+rr)}, {MASKHI}, {v(src[rr])}")
    for rr in range(8): A(f"v_rcp_f32 {v(RS+rr)}, {v(RS+rr)}")
    for rr in range(8): A(f"v_lshlrev_b32 {v(MB+rr)}, 16, {v(src[rr])}")
    for a_ in range(4): A(f"v_pk_mul_f32 {v(MB+2*a_,2)}, {v(MB+2*a_,2)}, {v(RS+2*a_,2)} neg_lo:[1,0] neg_hi:[1,0]")
    for c in range(8):
        x = PX + 8 * (c % 5); up = UP + 4 * (c & 1)
        if c >= 5: unpack(c)
        for a_ in range(4): A(f"v_pk_fma_f32 {v(x+2*a_,2)}, {v(x+2*a_,2)}, {v(RS+2*a_,2)}, {v(MB+2*a_,2)}")
        for a_ in range(4): A(f"v_cvt_pk_bf16_f32 {v(up+a_)}, {v(x+2*a_)}, {v(x+2*a_+1)}")
        A(f"ds_write_b128 {v(vW)}, {v(up,4)} offset:{c*UST}")
    if O.stamps:
        A("s_branch L_conv_join"); A("L_conv_late:"); ST.n -= 2; ST(); ST(); A("L_conv_join:")
    else: A("L_conv_late:")
    L.q = [None]
    for x in early: L.issue(x)
    def start():
        A(f"s_cmp_lg_u32 {s(sW)}, 0"); A("s_cbranch_scc1 L_conv_noack")
        A(f"s_lshl_b32 s6, {s(sCG)}, 2"); A(f"s_add_u32 s6, s6, {WS_ACK}")
        A("v_mov_b32 v10, s6"); A(f"v_mov_b32 v11, {s(sT)}"); A("s_mov_b64 exec, 1")
        A("buffer_store_dword v11, v10, s[40:43], 0 offen sc1")
        A("s_mov_b64 exec, -1")
        A("L_conv_noack:")
        if O.stamps: ST(L); ST.cyc0(70)
    SEL, TR, YR = K3, 12, K3 + 4
    selload = f"buffer_load_dwordx4 {v(SEL,4)}, {v(vSE)}, s[40:43], 0 offen sc1"
    def extra(F, pos, N):
        a0 = pos[("first", 30)]
        F.append(dict(text=selload, after=a0, before=a0 + 3))
    tail = convloop(A, L, O, vU, vE, vTR, vST, 44, 49, extra, start, early)
    isel = A.lines.index(selload)
    later = [x for x in A.lines[isel+1:] if x.startswith("buffer_store")]
    A(f"s_waitcnt vmcnt({len(later)})")
    A(f"v_cmp_ne_u32 vcc, {s(sT)}, {v(SEL+3)}")
    A("s_cbranch_vccz L_conv_selok")
    poll(A, "sel", [selload], [SEL + 3], sT, 54, 16, O.poll_sleep)
    A("L_conv_selok:")
    A(f"s_lshl_b32 s6, {s(sCG)}, 11"); A(f"s_add_u32 s6, s6, {WS_Y}")
    A(f"v_bfe_u32 v16, {v(vL)}, 2, 1"); A("v_lshlrev_b32 v16, 7, v16"); A(f"v_and_b32 v17, 3, {v(vL)}"); A("v_lshl_add_u32 v16, v17, 2, v16")
    A(f"v_subrev_u32 v18, {WS_SEL}, {v(vSE)}"); A("v_add3_u32 v9, v16, v18, s6")
    yl = [f"buffer_load_dword {v(YR+k)}, v9, s[40:43], 0 offen offset:{256*k} sc1" for k in range(8)]
    A(f"s_cmp_lg_u32 {s(sW)}, 0"); A("s_cbranch_scc1 L_conv_noy")
    for x in yl: A(x)
    A("L_conv_noy:")
    for x, l in tail:
        if l: L.issue(x)
        else: A(x)
    for k in range(8): A(f"v_readlane_b32 {s(8+k)}, {v(SEL)}, {8*k}")
    A("v_add_u32 v16, 1536, v0")
    A("s_mov_b32 s54, 0x300000")
    for k in range(8): A(f"v_cmp_ne_u32 {s(16+2*k,2)}, {s(8+k)}, v16")
    for k in range(4): A(f"s_and_b64 {s(16+4*k,2)}, {s(16+4*k,2)}, {s(18+4*k,2)}")
    A("s_and_b64 s[16:17], s[16:17], s[20:21]"); A("s_and_b64 s[24:25], s[24:25], s[28:29]"); A("s_and_b64 s[16:17], s[16:17], s[24:25]")
    L.drain()
    ST(L); ST.cyc1(70)
    A("s_barrier")
    for h in range(2): L.issue(f"ds_read_b64_tr_b16 {v(TR+2*h,2)}, {v(vTR)} offset:{1024*3+4*EST*h}", "tr")
    A(f"s_cmp_eq_u32 {s(sW)}, 0"); A("s_cbranch_scc1 L_conv_fin")
    A("s_waitcnt lgkmcnt(0)")
    A("s_mov_b64 exec, s[16:17]")
    A(f"buffer_store_dwordx4 {v(TR,4)}, {v(vST)}, s[44:47], s54 offen")
    A("s_waitcnt vmcnt(1)")
    A("s_barrier"); A("s_branch L_conv_end")
    A("L_conv_fin:")
    A(f"v_and_b32 v16, 7, {v(vL)}"); A(f"v_mul_u32_u24 v18, {EST}, v16"); A(f"v_lshl_add_u32 v18, {v(SEL)}, 1, v18"); A(f"v_add_u32 v18, {EBASE}, v18")
    L.issue("ds_read_u16 v20, v18", "base")
    A(f"v_lshlrev_b32 v18, 11, {v(SEL)}"); A("v_lshl_add_u32 v18, v16, 1, v18"); A(f"v_add_u32 v18, {s(sCB)}, v18")
    A("v_lshlrev_b32 v17, 3, v17"); A(f"v_lshrrev_b32 v17, v17, {s(sT)}"); A("v_mov_b32 v19, 0xff")
    L.need("tr")
    A("s_mov_b64 exec, s[16:17]")
    A(f"buffer_store_dwordx4 {v(TR,4)}, {v(vST)}, s[44:47], s54 offen")
    A("s_mov_b64 exec, -1"); A("s_mov_b32 s54, 0")
    A("s_waitcnt vmcnt(1)")
    A("L_conv_y:")
    for k in range(4): A(f"v_bitop3_b32 {v(24+k)}, {v(YR+2*k)}, {v(YR+2*k+1)}, v17 bitop3:0x7e")
    A("v_or3_b32 v24, v24, v25, v26"); A("v_bitop3_b32 v24, v24, v27, v19 bitop3:0xa8")
    A("v_cmp_ne_u32 vcc, 0, v24"); A("s_cbranch_vccz L_conv_yok")
    bounded(A, 54, "L_conv_yok")
    for x in yl: A(x)
    A("s_waitcnt vmcnt(0)"); A("s_branch L_conv_y")
    A("L_conv_yok:")
    ST()
    for k in (0, 2): A(f"v_pk_add_f32 {v(YR+k,2)}, {v(YR+k,2)}, {v(YR+4+k,2)}")
    L.drain()
    A("v_lshlrev_b32 v20, 16, v20")
    A(f"v_pk_add_f32 {v(YR,2)}, {v(YR,2)}, {v(YR+2,2)}"); A(f"v_add_f32 {v(YR)}, {v(YR)}, {v(YR+1)}")
    A(f"v_fma_f32 v20, {v(YR)}, {v(SEL+1)}, v20"); A("v_cvt_pk_bf16_f32 v20, v20, v20")
    A("s_barrier")
    A("buffer_store_short v20, v18, s[44:47], 0 offen")
    A("L_conv_end:")
    if O.stamps:
        A("s_waitcnt vmcnt(0)"); ST()
    if O.probe_role == 2: ST.probe(sW, "conv", O.probe_j, O.probe_k)
    ST.flush(sW, "conv")
    A("s_endpgm")

def build(O):
    name = NAME + "_kernel"
    A = Asm()
    head(A, name)
    A("s_cmp_ge_u32 s2, 256"); A("s_cbranch_scc1 L_exit")
    A("s_load_dwordx16 s[4:19], s[0:1], 0"); A("s_load_dwordx16 s[20:35], s[0:1], 56")
    if O.stamps: A("s_memrealtime s[92:93]"); A("s_waitcnt lgkmcnt(0)"); A("s_mov_b32 s95, s92")
    A(f"v_readfirstlane_b32 {s(sW)}, v0"); A("s_bfe_u32 s3, s2, 0x40003"); A(f"v_and_b32 {v(vL)}, 63, v0"); A(f"s_lshr_b32 {s(sW)}, {s(sW)}, 6")
    if O.code_pf:
        A(f"s_cmp_ge_u32 s3, {O.code_pf}"); A("s_cbranch_scc1 L_nocp"); A(f"s_cmp_lg_u32 {s(sW)}, 7"); A("s_cbranch_scc1 L_nocp")
        code_prefetch(A, "all", 36, 172, 173, "L_auxk", 3)
        A("L_nocp:")
    A("s_bitcmp1_b32 s2, 7"); A("s_cbranch_scc0 L_auxk")
    conv_entry(A, O)
    A("s_branch L_conv")
    A("L_auxk:")
    if O.exp & 64: A("s_endpgm")
    aux_entry(A, O)
    A("L_entry_end:")
    gen_aux(A, O)
    A("L_exit:"); A("s_endpgm")
    A(".p2align 6")
    A("L_conv:")
    gen_conv(A, O)
    A("L_code_end:")
    A(".p2align 7")
    A("L_bands:")
    for lo, hi, val in ((6, 10, 0x3f80), (3, 5, 0x3f80), (4, 12, 0x3f80), (5, 11, 0x3f80), (12, 13, 0xffff)):
        for l in range(64):
            j, g = l & 15, l >> 4
            w = [sum((val << (16 * h)) for h in range(2) if lo <= 8 * g + 2 * dd + h - j <= hi) for dd in range(4)]
            A.raw(".long " + ", ".join(hex(x) for x in w))
    txt = f"; @launch grid=(256,1,1) block=(512,1,1) lds={LDS_TOTAL}\n" + '.amdgcn_target "amdgcn-amd-amdhsa--gfx950"\n' + A.text()
    print("lines", len(A.lines), "auto nops", A.nauto, "lds", LDS_TOTAL, file=sys.stderr)
    return txt + KD.format(name=name, vgpr=256, sgpr=96, acc=256)

if __name__ == "__main__":
    O = Opt()
    for a_ in sys.argv[2:]:
        k, val = a_.split("="); assert hasattr(O, k), k; setattr(O, k, int(val))
    open(sys.argv[1], "w").write(build(O))
```
